```python
import torch

def _softmax(x, axis=-1):
    return torch.softmax(x, dim=axis)
def _gelu(x):
    return torch.nn.functional.gelu(x, approximate="tanh")
def _silu(x):
    return torch.nn.functional.silu(x)
def _sigmoid(x):
    return torch.sigmoid(x)
def _layernorm(x, axis=-1, eps=1e-5):
    m = x.mean(dim=axis, keepdim=True)
    v = x.var(dim=axis, keepdim=True, unbiased=False)
    return (x - m) / torch.sqrt(v + eps)
def _scatter_add(tgt, idx, src, axis=0):
    return tgt.clone().index_add_(axis, idx, src)
def _segment_sum(src, seg, n):
    out = torch.zeros((n,) + src.shape[1:], dtype=src.dtype)
    return out.index_add_(0, seg, src)
def _pad(x, pw):
    flat = tuple(v for pair in reversed(pw) for v in pair)
    return torch.nn.functional.pad(x, flat)

kernel_name = 'standalone__seq2seq_rnn_t_joint__speech'

def setup_inputs():

    _w = (lambda a: (lambda t: t.to(torch.bfloat16) if t.is_floating_point() else t)(torch.as_tensor(a)))
    B, T, D, K = 2, 16000, 256, 3
    U = 8
    sc = (1.0 / (K * D)) ** 0.5
    sd = (1.0 / D) ** 0.5
    return {
        "x": _w((lambda *s: torch.randn(*s, dtype=torch.bfloat16) * 0.2)(B, T, D) * 0.5),
        "w1": _w((lambda *s: torch.randn(*s, dtype=torch.bfloat16) * 3.2)(K, D, D) * sc),
        "w2": _w((lambda *s: torch.randn(*s, dtype=torch.bfloat16) * 3.2)(K, D, D) * sc),
        "g": _w((lambda *s: torch.randn(*s, dtype=torch.bfloat16) * 3.2)(B, U, D) * 0.5),
        "w_f": _w((lambda *s: torch.randn(*s, dtype=torch.bfloat16) * 3.2)(D, D) * sd),
        "w_g": _w((lambda *s: torch.randn(*s, dtype=torch.bfloat16) * 3.2)(D, D) * sd),
        "w_o": _w((lambda *s: torch.randn(*s, dtype=torch.bfloat16) * 3.2)(D, D) * sd),
    }

def reference(x, w1, w2, g, w_f, w_g, w_o):
    B, T, D = x.shape
    K = w1.shape[0]
    pad = K // 2
    xp = _pad(x, ((0,0),(pad,pad),(0,0)))
    h = torch.zeros_like(x)
    for i in range(K):
        h = h + torch.einsum("btc,cd->btd", xp[:, i:i+T, :], w1[i])
    h = _gelu(h)[:, ::2, :]
    T1 = h.shape[1]
    hp = _pad(h, ((0,0),(pad,pad),(0,0)))
    f = torch.zeros_like(h)
    for i in range(K):
        f = f + torch.einsum("btc,cd->btd", hp[:, i:i+T1, :], w2[i])
    f = _gelu(f)[:, ::2, :]
    fe = torch.einsum("btd,de->bte", f, w_f)
    ge = torch.einsum("bud,de->bue", g, w_g)
    j = torch.tanh(fe[:, :, None, :] + ge[:, None, :, :])
    return torch.einsum("btud,dv->btuv", j, w_o)
```

```python
def rn(base, n=1):
    p, i = ('a', base - 256) if base >= 256 else ('v', base)
    return f"{p}{i}" if n == 1 else f"{p}[{i}:{i + n - 1}]"


def rng(base, n):
    return list(range(base, base + n))


class Emitter:
    def __init__(self):
        self.out = []
        self.slot = 0
        self.wr = {}
        self.stw = {}
        self.pend = {}
        self.lseq = 0
        self.vseq = 0
        self.ldone = 0
        self.vdone = 0
        self.m0_slot = -10
        self.sgpr_valu = {}
        self.t = 0.0
        self.mfree = 0.0
        self.nbytes = 0

    def raw(self, text):
        self.out.append(text)

    def comment(self, text):
        self.out.append(f"    ; {text}")

    def label(self, name):
        self.out.append(f"{name}:")

    def _put(self, text, slots=1, cost=4.0):
        self.out.append("    " + text)
        self.slot += slots
        self.t += cost

    def nop(self, n):
        while n > 0:
            k = min(n, 16)
            self._put(f"s_nop {k - 1}", slots=k, cost=4.0 * k)
            n -= k

    def wait(self, lseq=None, vseq=None):
        parts = []
        if vseq is not None and vseq > self.vdone:
            n = min(self.vseq - vseq, 63)
            parts.append(f"vmcnt({n})")
            self.vdone = self.vseq - n
        if lseq is not None and lseq > self.ldone:
            n = min(self.lseq - lseq, 15)
            parts.append(f"lgkmcnt({n})")
            self.ldone = self.lseq - n
        if parts:
            self._put("s_waitcnt " + " ".join(parts))

    def wait_all_lds(self):
        self.wait(lseq=self.lseq)

    def wait_all_vm(self):
        self.wait(vseq=self.vseq)

    def _resolve(self, regs):
        l = v = None
        for r in regs:
            p = self.pend.get(r)
            if p is None:
                continue
            if p[0] == 'l':
                l = p[1] if l is None else max(l, p[1])
            else:
                v = p[1] if v is None else max(v, p[1])
        self.wait(lseq=l, vseq=v)
        for r in regs:
            self.pend.pop(r, None)

    def _hazard(self, cls, reads, writes, cregs=None, cexact=None):
        need = 0

        def req(slot, ws):
            nonlocal need
            have = self.slot - slot - 1
            need = max(need, ws - have)

        for r in reads:
            w = self.wr.get(r)
            if w is None:
                continue
            s, c = w[0], w[1]
            if cls in ('mfma32', 'mfma16'):
                if c in ('valu', 'trans'):
                    req(s, 2)
                elif c in ('mfma32', 'mfma16'):
                    passes = 8 if c == 'mfma32' else 4
                    if cregs is not None and r in cregs:
                        if not (c == cls and cexact == w[2]):
                            req(s, 10 if passes == 8 else 6)
                    else:
                        req(s, 12 if passes == 8 else 8)
            else:
                if c == 'mfma32':
                    req(s, 12)
                elif c == 'mfma16':
                    req(s, 8)
                elif c == 'trans' and cls == 'valu':
                    req(s, 1)
                elif c in ('valu', 'trans') and cls == 'rfl':
                    req(s, 1)
        for r in writes:
            w = self.wr.get(r)
            if w is not None and cls not in ('mfma32', 'mfma16'):
                if w[1] == 'mfma32':
                    req(w[0], 12)
                elif w[1] == 'mfma16':
                    req(w[0], 8)
            s = self.stw.get(r)
            if s is not None:
                req(s, 2)
        if need > 0:
            self.nop(need)

    def valu(self, text, w=(), r=(), trans=False, vop3=False, sw=(), sr=()):
        cls = 'trans' if trans else 'valu'
        self._resolve(list(r) + list(w))
        self._hazard(cls, r, w)
        for s in sr:
            sl = self.sgpr_valu.get(s)
            if sl is not None and self.slot - sl - 1 < 2:
                self.nop(2 - (self.slot - sl - 1))
        for x in w:
            self.wr[x] = (self.slot, cls)
        for s in sw:
            self.sgpr_valu[s] = self.slot
        self._put(text, cost=8.0 if trans else (5.0 if vop3 else 4.0))

    def rfl(self, sdst, vsrc):
        self._resolve([vsrc])
        self._hazard('rfl', [vsrc], [])
        self.sgpr_valu[sdst] = self.slot
        self._put(f"v_readfirstlane_b32 {sdst}, {rn(vsrc)}")
        self.nop(5)

    def salu(self, text, m0=False):
        if m0:
            self.m0_slot = self.slot
        self._put(text)

    def mfma(self, big, d, a, b, c):
        n = 16 if big else 4
        cls = 'mfma32' if big else 'mfma16'
        name = "v_mfma_f32_32x32x16_bf16" if big else "v_mfma_f32_16x16x32_bf16"
        reads = rng(a, 4) + rng(b, 4)
        cregs = set()
        if c is not None:
            cregs = set(rng(c, n))
            reads += rng(c, n)
        self._resolve(reads + rng(d, n))
        self._hazard(cls, reads, rng(d, n), cregs=cregs, cexact=c)
        for x in rng(d, n):
            self.wr[x] = (self.slot, cls, d)
        cs = rn(c, n) if c is not None else "0"
        start = max(self.t, self.mfree)
        self.mfree = start + (32 if big else 16)
        self.t = start
        self._put(f"{name} {rn(d, n)}, {rn(a, 4)}, {rn(b, 4)}, {cs}", cost=8.0)

    def ds_read(self, n, dst, addr, off=0, tr=False):
        name = "ds_read_b64_tr_b16" if tr else {1: "ds_read_b32", 2: "ds_read_b64", 4: "ds_read_b128"}[n]
        self._resolve([addr])
        self._hazard('ds', [addr], rng(dst, n))
        self.lseq += 1
        for x in rng(dst, n):
            self.pend[x] = ('l', self.lseq)
            self.wr.pop(x, None)
        assert 0 <= off < 65536, off
        self._put(f"{name} {rn(dst, n)}, {rn(addr)}" + (f" offset:{off}" if off else ""))
        return self.lseq

    def ds_write(self, n, addr, src, off=0):
        name = {1: "ds_write_b32", 2: "ds_write_b64", 4: "ds_write_b128"}[n]
        self._resolve([addr] + rng(src, n))
        self._hazard('ds', [addr] + rng(src, n), [])
        self.lseq += 1
        assert 0 <= off < 65536, off
        self._put(f"{name} {rn(addr)}, {rn(src, n)}" + (f" offset:{off}" if off else ""))
        return self.lseq

    def _srd_haz(self, srd, soff):
        names = [f"s{srd + i}" for i in range(4)] + ([soff] if isinstance(soff, str) else [])
        for s in names:
            sl = self.sgpr_valu.get(s)
            if sl is not None and self.slot - sl - 1 < 5:
                self.nop(5 - (self.slot - sl - 1))

    def dma(self, vaddr, srd, soff, off=0):
        self._resolve([vaddr])
        self._hazard('vm', [vaddr], [])
        self._srd_haz(srd, soff)
        if self.slot - self.m0_slot - 1 < 1:
            self.nop(1)
        self.vseq += 1
        assert 0 <= off < 4096
        self._put(f"buffer_load_dwordx4 {rn(vaddr)}, s[{srd}:{srd + 3}], {soff} offen" +
                  (f" offset:{off}" if off else "") + " lds")
        return self.vseq

    def bload(self, n, dst, vaddr, srd, soff, off=0):
        name = {1: "buffer_load_dword", 2: "buffer_load_dwordx2", 4: "buffer_load_dwordx4"}[n]
        self._resolve([vaddr])
        self._hazard('vm', [vaddr], rng(dst, n))
        self._srd_haz(srd, soff)
        self.vseq += 1
        for x in rng(dst, n):
            self.pend[x] = ('v', self.vseq)
            self.wr.pop(x, None)
        assert 0 <= off < 4096
        self._put(f"{name} {rn(dst, n)}, {rn(vaddr)}, s[{srd}:{srd + 3}], {soff} offen" +
                  (f" offset:{off}" if off else ""))
        return self.vseq

    def bstore(self, n, src, vaddr, srd, soff, off=0, flags=""):
        name = {1: "buffer_store_dword", 2: "buffer_store_dwordx2", 4: "buffer_store_dwordx4"}[n]
        self._resolve([vaddr] + rng(src, n))
        self._hazard('vm', [vaddr] + rng(src, n), [])
        self._srd_haz(srd, soff)
        self.vseq += 1
        if n >= 3:
            for x in rng(src, n):
                self.stw[x] = self.slot
        assert 0 <= off < 4096
        self._put(f"{name} {rn(src, n)}, {rn(vaddr)}, s[{srd}:{srd + 3}], {soff} offen" +
                  (f" offset:{off}" if off else "") + (" " + flags if flags else ""))
        return self.vseq

    def barrier(self):
        self.wait_all_lds()
        self._put("s_barrier")

    def drain_hazards(self):
        self.nop(16)
        self.wr.clear()
        self.stw.clear()
        self.sgpr_valu.clear()

    def text(self):
        return "\n".join(self.out) + "\n"
```

```python
import struct
import sys

from emit import Emitter, rn, rng

NAME = "standalone__seq2seq_rnn_t_joint__speech"
NWG = 250

XSL = 17408
RING = 69632
RING_W = 16384
EG = 135168
FLAG = 143360
J2 = 143392
DUMMY = 160768
LDS_BYTES = 161792
HROW = 528
HEVEN = 37
FB = 36864
EFROW = 1040
JB = [33280, 50176, J2]
OROW = 144

SX, SW1, SW2, SG, SWF, SWG, SWO, SOUT = 8, 12, 16, 20, 24, 28, 32, 36
S_W, S_RING, S_SOFF, S_B, S_T0, S_X4A, S_X4B, S_OBASE, S_FLAG, S_T1, S_T2, S_LIM, S_CNT = \
    "s56", "s57", "s58", "s59", "s60", "s61", "s62", "s63", "s64", "s65", "s66", "s67", "s68"

VL = 1
T = list(range(2, 10))
VW0, VW1, VWO0, VWO1 = 10, 11, 12, 13
VTR = [14, 15]
VTRO = [16, 17]
VX = [18, 19, 20, 21, 22]
VHR2 = 23
VXB = [[24 + 4 * t + k for k in range(4)] for t in range(3)]
VXH = [[36 + 4 * t + k for k in range(4)] for t in range(3)]
VHW, VHH, VHR, VFW, VEFW, VEFR, VEGW, VEGR, VJW, VOW, VOR, VOS, VG, VC1, VMAX, VJW2 = range(48, 64)
ACC = 64
HACC = 128
KEEPA = 136
KEEPB = 168
EGR = 176
TMP = 208
A0 = 256
WOF = A0
FBUF = A0 + 128
VS = 12
BFR = A0 + 224
RS = 8

LOG2E = 1.4426950408889634
GC0 = -2.0 * 0.7978845608028654 * LOG2E
GC1 = GC0 * 0.044715
TSC = 2.0 * LOG2E


def f32(x):
    return "0x%08x" % struct.unpack("<I", struct.pack("<f", x))[0]


class Stream:
    LAT = 900.0
    RATE = 140.0

    def __init__(self, e):
        self.e = e
        self.units = []
        self.du = self.tu = self.cu = 0
        self.dseq = {}
        self.tseq = {}
        self.arr = {}
        self.last_arr = 0.0

    def add(self, srd, soff, wo_idx=None):
        self.units.append((srd, soff, wo_idx))

    def dest(self, u):
        wo = self.units[u][2]
        return WOF + 8 * wo if wo is not None else FBUF + 8 * (u % VS)

    def can_dma(self):
        u = self.du
        return u < len(self.units) and (u < RS or u - RS <= self.tu - 2)

    def do_dma(self):
        e, u = self.e, self.du
        srd, soff, wo = self.units[u]
        if u >= RS:
            e.wait(lseq=self.tseq[u - RS])
        e.salu(f"s_add_u32 m0, {S_RING}, {(u % RS) * 2048}", m0=True)
        e.salu(f"s_mov_b32 {S_SOFF}, {soff}")
        e.dma(VWO0 if wo is not None else VW0, srd, S_SOFF)
        self.dseq[u] = e.dma(VWO1 if wo is not None else VW1, srd, S_SOFF, off=1024)
        self.last_arr = max(e.t + self.LAT, self.last_arr + self.RATE)
        self.arr[u] = self.last_arr
        self.du += 1

    def can_tr(self, timed=True):
        u = self.tu
        if u >= self.du:
            return False
        if self.units[u][2] is None and u - self.cu >= VS:
            return False
        return (not timed) or self.arr[u] <= self.e.t

    def do_tr(self):
        e, u = self.e, self.tu
        wo = self.units[u][2]
        e.wait(vseq=self.dseq[u])
        e.t = max(e.t, self.arr[u])
        d = self.dest(u)
        va = VTRO if wo is not None else VTR
        for mt in range(2):
            for jj in range(2):
                self.tseq[u] = e.ds_read(2, d + 4 * mt + 2 * jj, va[mt], (u % RS) * 2048 + jj * 512, tr=True)
        self.tu += 1

    def pump(self, max_ops=2):
        n = 0
        while n < max_ops:
            if self.can_tr():
                self.do_tr()
            elif self.can_dma():
                self.do_dma()
            else:
                break
            n += 1

    def ensure(self, u):
        while self.tu <= u:
            while self.du <= self.tu:
                assert self.can_dma()
                self.do_dma()
            assert self.can_tr(timed=False), (u, self.tu, self.cu)
            self.do_tr()


def interleave(e, mains, fillers):
    n = len(mains)
    k = 0
    for i, m in enumerate(mains):
        m()
        upto = (len(fillers) * (i + 1) + n - 1) // n
        while k < upto:
            fillers[k]()
            k += 1


def prologue(e):
    v = lambda text, w=(), r=(), **kw: e.valu(text, w, r, **kw)
    e.salu(f"s_cmp_ge_u32 s2, {NWG}")
    e.salu("s_cbranch_scc1 L_end")
    e.salu("s_load_dwordx16 s[40:55], s[0:1], 0")
    v(f"v_and_b32 {rn(VL)}, 63, v0", [VL], [0])
    v(f"v_lshrrev_b32 {rn(T[0])}, 6, v0", [T[0]], [0])
    e.rfl(S_W, T[0])
    e.salu(f"s_cmp_ge_u32 s2, 125")
    e.salu(f"s_cselect_b32 {S_B}, 1, 0")
    e.salu(f"s_mul_i32 {S_T1}, {S_B}, 125")
    e.salu(f"s_sub_u32 {S_T0}, s2, {S_T1}")
    e.salu(f"s_lshl_b32 {S_T0}, {S_T0}, 5")
    e.salu(f"s_lshl_b32 {S_RING}, {S_W}, 14")
    e.salu(f"s_add_u32 {S_RING}, {S_RING}, {RING}")
    e.salu(f"s_lshl_b32 {S_OBASE}, s2, 17")
    e.salu(f"s_cmp_eq_u32 {S_W}, 0")
    e.salu(f"s_cselect_b32 {S_X4A}, {XSL}, 0")
    e.salu(f"s_mov_b32 {S_X4B}, {DUMMY}")
    e.salu(f"s_cselect_b32 {S_X4B}, 16384, {S_X4B}")
    e.salu(f"s_mov_b32 {S_LIM}, {f32(125.0)}")
    e.salu(f"s_lshl_b32 {S_T2}, {S_W}, 7")
    t0, t1, t2, t3, t4, t5 = T[:6]
    L = rn(VL)
    v(f"v_lshrrev_b32 {rn(t0)}, 3, {L}", [t0], [VL])
    v(f"v_lshlrev_b32 {rn(t0)}, 9, {rn(t0)}", [t0], [t0])
    v(f"v_add_u32 {rn(t0)}, {S_T2}, {rn(t0)}", [t0], [t0])
    v(f"v_and_b32 {rn(t1)}, 7, {L}", [t1], [VL])
    v(f"v_lshrrev_b32 {rn(t2)}, 2, {L}", [t2], [VL])
    v(f"v_and_b32 {rn(t2)}, 4, {rn(t2)}", [t2], [t2])
    v(f"v_xor_b32 {rn(t2)}, {rn(t1)}, {rn(t2)}", [t2], [t1, t2])
    v(f"v_lshl_add_u32 {rn(VW0)}, {rn(t2)}, 4, {rn(t0)}", [VW0], [t2, t0], vop3=True)
    v(f"v_add_u32 {rn(VW1)}, 3072, {rn(VW0)}", [VW1], [VW0])
    v(f"v_lshrrev_b32 {rn(t2)}, 3, {L}", [t2], [VL])
    v(f"v_and_b32 {rn(t2)}, 2, {rn(t2)}", [t2], [t2])
    v(f"v_xor_b32 {rn(t2)}, {rn(t1)}, {rn(t2)}", [t2], [t1, t2])
    v(f"v_lshl_add_u32 {rn(VWO0)}, {rn(t2)}, 4, {rn(t0)}", [VWO0], [t2, t0], vop3=True)
    v(f"v_add_u32 {rn(VWO1)}, 3072, {rn(VWO0)}", [VWO1], [VWO0])
    v(f"v_and_b32 {rn(t0)}, 15, {L}", [t0], [VL])
    v(f"v_lshrrev_b32 {rn(t1)}, 4, {L}", [t1], [VL])
    v(f"v_xor_b32 {rn(t2)}, {rn(t0)}, {rn(t1)}", [t2], [t0, t1])
    v(f"v_and_b32 {rn(t2)}, 1, {rn(t2)}", [t2], [t2])
    v(f"v_lshrrev_b32 {rn(t3)}, 1, {rn(t0)}", [t3], [t0])
    e.salu(f"s_lshl_b32 {S_T1}, {S_B}, 3")
    v(f"v_add_u32 {rn(t3)}, {S_T1}, {rn(t3)}", [t3], [t3])
    v(f"v_lshlrev_b32 {rn(t3)}, 9, {rn(t3)}", [t3], [t3])
    v(f"v_lshrrev_b32 {rn(t4)}, 1, {rn(t1)}", [t4], [t1])
    v(f"v_lshl_add_u32 {rn(t3)}, {rn(t4)}, 4, {rn(t3)}", [t3], [t4, t3], vop3=True)
    v(f"v_lshl_or_b32 {rn(VG)}, {rn(t2)}, 31, {rn(t3)}", [VG], [t2, t3], vop3=True)
    e.salu("s_waitcnt lgkmcnt(0)")
    sizes = [16384000, 393216, 393216, 8192, 131072, 131072, 131072, 32768000]
    for i, srd in enumerate([SX, SW1, SW2, SG, SWF, SWG, SWO, SOUT]):
        e.salu(f"s_mov_b32 s{srd}, s{40 + 2 * i}")
        e.salu(f"s_and_b32 s{srd + 1}, s{41 + 2 * i}, 0xffff")
        e.salu(f"s_mov_b32 s{srd + 2}, {sizes[i]}")
        e.salu(f"s_mov_b32 s{srd + 3}, 0x20000")


def consts_x_dma(e):
    v = lambda text, w=(), r=(), **kw: e.valu(text, w, r, **kw)
    t0, t1, t2, t3, t4, t5 = T[:6]
    L = rn(VL)
    e.salu(f"s_lshl_b32 {S_T1}, {S_W}, 3")
    e.salu(f"s_lshl_b32 {S_T2}, {S_T0}, 2")
    e.salu(f"s_mul_i32 {S_CNT}, {S_B}, 16000")
    v(f"v_lshrrev_b32 {rn(t0)}, 3, {L}", [t0], [VL])
    v(f"v_add_u32 {rn(t0)}, {S_T1}, {rn(t0)}", [t0], [t0])
    v(f"v_and_b32 {rn(t1)}, 7, {L}", [t1], [VL])
    for j in range(5):
        v(f"v_add_u32 {rn(t2)}, {32 * j}, {rn(t0)}", [t2], [t0])
        v(f"v_bfe_u32 {rn(t3)}, {rn(t2)}, 1, 3", [t3], [t2], vop3=True)
        v(f"v_xor_b32 {rn(t3)}, {rn(t1)}, {rn(t3)}", [t3], [t1, t3])
        v(f"v_lshlrev_b32 {rn(t4)}, 1, {rn(t2)}", [t4], [t2])
        v(f"v_cmp_lt_u32 vcc, 64, {rn(t2)}", [], [t2], sw=["vcc"])
        v(f"v_cndmask_b32 {rn(t5)}, 2, {rn(VC1)}, vcc", [t5], [VC1], sr=["vcc"])
        v(f"v_sub_u32 {rn(t4)}, {rn(t4)}, {rn(t5)}", [t4], [t4, t5])
        v(f"v_add_u32 {rn(t4)}, {S_T2}, {rn(t4)}", [t4], [t4])
        v(f"v_add_u32 {rn(t5)}, {S_CNT}, {rn(t4)}", [t5], [t4])
        v(f"v_lshlrev_b32 {rn(t5)}, 9, {rn(t5)}", [t5], [t5])
        v(f"v_lshl_add_u32 {rn(t5)}, {rn(t3)}, 4, {rn(t5)}", [t5], [t3, t5], vop3=True)
        v(f"v_cmp_gt_i32 vcc, 0, {rn(t4)}", [], [t4], sw=["vcc"])
        v(f"v_cndmask_b32 {rn(t5)}, {rn(t5)}, {rn(VMAX)}, vcc", [t5], [t5, VMAX], sr=["vcc"])
        v(f"v_cmp_lt_u32 vcc, 130, {rn(t2)}", [], [t2], sw=["vcc"])
        v(f"v_cndmask_b32 {rn(VX[j])}, {rn(t5)}, {rn(VMAX)}, vcc", [VX[j]], [t5, VMAX], sr=["vcc"])


def x_slice_dma(e, s):
    seq = None
    e.salu(f"s_lshl_b32 {S_T1}, {S_W}, 10")
    e.salu(f"s_mov_b32 {S_T2}, {128 * s}")
    for j in range(4):
        e.salu(f"s_add_u32 m0, {S_T1}, {s * XSL + 4096 * j}", m0=True)
        seq = e.dma(VX[j], SX, S_T2)
    e.salu(f"s_mul_i32 {S_T1}, {S_X4A}, {s}")
    e.salu(f"s_add_u32 m0, {S_T1}, {S_X4B}", m0=True)
    seq = e.dma(VX[4], SX, S_T2)
    return seq


def consts_rest(e):
    v = lambda text, w=(), r=(), **kw: e.valu(text, w, r, **kw)
    t0, t1, t2, t3, t4, t5, t6, t7 = T
    L = rn(VL)
    e.salu(f"s_lshl_b32 {S_T2}, {S_W}, 7")
    v(f"v_lshrrev_b32 {rn(t0)}, 4, {L}", [t0], [VL])
    v(f"v_bfe_u32 {rn(t1)}, {L}, 2, 2", [t1], [VL], vop3=True)
    v(f"v_and_b32 {rn(t2)}, 3, {L}", [t2], [VL])
    v(f"v_and_b32 {rn(t3)}, 1, {rn(t0)}", [t3], [t0])
    v(f"v_lshl_or_b32 {rn(t2)}, {rn(t3)}, 2, {rn(t2)}", [t2], [t3, t2], vop3=True)
    v(f"v_lshrrev_b32 {rn(t3)}, 1, {rn(t0)}", [t3], [t0])
    v(f"v_lshlrev_b32 {rn(t3)}, 10, {rn(t3)}", [t3], [t3])
    v(f"v_lshl_add_u32 {rn(t3)}, {rn(t1)}, 7, {rn(t3)}", [t3], [t1, t3], vop3=True)
    v(f"v_add_u32 {rn(t3)}, {S_RING}, {rn(t3)}", [t3], [t3])
    v(f"v_lshrrev_b32 {rn(t1)}, 1, {rn(t1)}", [t1], [t1])

    def perm_q(dst, q):
        v(f"v_and_b32 {rn(t6)}, 1, {rn(q)}", [t6], [q])
        v(f"v_bfe_u32 {rn(t7)}, {rn(q)}, 1, 1", [t7], [q], vop3=True)
        v(f"v_lshl_or_b32 {rn(t6)}, {rn(t6)}, 1, {rn(t7)}", [t6], [t6, t7], vop3=True)
        v(f"v_and_or_b32 {rn(dst)}, {rn(q)}, 4, {rn(t6)}", [dst], [q, t6], vop3=True)

    perm_q(t4, t2)
    v(f"v_lshlrev_b32 {rn(t4)}, 3, {rn(t4)}", [t4], [t4])
    v(f"v_lshl_or_b32 {rn(t4)}, {rn(t1)}, 6, {rn(t4)}", [t4], [t1, t4], vop3=True)
    v(f"v_add_u32 {rn(VTR[0])}, {rn(t3)}, {rn(t4)}", [VTR[0]], [t3, t4])
    v(f"v_xor_b32 {rn(t4)}, 64, {rn(t4)}", [t4], [t4])
    v(f"v_add_u32 {rn(VTR[1])}, {rn(t3)}, {rn(t4)}", [VTR[1]], [t3, t4])
    v(f"v_and_b32 {rn(t4)}, 1, {rn(t2)}", [t4], [t2])
    v(f"v_lshlrev_b32 {rn(t4)}, 6, {rn(t4)}", [t4], [t4])
    v(f"v_lshrrev_b32 {rn(t5)}, 1, {rn(t2)}", [t5], [t2])
    v(f"v_lshl_or_b32 {rn(t4)}, {rn(t5)}, 3, {rn(t4)}", [t4], [t5, t4], vop3=True)
    v(f"v_lshl_or_b32 {rn(t4)}, {rn(t1)}, 5, {rn(t4)}", [t4], [t1, t4], vop3=True)
    v(f"v_add_u32 {rn(VTRO[0])}, {rn(t3)}, {rn(t4)}", [VTRO[0]], [t3, t4])
    v(f"v_xor_b32 {rn(t4)}, 32, {rn(t4)}", [t4], [t4])
    v(f"v_add_u32 {rn(VTRO[1])}, {rn(t3)}, {rn(t4)}", [VTRO[1]], [t3, t4])
    v(f"v_and_b32 {rn(t1)}, 15, {L}", [t1], [VL])
    v(f"v_and_b32 {rn(t2)}, 1, {rn(t1)}", [t2], [t1])
    v(f"v_lshl_or_b32 {rn(t2)}, {rn(t2)}, 2, {rn(t0)}", [t2], [t2, t0], vop3=True)
    perm_q(t4, t2)
    v(f"v_lshrrev_b32 {rn(t3)}, 1, {rn(t1)}", [t3], [t1])
    v(f"v_lshlrev_b32 {rn(t3)}, 10, {rn(t3)}", [t3], [t3])
    v(f"v_and_b32 {rn(t5)}, 1, {rn(t4)}", [t5], [t4])
    v(f"v_lshl_add_u32 {rn(t3)}, {rn(t5)}, 9, {rn(t3)}", [t3], [t5, t3], vop3=True)
    v(f"v_lshrrev_b32 {rn(t5)}, 1, {rn(t4)}", [t5], [t4])
    v(f"v_lshl_add_u32 {rn(t3)}, {rn(t5)}, 4, {rn(t3)}", [t3], [t5, t3], vop3=True)
    v(f"v_add_u32 {rn(t3)}, {S_T2}, {rn(t3)}", [t3], [t3])
    v(f"v_add_u32 {rn(VEGW)}, {EG}, {rn(t3)}", [VEGW], [t3])
    v(f"v_lshlrev_b32 {rn(t3)}, 3, {rn(t4)}", [t3], [t4])
    v(f"v_add_u32 {rn(t3)}, {S_T2}, {rn(t3)}", [t3], [t3])
    v(f"v_mov_b32 {rn(t5)}, {DUMMY}", [t5], [])
    v(f"v_cmp_gt_u32 vcc, 2, {rn(t1)}", [], [t1], sw=["vcc"])
    v(f"v_cndmask_b32 {rn(VHH)}, {rn(t5)}, {rn(t3)}, vcc", [VHH], [t5, t3], sr=["vcc"])
    v(f"v_and_b32 {rn(t2)}, 1, {rn(t0)}", [t2], [t0])
    v(f"v_lshrrev_b32 {rn(t3)}, 1, {rn(t0)}", [t3], [t0])
    v(f"v_cmp_eq_u32 vcc, {rn(t1)}, {rn(t2)}", [], [t1, t2], sw=["vcc"])
    for tap, rh in enumerate((65, 0, 66)):
        v(f"v_mov_b32 {rn(t5)}, {rh}", [t5], [])
        v(f"v_cndmask_b32 {rn(t4)}, {rn(VC1)}, {rn(t5)}, vcc", [t4], [VC1, t5], sr=["vcc"])
        v(f"v_bfe_u32 {rn(t5)}, {rn(t4)}, 1, 3", [t5], [t4], vop3=True)
        v(f"v_xor_b32 {rn(t5)}, {rn(t3)}, {rn(t5)}", [t5], [t3, t5])
        v(f"v_lshlrev_b32 {rn(t4)}, 7, {rn(t4)}", [t4], [t4])
        v(f"v_lshl_add_u32 {rn(VXH[tap][0])}, {rn(t5)}, 4, {rn(t4)}", [VXH[tap][0]], [t5, t4], vop3=True)
        for k in range(1, 4):
            v(f"v_xor_b32 {rn(VXH[tap][k])}, {32 * k}, {rn(VXH[tap][0])}", [VXH[tap][k]], [VXH[tap][0]])
    v(f"v_and_b32 {rn(t0)}, 31, {L}", [t0], [VL])
    v(f"v_lshrrev_b32 {rn(t1)}, 5, {L}", [t1], [VL])
    for tap, r0 in enumerate((66, 1, 67)):
        v(f"v_add_u32 {rn(t4)}, {r0}, {rn(t0)}", [t4], [t0])
        v(f"v_bfe_u32 {rn(t5)}, {rn(t4)}, 1, 3", [t5], [t4], vop3=True)
        v(f"v_xor_b32 {rn(t5)}, {rn(t1)}, {rn(t5)}", [t5], [t1, t5])
        v(f"v_lshlrev_b32 {rn(t4)}, 7, {rn(t4)}", [t4], [t4])
        v(f"v_lshl_add_u32 {rn(VXB[tap][0])}, {rn(t5)}, 4, {rn(t4)}", [VXB[tap][0]], [t5, t4], vop3=True)
        for k in range(1, 4):
            v(f"v_xor_b32 {rn(VXB[tap][k])}, {32 * k}, {rn(VXB[tap][0])}", [VXB[tap][k]], [VXB[tap][0]])
    v(f"v_mul_u32_u24 {rn(t2)}, {HROW}, {rn(t0)}", [t2], [t0])
    v(f"v_lshl_add_u32 {rn(VHR)}, {rn(t1)}, 4, {rn(t2)}", [VHR], [t1, t2], vop3=True)
    v(f"v_add_u32 {rn(VHR2)}, {J2}, {rn(VHR)}", [VHR2], [VHR])
    v(f"v_add_u32 {rn(VFW)}, {S_T2}, {rn(VHR)}", [VFW], [VHR])
    v(f"v_and_b32 {rn(t2)}, 1, {rn(t0)}", [t2], [t0])
    v(f"v_cmp_eq_u32 vcc, 1, {rn(t2)}", [], [t2], sw=["vcc"])
    v(f"v_mov_b32 {rn(t3)}, 1", [t3], [])
    v(f"v_cndmask_b32 {rn(t3)}, {HEVEN}, {rn(t3)}, vcc", [t3], [t3], sr=["vcc"])
    v(f"v_lshrrev_b32 {rn(t2)}, 1, {rn(t0)}", [t2], [t0])
    v(f"v_add_u32 {rn(t2)}, {rn(t2)}, {rn(t3)}", [t2], [t2, t3])
    v(f"v_mul_u32_u24 {rn(t2)}, {HROW}, {rn(t2)}", [t2], [t2])
    v(f"v_lshl_add_u32 {rn(t2)}, {rn(t1)}, 4, {rn(t2)}", [t2], [t1, t2], vop3=True)
    v(f"v_add_u32 {rn(VHW)}, {S_T2}, {rn(t2)}", [VHW], [t2])
    v(f"v_mul_u32_u24 {rn(t2)}, {EFROW}, {rn(t0)}", [t2], [t0])
    v(f"v_lshl_add_u32 {rn(t2)}, {rn(t1)}, 4, {rn(t2)}", [t2], [t1, t2], vop3=True)
    v(f"v_add_u32 {rn(VEFW)}, {S_T2}, {rn(t2)}", [VEFW], [t2])
    e.salu(f"s_mul_i32 {S_T1}, {S_W}, {EFROW}")
    v(f"v_lshlrev_b32 {rn(t2)}, 4, {rn(t0)}", [t2], [t0])
    v(f"v_add_u32 {rn(VEFR)}, {S_T1}, {rn(t2)}", [VEFR], [t2])
    v(f"v_lshl_add_u32 {rn(t3)}, {rn(t1)}, 12, {rn(t2)}", [t3], [t1, t2], vop3=True)
    v(f"v_add_u32 {rn(VEGR)}, {EG}, {rn(t3)}", [VEGR], [t3])
    e.salu(f"s_mul_i32 {S_T1}, {S_W}, {8 * HROW}")
    v(f"v_mul_u32_u24 {rn(t3)}, {4 * HROW}, {rn(t1)}", [t3], [t1])
    v(f"v_add3_u32 {rn(VJW)}, {rn(t3)}, {rn(t2)}, {S_T1}", [VJW], [t3, t2], vop3=True)
    v(f"v_add_u32 {rn(VJW2)}, {J2}, {rn(VJW)}", [VJW2], [VJW])
    v(f"v_mul_u32_u24 {rn(t2)}, {OROW}, {rn(t0)}", [t2], [t0])
    v(f"v_lshl_add_u32 {rn(t2)}, {rn(t1)}, 6, {rn(t2)}", [t2], [t1, t2], vop3=True)
    v(f"v_add_u32 {rn(VOW)}, {S_RING}, {rn(t2)}", [VOW], [t2])
    v(f"v_lshrrev_b32 {rn(t2)}, 3, {L}", [t2], [VL])
    v(f"v_and_b32 {rn(t3)}, 7, {L}", [t3], [VL])
    v(f"v_lshlrev_b32 {rn(t3)}, 4, {rn(t3)}", [t3], [t3])
    v(f"v_mul_u32_u24 {rn(t4)}, {OROW}, {rn(t2)}", [t4], [t2])
    v(f"v_add3_u32 {rn(VOR)}, {rn(t4)}, {rn(t3)}, {S_RING}", [VOR], [t4, t3], vop3=True)
    v(f"v_lshl_add_u32 {rn(t4)}, {rn(t2)}, 9, {rn(t3)}", [t4], [t2, t3], vop3=True)
    v(f"v_add_u32 {rn(VOS)}, {S_T2}, {rn(t4)}", [VOS], [t4])
    v(f"v_mov_b32 {rn(VC1)}, {f32(GC1)}", [VC1], [])
    v(f"v_mov_b32 {rn(VMAX)}, 0", [VMAX], [])


def gelu_ops(e, regs, packs, pump=None):
    v = lambda text, w=(), r=(), **kw: e.valu(text, w, r, **kw)
    for g0 in range(0, len(regs), 4):
        xs = regs[g0:g0 + 4]
        ts = [TMP + 40 + i for i in range(len(xs))]
        for x, t in zip(xs, ts):
            v(f"v_mul_f32 {rn(t)}, {rn(x)}, {rn(x)}", [t], [x])
        for x, t in zip(xs, ts):
            v(f"v_fmaak_f32 {rn(t)}, {rn(t)}, {rn(VC1)}, {f32(GC0)}", [t], [t, VC1], vop3=True)
        for x, t in zip(xs, ts):
            v(f"v_mul_f32 {rn(t)}, {rn(x)}, {rn(t)}", [t], [x, t])
        for x, t in zip(xs, ts):
            v(f"v_exp_f32 {rn(t)}, {rn(t)}", [t], [t], trans=True)
        for x, t in zip(xs, ts):
            v(f"v_add_f32 {rn(t)}, 1.0, {rn(t)}", [t], [t])
        for x, t in zip(xs, ts):
            v(f"v_rcp_f32 {rn(t)}, {rn(t)}", [t], [t], trans=True)
        for x, t in zip(xs, ts):
            v(f"v_mul_f32 {rn(x)}, {rn(x)}, {rn(t)}", [x], [x, t])
        for i in range(0, len(xs), 2):
            p = packs[(g0 + i) // 2]
            v(f"v_cvt_pk_bf16_f32 {rn(p)}, {rn(xs[i])}, {rn(xs[i + 1])}", [p], [xs[i], xs[i + 1]], vop3=True)
        if pump:
            pump()


def exp_stage(e, src, keep, dst, n, pump=None):
    v = lambda text, w=(), r=(), **kw: e.valu(text, w, r, **kw)
    for i in range(n):
        v(f"v_mul_f32 {rn(keep + i)}, {f32(TSC)}, {rn(src + i)}", [keep + i], [src + i], vop3=True)
    for i in range(n):
        v(f"v_exp_f32 {rn(dst + i)}, {rn(keep + i)}", [dst + i], [keep + i], trans=True)
        if i % 2 == 1:
            v(f"v_max3_f32 {rn(VMAX)}, |{rn(keep + i - 1)}|, |{rn(keep + i)}|, {rn(VMAX)}",
              [VMAX], [keep + i - 1, keep + i, VMAX], vop3=True)
        if pump and i % 8 == 7:
            pump()


def produce_ops(e, c, slow=False, ef=None):
    v = lambda text, w=(), r=(), **kw: e.valu(text, w, r, **kw)
    EF = TMP if ef is None else ef
    W = TMP + 8
    P = TMP + 24
    ops = []
    ops.append(lambda: e.ds_read(4, EF, VEFR, c * 4 * EFROW))
    ops.append(lambda: e.ds_read(4, EF + 4, VEFR, c * 4 * EFROW + 512))
    jb = JB[c % 3]
    for uu in range(4):
        wk = W + 8 * (uu % 2)
        pk = P + 4 * (uu % 2)
        for h in range(2):
            els = range(4 * h, 4 * h + 4)
            for i in els:
                if slow:
                    ops.append(lambda i=i, wk=wk, uu=uu: v(
                        f"v_add_f32 {rn(wk + i)}, {rn(EF + i)}, {rn(EGR + 8 * uu + i)}",
                        [wk + i], [EF + i, EGR + 8 * uu + i]))
                else:
                    ops.append(lambda i=i, wk=wk, uu=uu: v(
                        f"v_fma_f32 {rn(wk + i)}, {rn(EF + i)}, {rn(EGR + 8 * uu + i)}, 1.0",
                        [wk + i], [EF + i, EGR + 8 * uu + i], vop3=True))
            if slow:
                for i in els:
                    ops.append(lambda i=i, wk=wk: v(f"v_exp_f32 {rn(wk + i)}, {rn(wk + i)}", [wk + i], [wk + i], trans=True))
                for i in els:
                    ops.append(lambda i=i, wk=wk: v(f"v_add_f32 {rn(wk + i)}, 1.0, {rn(wk + i)}", [wk + i], [wk + i]))
            for i in els:
                ops.append(lambda i=i, wk=wk: v(f"v_rcp_f32 {rn(wk + i)}, {rn(wk + i)}", [wk + i], [wk + i], trans=True))
            for i in els:
                ops.append(lambda i=i, wk=wk: v(f"v_fma_f32 {rn(wk + i)}, {rn(wk + i)}, -2.0, 1.0",
                                                [wk + i], [wk + i], vop3=True))
            for i in (4 * h, 4 * h + 2):
                ops.append(lambda i=i, wk=wk, pk=pk: v(
                    f"v_cvt_pk_bf16_f32 {rn(pk + i // 2)}, {rn(wk + i)}, {rn(wk + i + 1)}",
                    [pk + i // 2], [wk + i, wk + i + 1], vop3=True))
        if jb == J2:
            ops.append(lambda uu=uu, pk=pk: e.ds_write(4, VJW2, pk, uu * HROW))
        else:
            ops.append(lambda uu=uu, pk=pk: e.ds_write(4, VJW, pk, jb + uu * HROW))
    return ops


def out_epilogue_ops(e, c, acc, soff_reg=None):
    v = lambda text, w=(), r=(), **kw: e.valu(text, w, r, **kw)
    ops = []
    OR = TMP + 32
    for s in range(4):
        for i in range(4):
            k = 4 * s + i
            ops.append(lambda k=k: v(f"v_cvt_pk_bf16_f32 {rn(acc + k)}, {rn(acc + 2 * k)}, {rn(acc + 2 * k + 1)}",
                                     [acc + k], [acc + 2 * k, acc + 2 * k + 1], vop3=True))
        ops.append(lambda s=s: e.ds_write(4, VOW, acc + 4 * s, 16 * s))
    for i in range(4):
        ops.append(lambda i=i: e.ds_read(4, OR + 4 * i, VOR, i * 8 * OROW))
    for i in range(4):
        def st(i=i):
            if soff_reg is None:
                e.salu(f"s_add_u32 {S_T1}, {S_OBASE}, {c * 16384 + i * 4096}")
            else:
                e.salu(f"s_add_u32 {S_T1}, {soff_reg}, {i * 4096}")
            e.bstore(4, OR + 4 * i, VOS, SOUT, S_T1)
        ops.append(st)
    return ops


def generate():
    e = Emitter()
    st = Stream(e)
    for k in range(16):
        st.add(SWG, k * 8192)
    for s in range(4):
        for tap in range(3):
            for k in range(4):
                st.add(SW1, tap * 131072 + (64 * s + 16 * k) * 512)
    for k in range(48):
        st.add(SW2, k * 8192)
    for k in range(16):
        st.add(SWF, k * 8192)
    for k in range(16):
        st.add(SWO, k * 8192, wo_idx=k)
    U_G, U_1, U_2, U_F, U_O = 0, 16, 64, 112, 128

    prologue(e)
    for _ in range(RS):
        st.do_dma()
    for k in range(16):
        e.bload(4, WOF + 4 * k, VG, SG, 0, off=32 * k)
    e.valu(f"v_mov_b32 {rn(VC1)}, 133", [VC1], [])
    e.valu(f"v_bfrev_b32 {rn(VMAX)}, 1", [VMAX], [])
    consts_x_dma(e)
    xseq = {}
    xseq[0] = x_slice_dma(e, 0)
    xseq[1] = x_slice_dma(e, 1)
    consts_rest(e)

    for k in range(16):
        u = U_G + k
        st.ensure(u)
        st.pump(2)
        d = st.dest(u)
        for mt in range(2):
            e.mfma(False, HACC + 4 * mt, d + 4 * mt, WOF + 4 * k, HACC + 4 * mt if k else None)
        st.cu += 1
    exp_stage(e, HACC, KEEPB, TMP, 8)
    for mt in range(2):
        e.ds_write(4, VEGW, TMP + 4 * mt, 64 * mt)

    steps = [(s, tap, k) for s in range(4) for tap in range(3) for k in range(4)]

    def b_reads1(i):
        s, tap, k = steps[i]
        base = BFR + 12 * (i % 2)
        return [lambda: e.ds_read(4, base, VXB[tap][k], s * XSL),
                lambda: e.ds_read(4, base + 4, VXB[tap][k], s * XSL + 4096),
                lambda: e.ds_read(4, base + 8, VXH[tap][k], s * XSL)]

    for i, (s, tap, k) in enumerate(steps):
        u = U_1 + i
        if tap == 0 and k == 0:
            e.wait(vseq=xseq[s])
            e.barrier()
            if s + 2 < 4:
                xseq[s + 2] = x_slice_dma(e, s + 2)
            for f in b_reads1(i):
                f()
        st.ensure(u)
        d = st.dest(u)
        bb = BFR + 12 * (i % 2)
        mains = []
        for nt in range(2):
            for mt in range(2):
                a = ACC + 16 * (2 * mt + nt)
                mains.append(lambda a=a, mt=mt, nt=nt: e.mfma(True, a, d + 4 * mt, bb + 4 * nt, a if i else None))
        for mt in range(2):
            a = HACC + 4 * mt
            mains.append(lambda a=a, mt=mt: e.mfma(False, a, d + 4 * mt, bb + 8, a if i else None))
        fill = []
        if i + 1 < 48 and steps[i + 1][0] == s:
            fill += b_reads1(i + 1)
        fill += [lambda: st.pump(1), lambda: st.pump(1)]
        interleave(e, mains[:4], fill)
        mains[4]()
        mains[5]()
        st.cu += 1
    pump = lambda: st.pump(2)
    for nt in range(2):
        for mt in range(2):
            a = ACC + 16 * (2 * mt + nt)
            pk = TMP + 8 * mt
            gelu_ops(e, rng(a, 16), rng(pk, 8), pump)
            for h in range(2):
                e.ds_write(4, VHW, pk + 4 * h, nt * 16 * HROW + 64 * mt + 32 * h)
    gelu_ops(e, rng(HACC, 8), rng(TMP + 16, 4), pump)
    for mt in range(2):
        e.ds_write(2, VHH, TMP + 16 + 2 * mt, 64 * mt)
    e.barrier()

    def small_gemm(ubase, nsteps, boff):
        def bread(i):
            return lambda: e.ds_read(4, BFR + 4 * (i % 4), VHR, boff(i))
        bread(0)()
        bread(1)()
        for i in range(nsteps):
            u = ubase + i
            st.ensure(u)
            d = st.dest(u)
            mains = [lambda mt=mt: e.mfma(True, ACC + 16 * mt, d + 4 * mt, BFR + 4 * (i % 4),
                                          ACC + 16 * mt if i else None) for mt in range(2)]
            fill = []
            if i + 2 < nsteps:
                fill.append(bread(i + 2))
            fill += [lambda: st.pump(1), lambda: st.pump(1)]
            interleave(e, mains, fill)
            st.cu += 1

    tapoff = [0, HEVEN * HROW, HROW]
    small_gemm(U_2, 48, lambda i: tapoff[i // 16] + 32 * (i % 16))
    for mt in range(2):
        pk = TMP + 8 * mt
        gelu_ops(e, rng(ACC + 16 * mt, 16), rng(pk, 8), pump)
        for h in range(2):
            e.ds_write(4, VFW, pk + 4 * h, FB + 64 * mt + 32 * h)
    e.barrier()
    small_gemm(U_F, 16, lambda i: FB + 32 * i)
    exp_stage(e, ACC, KEEPA, ACC + 32, 32, pump)
    for mt in range(2):
        for h in range(2):
            for pl in range(2):
                e.ds_write(4, VEFW, ACC + 32 + 16 * mt + 8 * h + 4 * pl, 64 * mt + 32 * h + 512 * pl)
    e.valu(f"v_cmp_lt_f32 vcc, {S_LIM}, {rn(VMAX)}", [], [VMAX], sw=["vcc"])
    e.nop(2)
    e.salu("s_cmp_lg_u64 vcc, 0")
    e.salu(f"s_cselect_b32 {S_FLAG}, 1, 0")
    e.salu(f"s_lshl_b32 {S_T1}, {S_W}, 2")
    e.salu(f"s_add_u32 {S_T1}, {S_T1}, {FLAG}")
    e.valu(f"v_mov_b32 {rn(T[0])}, {S_FLAG}", [T[0]], [])
    e.valu(f"v_mov_b32 {rn(T[1])}, {S_T1}", [T[1]], [])
    e.ds_write(1, T[1], T[0])
    e.valu(f"v_mov_b32 {rn(T[1])}, {FLAG}", [T[1]], [])
    e.barrier()
    e.ds_read(4, T[2], T[1])
    for uu in range(4):
        for pl in range(2):
            e.ds_read(4, EGR + 8 * uu + 4 * pl, VEGR, uu * 1024 + pl * 512)
    e.valu(f"v_or3_b32 {rn(T[2])}, {rn(T[2])}, {rn(T[3])}, {rn(T[4])}", [T[2]], [T[2], T[3], T[4]], vop3=True)
    e.valu(f"v_or_b32 {rn(T[2])}, {rn(T[2])}, {rn(T[5])}", [T[2]], [T[2], T[5]])
    e.rfl(S_FLAG, T[2])
    e.salu(f"s_cmp_lg_u32 {S_FLAG}, 0")
    e.salu("s_cbranch_scc1 L_slow")
    import copy
    snap = (copy.deepcopy(e.pend), e.lseq, e.vseq, e.ldone, e.vdone, st.du, st.tu, st.cu,
            dict(st.dseq), dict(st.tseq), dict(st.arr), st.last_arr)

    for c in range(2):
        ops = produce_ops(e, c)
        for i, f in enumerate(ops):
            f()
            if i % 12 == 11:
                st.pump(2)
    e.barrier()

    def jread(c, ks):
        dst = BFR + 4 * ((16 * c + ks) % 4)
        jb = JB[c % 3]
        if jb == J2:
            return lambda: e.ds_read(4, dst, VHR2, 32 * ks)
        return lambda: e.ds_read(4, dst, VHR, jb + 32 * ks)

    jread(0, 0)()
    jread(0, 1)()
    for c in range(8):
        acc = ACC + 32 * (c % 2)
        side = []
        if c + 2 < 8:
            side += produce_ops(e, c + 2)
        epi = out_epilogue_ops(e, c - 1, ACC + 32 * ((c - 1) % 2)) if c >= 1 else []
        merged = []
        na, nb = len(side), len(epi)
        ia = ib = 0
        while ia < na or ib < nb:
            if ib >= nb or (ia < na and ia * max(nb, 1) <= ib * max(na, 1)):
                merged.append(side[ia]); ia += 1
            else:
                merged.append(epi[ib]); ib += 1
        per = (len(merged) + 15) // 16
        for ks in range(16):
            if c == 0:
                st.ensure(U_O + ks)
            bb = BFR + 4 * ((16 * c + ks) % 4)
            mains = [lambda mt=mt: e.mfma(True, acc + 16 * mt, WOF + 8 * ks + 4 * mt, bb,
                                          acc + 16 * mt if ks else None) for mt in range(2)]
            fill = []
            nk = ks + 2
            if nk < 16:
                fill.append(jread(c, nk))
            elif c + 1 < 8:
                fill.append(jread(c + 1, nk - 16))
            fill += merged[ks * per:(ks + 1) * per]
            if c == 0:
                fill.append(lambda: st.pump(2))
            interleave(e, mains, fill)
        if c < 7:
            e.barrier()
    for f in out_epilogue_ops(e, 7, ACC + 32):
        f()
    e.salu("s_endpgm")

    e.label("L_slow")
    (e.pend, e.lseq, e.vseq, e.ldone, e.vdone, st.du, st.tu, st.cu,
     st.dseq, st.tseq, st.arr, st.last_arr) = snap
    e.wr.clear(); e.stw.clear(); e.sgpr_valu.clear()
    e.nop(16)
    e.wait_all_lds()
    e.raw("    s_barrier")
    for mt in range(2):
        for h in range(2):
            for pl in range(2):
                e.ds_write(4, VEFW, KEEPA + 16 * mt + 8 * h + 4 * pl, 64 * mt + 32 * h + 512 * pl)
        e.ds_write(4, VEGW, KEEPB + 4 * mt, 64 * mt)
    st.ensure(U_O + 15)
    e.barrier()
    for uu in range(4):
        for pl in range(2):
            e.ds_read(4, EGR + 8 * uu + 4 * pl, VEGR, uu * 1024 + pl * 512)
    e.salu(f"s_mov_b32 {S_CNT}, 8")
    e.salu(f"s_mov_b32 {S_T2}, {S_OBASE}")
    e.wait_all_lds()
    e.wait_all_vm()
    e.pend.clear()
    e.drain_hazards()
    e.label("L_slow_loop")
    for f in produce_ops(e, 0, slow=True):
        f()
    e.barrier()
    for ks in range(16):
        e.ds_read(4, BFR + 4 * (ks % 4), VHR, JB[0] + 32 * ks)
        for mt in range(2):
            e.mfma(True, ACC + 16 * mt, WOF + 8 * ks + 4 * mt, BFR + 4 * (ks % 4), ACC + 16 * mt if ks else None)
    for f in out_epilogue_ops(e, 0, ACC, soff_reg=S_T2):
        f()
    e.valu(f"v_add_u32 {rn(VEFR)}, {4 * EFROW}, {rn(VEFR)}", [VEFR], [VEFR])
    e.salu(f"s_add_u32 {S_T2}, {S_T2}, 16384")
    e.wait_all_vm()
    e.barrier()
    e.drain_hazards()
    e.salu(f"s_sub_u32 {S_CNT}, {S_CNT}, 1")
    e.salu(f"s_cmp_lg_u32 {S_CNT}, 0")
    e.salu("s_cbranch_scc1 L_slow_loop")
    e.label("L_end")
    e.salu("s_endpgm")
    return e


HEADER = f"""; Fused conv stem (2x stride-2 conv1d + gelu) + RNN-T joint network, one workgroup per 32 output frames.
; @launch grid=({NWG},1,1) block=(256,1,1) lds={LDS_BYTES}
.amdgcn_target "amdgcn-amd-amdhsa--gfx950"
.text
.globl {NAME}_kernel
.p2align 8
.type {NAME}_kernel,@function
{NAME}_kernel:
"""

FOOTER = f""".section .rodata,"a"
.p2align 6
.amdhsa_kernel {NAME}_kernel
  .amdhsa_next_free_vgpr 512
  .amdhsa_next_free_sgpr 102
  .amdhsa_accum_offset 256
  .amdhsa_group_segment_fixed_size 0
  .amdhsa_kernarg_size 80
  .amdhsa_user_sgpr_count 2
  .amdhsa_user_sgpr_kernarg_segment_ptr 1
  .amdhsa_system_sgpr_workgroup_id_x 1
.end_amdhsa_kernel
"""

if __name__ == "__main__":
    e = generate()
    path = sys.argv[1] if len(sys.argv) > 1 else f"cdna_kernels/{NAME}.s"
    open(path, "w").write(HEADER + e.text() + FOOTER)
    print("instructions:", sum(1 for l in e.out if l.startswith("    ") and not l.strip().startswith(";")),
          "model cycles:", int(e.t))
```

```python
def rn(base, n=1):
    p, i = ('a', base - 256) if base >= 256 else ('v', base)
    return f"{p}{i}" if n == 1 else f"{p}[{i}:{i + n - 1}]"


def rng(base, n):
    return list(range(base, base + n))


class Emitter:
    def __init__(self):
        self.out = []
        self.slot = 0
        self.wr = {}
        self.stw = {}
        self.pend = {}
        self.lseq = 0
        self.vseq = 0
        self.ldone = 0
        self.vdone = 0
        self.m0_slot = -10
        self.sgpr_valu = {}
        self.t = 0.0
        self.mfree = 0.0
        self.nbytes = 0

    def raw(self, text):
        self.out.append(text)

    def comment(self, text):
        self.out.append(f"    ; {text}")

    def label(self, name):
        self.out.append(f"{name}:")

    def _put(self, text, slots=1, cost=4.0):
        self.out.append("    " + text)
        self.slot += slots
        self.t += cost

    def nop(self, n):
        while n > 0:
            k = min(n, 16)
            self._put(f"s_nop {k - 1}", slots=k, cost=4.0 * k)
            n -= k

    def wait(self, lseq=None, vseq=None):
        parts = []
        if vseq is not None and vseq > self.vdone:
            n = min(self.vseq - vseq, 63)
            parts.append(f"vmcnt({n})")
            self.vdone = self.vseq - n
        if lseq is not None and lseq > self.ldone:
            n = min(self.lseq - lseq, 15)
            parts.append(f"lgkmcnt({n})")
            self.ldone = self.lseq - n
        if parts:
            self._put("s_waitcnt " + " ".join(parts))

    def wait_all_lds(self):
        self.wait(lseq=self.lseq)

    def wait_all_vm(self):
        self.wait(vseq=self.vseq)

    def _resolve(self, regs):
        l = v = None
        for r in regs:
            p = self.pend.get(r)
            if p is None:
                continue
            if p[0] == 'l':
                l = p[1] if l is None else max(l, p[1])
            else:
                v = p[1] if v is None else max(v, p[1])
        self.wait(lseq=l, vseq=v)
        for r in regs:
            self.pend.pop(r, None)

    def _hazard(self, cls, reads, writes, cregs=None, cexact=None):
        need = 0

        def req(slot, ws):
            nonlocal need
            have = self.slot - slot - 1
            need = max(need, ws - have)

        for r in reads:
            w = self.wr.get(r)
            if w is None:
                continue
            s, c = w[0], w[1]
            if cls in ('mfma32', 'mfma16'):
                if c in ('valu', 'trans'):
                    req(s, 2)
                elif c in ('mfma32', 'mfma16'):
                    passes = 8 if c == 'mfma32' else 4
                    if cregs is not None and r in cregs:
                        if not (c == cls and cexact == w[2]):
                            req(s, 10 if passes == 8 else 6)
                    else:
                        req(s, 12 if passes == 8 else 8)
            else:
                if c == 'mfma32':
                    req(s, 12)
                elif c == 'mfma16':
                    req(s, 8)
                elif c == 'trans' and cls == 'valu':
                    req(s, 1)
                elif c in ('valu', 'trans') and cls == 'rfl':
                    req(s, 1)
        for r in writes:
            w = self.wr.get(r)
            if w is not None and cls not in ('mfma32', 'mfma16'):
                if w[1] == 'mfma32':
                    req(w[0], 12)
                elif w[1] == 'mfma16':
                    req(w[0], 8)
            s = self.stw.get(r)
            if s is not None:
                req(s, 2)
        if need > 0:
            self.nop(need)

    def valu(self, text, w=(), r=(), trans=False, vop3=False, sw=(), sr=()):
        cls = 'trans' if trans else 'valu'
        self._resolve(list(r) + list(w))
        self._hazard(cls, r, w)
        for s in sr:
            sl = self.sgpr_valu.get(s)
            if sl is not None and self.slot - sl - 1 < 2:
                self.nop(2 - (self.slot - sl - 1))
        for x in w:
            self.wr[x] = (self.slot, cls)
        for s in sw:
            self.sgpr_valu[s] = self.slot
        self._put(text, cost=8.0 if trans else (5.0 if vop3 else 4.0))

    def rfl(self, sdst, vsrc):
        self._resolve([vsrc])
        self._hazard('rfl', [vsrc], [])
        self.sgpr_valu[sdst] = self.slot
        self._put(f"v_readfirstlane_b32 {sdst}, {rn(vsrc)}")
        self.nop(5)

    def salu(self, text, m0=False):
        if m0:
            self.m0_slot = self.slot
        self._put(text)

    def mfma(self, big, d, a, b, c):
        n = 16 if big else 4
        cls = 'mfma32' if big else 'mfma16'
        name = "v_mfma_f32_32x32x16_bf16" if big else "v_mfma_f32_16x16x32_bf16"
        reads = rng(a, 4) + rng(b, 4)
        cregs = set()
        if c is not None:
            cregs = set(rng(c, n))
            reads += rng(c, n)
        self._resolve(reads + rng(d, n))
        self._hazard(cls, reads, rng(d, n), cregs=cregs, cexact=c)
        for x in rng(d, n):
            self.wr[x] = (self.slot, cls, d)
        cs = rn(c, n) if c is not None else "0"
        start = max(self.t, self.mfree)
        self.mfree = start + (32 if big else 16)
        self.t = start
        self._put(f"{name} {rn(d, n)}, {rn(a, 4)}, {rn(b, 4)}, {cs}", cost=8.0)

    def ds_read(self, n, dst, addr, off=0, tr=False):
        name = "ds_read_b64_tr_b16" if tr else {1: "ds_read_b32", 2: "ds_read_b64", 4: "ds_read_b128"}[n]
        self._resolve([addr])
        self._hazard('ds', [addr], rng(dst, n))
        self.lseq += 1
        for x in rng(dst, n):
            self.pend[x] = ('l', self.lseq)
            self.wr.pop(x, None)
        assert 0 <= off < 65536, off
        self._put(f"{name} {rn(dst, n)}, {rn(addr)}" + (f" offset:{off}" if off else ""))
        return self.lseq

    def ds_write(self, n, addr, src, off=0):
        name = {1: "ds_write_b32", 2: "ds_write_b64", 4: "ds_write_b128"}[n]
        self._resolve([addr] + rng(src, n))
        self._hazard('ds', [addr] + rng(src, n), [])
        self.lseq += 1
        assert 0 <= off < 65536, off
        self._put(f"{name} {rn(addr)}, {rn(src, n)}" + (f" offset:{off}" if off else ""))
        return self.lseq

    def _srd_haz(self, srd, soff):
        names = [f"s{srd + i}" for i in range(4)] + ([soff] if isinstance(soff, str) else [])
        for s in names:
            sl = self.sgpr_valu.get(s)
            if sl is not None and self.slot - sl - 1 < 5:
                self.nop(5 - (self.slot - sl - 1))

    def dma(self, vaddr, srd, soff, off=0, flags=""):
        self._resolve([vaddr])
        self._hazard('vm', [vaddr], [])
        self._srd_haz(srd, soff)
        if self.slot - self.m0_slot - 1 < 1:
            self.nop(1)
        self.vseq += 1
        assert 0 <= off < 4096
        self._put(f"buffer_load_dwordx4 {rn(vaddr)}, s[{srd}:{srd + 3}], {soff} offen" +
                  (f" offset:{off}" if off else "") + (" " + flags if flags else "") + " lds")
        return self.vseq

    def bload(self, n, dst, vaddr, srd, soff, off=0, flags=""):
        name = {1: "buffer_load_dword", 2: "buffer_load_dwordx2", 4: "buffer_load_dwordx4"}[n]
        self._resolve([vaddr])
        self._hazard('vm', [vaddr], rng(dst, n))
        self._srd_haz(srd, soff)
        self.vseq += 1
        for x in rng(dst, n):
            self.pend[x] = ('v', self.vseq)
            self.wr.pop(x, None)
        assert 0 <= off < 4096
        self._put(f"{name} {rn(dst, n)}, {rn(vaddr)}, s[{srd}:{srd + 3}], {soff} offen" +
                  (f" offset:{off}" if off else "") + (" " + flags if flags else ""))
        return self.vseq

    def bstore(self, n, src, vaddr, srd, soff, off=0, flags=""):
        name = {1: "buffer_store_dword", 2: "buffer_store_dwordx2", 4: "buffer_store_dwordx4"}[n]
        self._resolve([vaddr] + rng(src, n))
        self._hazard('vm', [vaddr] + rng(src, n), [])
        self._srd_haz(srd, soff)
        self.vseq += 1
        if n >= 3:
            for x in rng(src, n):
                self.stw[x] = self.slot
        assert 0 <= off < 4096
        self._put(f"{name} {rn(src, n)}, {rn(vaddr)}, s[{srd}:{srd + 3}], {soff} offen" +
                  (f" offset:{off}" if off else "") + (" " + flags if flags else ""))
        return self.vseq

    def barrier(self):
        self.wait_all_lds()
        self._put("s_barrier")

    def drain_hazards(self):
        self.nop(16)
        self.wr.clear()
        self.stw.clear()
        self.sgpr_valu.clear()

    def text(self):
        return "\n".join(self.out) + "\n"
```

```python
import copy
import struct
import sys

from emit import Emitter, rn, rng

NAME = "standalone__seq2seq_rnn_t_joint__speech"
NWG = 250
NGRID = 252
STAMPS = False
STAMPMODE = "front"
import os
X_NOSTORE = "X_NOSTORE" in os.environ
X_NOMPROD = "X_NOMPROD" in os.environ
X_NOPPROD = "X_NOPPROD" in os.environ
X_PRIO = os.environ.get("X_PRIO", "1")
X_NOH = os.environ.get("X_NOH", "")
X_SLACK = int(os.environ.get("X_SLACK", "2"))
X_NOROT = "X_NOROT" in os.environ
X_LAT = float(os.environ.get("X_LAT", "900"))
X_C1 = os.environ.get("X_C1", "")
X_NOPUB = "X_NOPUB" in os.environ
WS_OFF = 1 << 20
B4_AT = int(os.environ.get("B4_AT", "26"))

XSL = 17408
ZROW = 3 * XSL + 131 * 128
RING = 69632
EG = 135168
FLAG = 143360
J2 = 143392
DUMMY = 160768
LDS_BYTES = 161792
HROW = 528
HEVEN = 37
FB = 36864
EFROW = 1040
JB = [33280, 50176, J2]
OROW = 144
TBSZ = 32 * OROW

SX, SW1, SW2, SG, SWF, SWG, SWO, SOUT = 8, 12, 16, 20, 24, 28, 32, 36
S_W, S_RING, S_SOFF, S_B, S_T0, S_D, S_OS, S_OBASE, S_FLAG, S_T1, S_T2, S_LIM, S_CNT, S_W128 = \
    "s56", "s57", "s58", "s59", "s60", "s61", "s62", "s63", "s64", "s65", "s66", "s67", "s68", "s69"

ACCOFF = 160
A0 = 256

VL = 1
T = list(range(2, 10))
VW0, VW1 = 10, 11
VTR = [14, 15]
VXB = [[18 + 4 * t + k for k in range(4)] for t in range(3)]
VXH = [[30 + 4 * t + k for k in range(4)] for t in range(3)]
VHW, VHH, VHR, VFW, VEFW, VC1, VMAX, VOS, VEFR, VEGR, VEGW, VGR = range(42, 54)
ACC = 56
HACC = 120
TMP = 128
KEEPA = TMP
FBUF = A0
VS = 8
BFR = A0 + 64
KEEPB = A0 + 88
RS = 8
PEG = ACC
PEF = ACC + 24
PWK = ACC + 32
PPK = ACC + 40
PRB = ACC + 44
PJW = [18, 19, 20]
POR = [21, 22, 23]
VWO0, VWO1 = 12, 13
VTRO = [16, 17]
HVX = [18, 19, 20, 21, 22]
HVP, HVMAX, HC, MEFR, MEGR, MOR, MOS = range(23, 30)
MJR = [30, 31, 32]
MJW = [33, 34, 35]
MOW = [36, 37, 38]
MACC = 40
MPO = 72
MEG = 88
MEF = 96
MWK = 104
MPK = 112
MBF = [116, 120, 124, 18]
WO_DEST = [A0 + 8 * i for i in range(12)] + [128 + 8 * i for i in range(4)]
HRS = 2

LOG2E = 1.4426950408889634
GC0 = -2.0 * 0.7978845608028654 * LOG2E
GC1 = GC0 * 0.044715
TSC = 2.0 * LOG2E


def f32(x):
    return "0x%08x" % struct.unpack("<I", struct.pack("<f", x))[0]


class Stream:
    LAT = X_LAT
    RATE = 140.0

    def __init__(self, e, rs, vs, fbuf):
        self.e = e
        self.rs, self.vs, self.fbuf = rs, vs, fbuf
        self.units = []
        self.du = self.tu = self.cu = 0
        self.dseq, self.tseq, self.arr = {}, {}, {}
        self.last_arr = 0.0
        self.tr_limit = 10 ** 9

    def add(self, srd, soff, wo_idx=None):
        self.units.append((srd, soff, wo_idx))

    def dest(self, u):
        wo = self.units[u][2]
        return WO_DEST[wo] if wo is not None else self.fbuf + 8 * (u % self.vs)

    def can_dma(self):
        u = self.du
        slack = X_SLACK if self.rs > 2 else 1
        return u < len(self.units) and (u < self.rs or u - self.rs <= self.tu - slack)

    def do_dma(self):
        e, u = self.e, self.du
        srd, soff, wo = self.units[u]
        if u >= self.rs:
            e.wait(lseq=self.tseq[u - self.rs])
        e.salu(f"s_add_u32 m0, {S_RING}, {(u % self.rs) * 2048}", m0=True)
        if isinstance(soff, tuple):
            e.salu(f"s_add_u32 {S_SOFF}, {soff[0]}, {soff[1]}")
        else:
            e.salu(f"s_mov_b32 {S_SOFF}, {soff}")
        if "nodma" in X_C1 and 12 <= u < 48:
            self.dseq[u] = 0
        else:
            e.dma(VWO0 if wo is not None else VW0, srd, S_SOFF)
            self.dseq[u] = e.dma(VWO1 if wo is not None else VW1, srd, S_SOFF, off=1024)
        self.last_arr = max(e.t + self.LAT, self.last_arr + self.RATE)
        self.arr[u] = self.last_arr
        self.du += 1

    def _dest_free(self, u):
        d = self.dest(u)
        if self.fbuf <= d < self.fbuf + 8 * self.vs:
            for p in range(u - 1, -1, -1):
                if self.dest(p) == d:
                    return p < self.cu
        return True

    def can_tr(self, timed=True):
        u = self.tu
        if u >= self.du or u >= self.tr_limit or not self._dest_free(u):
            return False
        return (not timed) or self.arr[u] <= self.e.t

    def do_tr(self):
        e, u = self.e, self.tu
        wo = self.units[u][2]
        e.wait(vseq=self.dseq[u])
        e.t = max(e.t, self.arr[u])
        d = self.dest(u)
        va = VTRO if wo is not None else VTR
        for mt in range(2):
            for jj in range(2):
                self.tseq[u] = e.ds_read(2, d + 4 * mt + 2 * jj, va[mt], (u % self.rs) * 2048 + jj * 512, tr=True)
        self.tu += 1

    def pump(self, max_ops=2):
        n = 0
        while n < max_ops:
            if self.can_tr():
                self.do_tr()
            elif self.can_dma():
                self.do_dma()
            else:
                break
            n += 1

    def ensure(self, u):
        while self.tu <= u:
            while self.du <= self.tu:
                assert self.can_dma()
                self.do_dma()
            assert self.can_tr(timed=False), (u, self.tu, self.cu)
            self.do_tr()

    def state(self):
        return (self.du, self.tu, self.cu, dict(self.dseq), dict(self.tseq), dict(self.arr), self.last_arr, self.tr_limit)

    def restore(self, s):
        (self.du, self.tu, self.cu, self.dseq, self.tseq, self.arr, self.last_arr, self.tr_limit) = \
            (s[0], s[1], s[2], dict(s[3]), dict(s[4]), dict(s[5]), s[6], s[7])


def interleave(mains, fillers):
    n = len(mains)
    k = 0
    for i, m in enumerate(mains):
        m()
        upto = (len(fillers) * (i + 1) + n - 1) // n
        while k < upto:
            fillers[k]()
            k += 1


def merge(a, b):
    out = []
    ia = ib = 0
    na, nb = len(a), len(b)
    while ia < na or ib < nb:
        if ib >= nb or (ia < na and ia * max(nb, 1) <= ib * max(na, 1)):
            out.append(a[ia]); ia += 1
        else:
            out.append(b[ib]); ib += 1
    return out


class Stamper:
    def __init__(self, e):
        self.e, self.n = e, 0

    def __call__(self, tag="front"):
        if not STAMPS or (tag != STAMPMODE and self.n > 0) or self.n >= 14:
            return
        e = self.e
        e.wait_all_lds()
        e.salu(f"s_memtime s[{70 + 2 * self.n}:{71 + 2 * self.n}]")
        e.salu("s_waitcnt lgkmcnt(0)")
        self.n += 1

    def loop_top(self):
        if not STAMPS:
            return
        e = self.e
        e.salu("s_memtime s[98:99]")
        e.salu("s_waitcnt lgkmcnt(0)")
        e.salu("s_mov_b32 s100, s98")

    def loop_pre_barrier(self):
        if not STAMPS:
            return
        e = self.e
        e.wait_all_lds()
        e.salu("s_memtime s[98:99]")
        e.salu("s_waitcnt lgkmcnt(0)")
        e.salu("s_sub_u32 s98, s98, s100")
        e.salu("s_add_u32 s101, s101, s98")

    def dump(self, helper):
        if not STAMPS:
            return
        e = self.e
        e.salu("s_load_dwordx2 s[40:41], s[0:1], 72")
        e.salu("s_waitcnt lgkmcnt(0)")
        e.salu("s_and_b32 s41, s41, 0xffff")
        e.salu("s_mov_b32 s42, 131072")
        e.salu("s_mov_b32 s43, 0x20000")
        e.salu(f"s_lshl_b32 {S_T1}, s2, 3")
        e.salu(f"s_add_u32 {S_T1}, {S_T1}, {S_W}")
        if helper:
            e.salu(f"s_add_u32 {S_T1}, {S_T1}, 4")
        e.salu(f"s_lshl_b32 {S_T1}, {S_T1}, 6")
        e.valu(f"v_mov_b32 {rn(T[1])}, 0", [T[1]], [])
        for i in range(16):
            if i == 15:
                e.salu("s_add_u32 s101, s101, s70")
                e.valu(f"v_mov_b32 {rn(T[0])}, s101", [T[0]], [])
            else:
                e.valu(f"v_mov_b32 {rn(T[0])}, s{70 + 2 * min(i, self.n - 1)}", [T[0]], [])
            e.bstore(1, T[0], T[1], 40, S_T1, off=4 * i)


def V(e):
    return lambda text, w=(), r=(), **kw: e.valu(text, w, r, **kw)


def common_prologue(e):
    v = V(e)
    e.salu(f"s_cmp_ge_u32 s2, {NGRID}")
    e.salu("s_cbranch_scc1 L_end")
    e.salu("s_load_dwordx16 s[40:55], s[0:1], 0")
    v(f"v_and_b32 {rn(VL)}, 63, v0", [VL], [0])
    v(f"v_lshrrev_b32 {rn(T[0])}, 6, v0", [T[0]], [0])
    e.rfl(S_CNT, T[0])
    e.salu(f"s_and_b32 {S_W}, {S_CNT}, 3")
    e.salu(f"s_lshl_b32 {S_W128}, {S_W}, 7")
    e.salu(f"s_lshl_b32 {S_OBASE}, s2, 17")
    t0, t1, t2 = T[:3]
    L = rn(VL)
    v(f"v_lshrrev_b32 {rn(t0)}, 3, {L}", [t0], [VL])
    v(f"v_lshlrev_b32 {rn(t0)}, 9, {rn(t0)}", [t0], [t0])
    v(f"v_add_u32 {rn(t0)}, {S_W128}, {rn(t0)}", [t0], [t0])
    v(f"v_and_b32 {rn(t1)}, 7, {L}", [t1], [VL])
    v(f"v_lshrrev_b32 {rn(t2)}, 2, {L}", [t2], [VL])
    v(f"v_and_b32 {rn(t2)}, 4, {rn(t2)}", [t2], [t2])
    v(f"v_xor_b32 {rn(t2)}, {rn(t1)}, {rn(t2)}", [t2], [t1, t2])
    v(f"v_lshl_add_u32 {rn(VW0)}, {rn(t2)}, 4, {rn(t0)}", [VW0], [t2, t0], vop3=True)
    v(f"v_add_u32 {rn(VW1)}, 3072, {rn(VW0)}", [VW1], [VW0])
    sizes = [16384000, 393216, 393216, 8192, 131072, 131072, 131072, 32768000]
    for i, srd in enumerate([SX, SW1, SW2, SG, SWF, SWG, SWO, SOUT]):
        e.salu(f"s_mov_b32 s{srd + 2}, {sizes[i]}")
        e.salu(f"s_mov_b32 s{srd + 3}, 0x20000")
    e.salu("s_waitcnt lgkmcnt(0)")
    for i, srd in enumerate([SX, SW1, SW2, SG, SWF, SWG, SWO, SOUT]):
        e.salu(f"s_mov_b32 s{srd}, s{40 + 2 * i}")
        e.salu(f"s_and_b32 s{srd + 1}, s{41 + 2 * i}, 0xffff")
    e.salu("s_lshr_b32 s48, s2, 3")
    for i in range(4):
        e.salu(f"s_add_u32 s{44 + i}, {0 if X_NOROT else 's48'}, {i}")
        e.salu(f"s_and_b32 s{44 + i}, s{44 + i}, 3")
        e.salu(f"s_lshl_b32 s{44 + i}, s{44 + i}, 7")
    e.salu(f"s_cmp_ge_u32 {S_CNT}, 4")
    e.salu("s_cbranch_scc1 L_helper")
    e.salu(f"s_cmp_ge_u32 s2, {NWG}")
    e.salu("s_cbranch_scc1 L_end")


def perm_q(e, dst, q, ta, tb):
    v = V(e)
    v(f"v_and_b32 {rn(ta)}, 1, {rn(q)}", [ta], [q])
    v(f"v_bfe_u32 {rn(tb)}, {rn(q)}, 1, 1", [tb], [q], vop3=True)
    v(f"v_lshl_or_b32 {rn(ta)}, {rn(ta)}, 1, {rn(tb)}", [ta], [ta, tb], vop3=True)
    v(f"v_and_or_b32 {rn(dst)}, {rn(q)}, 4, {rn(ta)}", [dst], [q, ta], vop3=True)


def tr_consts(e, wo):
    v = V(e)
    t0, t1, t2, t3, t4, t5, t6, t7 = T
    L = rn(VL)
    v(f"v_lshrrev_b32 {rn(t0)}, 4, {L}", [t0], [VL])
    v(f"v_bfe_u32 {rn(t1)}, {L}, 2, 2", [t1], [VL], vop3=True)
    v(f"v_and_b32 {rn(t2)}, 3, {L}", [t2], [VL])
    v(f"v_and_b32 {rn(t3)}, 1, {rn(t0)}", [t3], [t0])
    v(f"v_lshl_or_b32 {rn(t2)}, {rn(t3)}, 2, {rn(t2)}", [t2], [t3, t2], vop3=True)
    v(f"v_lshrrev_b32 {rn(t3)}, 1, {rn(t0)}", [t3], [t0])
    v(f"v_lshlrev_b32 {rn(t3)}, 10, {rn(t3)}", [t3], [t3])
    v(f"v_lshl_add_u32 {rn(t3)}, {rn(t1)}, 7, {rn(t3)}", [t3], [t1, t3], vop3=True)
    v(f"v_add_u32 {rn(t3)}, {S_RING}, {rn(t3)}", [t3], [t3])
    v(f"v_lshrrev_b32 {rn(t1)}, 1, {rn(t1)}", [t1], [t1])
    if not wo:
        perm_q(e, t4, t2, t6, t7)
        v(f"v_lshlrev_b32 {rn(t4)}, 3, {rn(t4)}", [t4], [t4])
        v(f"v_lshl_or_b32 {rn(t4)}, {rn(t1)}, 6, {rn(t4)}", [t4], [t1, t4], vop3=True)
        v(f"v_add_u32 {rn(VTR[0])}, {rn(t3)}, {rn(t4)}", [VTR[0]], [t3, t4])
        v(f"v_xor_b32 {rn(t4)}, 64, {rn(t4)}", [t4], [t4])
        v(f"v_add_u32 {rn(VTR[1])}, {rn(t3)}, {rn(t4)}", [VTR[1]], [t3, t4])
    else:
        v(f"v_and_b32 {rn(t4)}, 1, {rn(t2)}", [t4], [t2])
        v(f"v_lshlrev_b32 {rn(t4)}, 6, {rn(t4)}", [t4], [t4])
        v(f"v_lshrrev_b32 {rn(t5)}, 1, {rn(t2)}", [t5], [t2])
        v(f"v_lshl_or_b32 {rn(t4)}, {rn(t5)}, 3, {rn(t4)}", [t4], [t5, t4], vop3=True)
        v(f"v_lshl_or_b32 {rn(t4)}, {rn(t1)}, 5, {rn(t4)}", [t4], [t1, t4], vop3=True)
        v(f"v_add_u32 {rn(VTRO[0])}, {rn(t3)}, {rn(t4)}", [VTRO[0]], [t3, t4])
        v(f"v_xor_b32 {rn(t4)}, 32, {rn(t4)}", [t4], [t4])
        v(f"v_add_u32 {rn(VTRO[1])}, {rn(t3)}, {rn(t4)}", [VTRO[1]], [t3, t4])


def store_consts(e, vor, vos, ring_sgpr):
    v = V(e)
    t2, t3, t4 = T[2:5]
    L = rn(VL)
    v(f"v_lshrrev_b32 {rn(t2)}, 3, {L}", [t2], [VL])
    v(f"v_and_b32 {rn(t3)}, 7, {L}", [t3], [VL])
    v(f"v_lshlrev_b32 {rn(t3)}, 4, {rn(t3)}", [t3], [t3])
    v(f"v_mul_u32_u24 {rn(t4)}, {OROW}, {rn(t2)}", [t4], [t2])
    v(f"v_add3_u32 {rn(vor)}, {rn(t4)}, {rn(t3)}, {ring_sgpr}", [vor], [t4, t3], vop3=True)
    v(f"v_lshl_add_u32 {rn(t4)}, {rn(t2)}, 9, {rn(t3)}", [t4], [t2, t3], vop3=True)
    v(f"v_add_u32 {rn(vos)}, {S_W128}, {rn(t4)}", [vos], [t4])


def prod_consts(e, vefr, vegr, vjw, uu0):
    v = V(e)
    t0, t1, t2, t3 = T[:4]
    L = rn(VL)
    v(f"v_and_b32 {rn(t0)}, 31, {L}", [t0], [VL])
    v(f"v_lshrrev_b32 {rn(t1)}, 5, {L}", [t1], [VL])
    e.salu(f"s_mul_i32 {S_T1}, {S_W}, {EFROW}")
    v(f"v_lshlrev_b32 {rn(t2)}, 4, {rn(t0)}", [t2], [t0])
    v(f"v_add_u32 {rn(vefr)}, {S_T1}, {rn(t2)}", [vefr], [t2])
    v(f"v_lshl_add_u32 {rn(t3)}, {rn(t1)}, 12, {rn(t2)}", [t3], [t1, t2], vop3=True)
    v(f"v_add_u32 {rn(vegr)}, {EG + uu0 * 1024}, {rn(t3)}", [vegr], [t3])
    e.salu(f"s_mul_i32 {S_T1}, {S_W}, {8 * HROW}")
    v(f"v_mul_u32_u24 {rn(t3)}, {4 * HROW}, {rn(t1)}", [t3], [t1])
    v(f"v_add3_u32 {rn(t3)}, {rn(t3)}, {rn(t2)}, {S_T1}", [t3], [t3, t2], vop3=True)
    for i in range(3):
        v(f"v_add_u32 {rn(vjw[i])}, {JB[i] + uu0 * HROW}, {rn(t3)}", [vjw[i]], [t3])


def c_consts_ge(e):
    v = V(e)
    t0, t1, t2, t3, t4, t5, t6, t7 = T
    L = rn(VL)
    v(f"v_and_b32 {rn(t0)}, 15, {L}", [t0], [VL])
    v(f"v_lshrrev_b32 {rn(t1)}, 4, {L}", [t1], [VL])
    v(f"v_xor_b32 {rn(t2)}, {rn(t0)}, {rn(t1)}", [t2], [t0, t1])
    v(f"v_and_b32 {rn(t2)}, 1, {rn(t2)}", [t2], [t2])
    v(f"v_lshrrev_b32 {rn(t3)}, 1, {rn(t0)}", [t3], [t0])
    v(f"v_lshlrev_b32 {rn(t3)}, 9, {rn(t3)}", [t3], [t3])
    v(f"v_lshrrev_b32 {rn(t4)}, 1, {rn(t1)}", [t4], [t1])
    v(f"v_lshl_add_u32 {rn(t3)}, {rn(t4)}, 4, {rn(t3)}", [t3], [t4, t3], vop3=True)
    v(f"v_add_u32 {rn(t3)}, 1024, {rn(t3)}", [t3], [t3])
    v(f"v_cmp_eq_u32 vcc, 1, {rn(t2)}", [], [t2], sw=["vcc"])
    v(f"v_cndmask_b32 {rn(t3)}, {rn(t3)}, 0, vcc", [t3], [t3], sr=["vcc"], vop3=True)
    v(f"v_add_u32 {rn(VGR)}, {S_RING}, {rn(t3)}", [VGR], [t3])
    v(f"v_and_b32 {rn(t2)}, 1, {rn(t0)}", [t2], [t0])
    v(f"v_lshl_or_b32 {rn(t2)}, {rn(t2)}, 2, {rn(t1)}", [t2], [t2, t1], vop3=True)
    perm_q(e, t4, t2, t6, t7)
    v(f"v_lshrrev_b32 {rn(t3)}, 1, {rn(t0)}", [t3], [t0])
    v(f"v_lshlrev_b32 {rn(t3)}, 10, {rn(t3)}", [t3], [t3])
    v(f"v_and_b32 {rn(t5)}, 1, {rn(t4)}", [t5], [t4])
    v(f"v_lshl_add_u32 {rn(t3)}, {rn(t5)}, 9, {rn(t3)}", [t3], [t5, t3], vop3=True)
    v(f"v_lshrrev_b32 {rn(t5)}, 1, {rn(t4)}", [t5], [t4])
    v(f"v_lshl_add_u32 {rn(t3)}, {rn(t5)}, 4, {rn(t3)}", [t3], [t5, t3], vop3=True)
    v(f"v_add_u32 {rn(t3)}, {S_W128}, {rn(t3)}", [t3], [t3])
    v(f"v_add_u32 {rn(VEGW)}, {EG}, {rn(t3)}", [VEGW], [t3])
    v(f"v_lshlrev_b32 {rn(t3)}, 3, {rn(t4)}", [t3], [t4])
    v(f"v_add_u32 {rn(t3)}, {S_W128}, {rn(t3)}", [t3], [t3])
    v(f"v_mov_b32 {rn(t5)}, {DUMMY}", [t5], [])
    v(f"v_cmp_gt_u32 vcc, 2, {rn(t0)}", [], [t0], sw=["vcc"])
    v(f"v_cndmask_b32 {rn(VHH)}, {rn(t5)}, {rn(t3)}, vcc", [VHH], [t5, t3], sr=["vcc"])
    v(f"v_mov_b32 {rn(VMAX)}, 0", [VMAX], [])


def c_consts_ops(e):
    v = V(e)
    t0, t1, t2, t3, t4, t5, t6, t7 = T
    L = rn(VL)
    ops = []
    a = lambda *args, **kw: ops.append(lambda: v(*args, **kw))
    a(f"v_and_b32 {rn(t0)}, 31, {L}", [t0], [VL])
    a(f"v_lshrrev_b32 {rn(t1)}, 5, {L}", [t1], [VL])
    for tap, r0 in enumerate((66, 1, 67)):
        a(f"v_add_u32 {rn(t4)}, {r0}, {rn(t0)}", [t4], [t0])
        a(f"v_bfe_u32 {rn(t5)}, {rn(t4)}, 1, 3", [t5], [t4], vop3=True)
        a(f"v_xor_b32 {rn(t5)}, {rn(t1)}, {rn(t5)}", [t5], [t1, t5])
        a(f"v_lshlrev_b32 {rn(t4)}, 7, {rn(t4)}", [t4], [t4])
        a(f"v_lshl_add_u32 {rn(VXB[tap][0])}, {rn(t5)}, 4, {rn(t4)}", [VXB[tap][0]], [t5, t4], vop3=True)
        for k in range(1, 4):
            a(f"v_xor_b32 {rn(VXB[tap][k])}, {32 * k}, {rn(VXB[tap][0])}", [VXB[tap][k]], [VXB[tap][0]])
    a(f"v_mul_u32_u24 {rn(t2)}, {HROW}, {rn(t0)}", [t2], [t0])
    a(f"v_lshl_add_u32 {rn(VHR)}, {rn(t1)}, 4, {rn(t2)}", [VHR], [t1, t2], vop3=True)
    a(f"v_add_u32 {rn(VFW)}, {S_W128}, {rn(VHR)}", [VFW], [VHR])
    a(f"v_and_b32 {rn(t2)}, 1, {rn(t0)}", [t2], [t0])
    a(f"v_cmp_eq_u32 vcc, 1, {rn(t2)}", [], [t2], sw=["vcc"])
    a(f"v_mov_b32 {rn(t3)}, 1", [t3], [])
    a(f"v_cndmask_b32 {rn(t3)}, {HEVEN}, {rn(t3)}, vcc", [t3], [t3], sr=["vcc"])
    a(f"v_lshrrev_b32 {rn(t2)}, 1, {rn(t0)}", [t2], [t0])
    a(f"v_add_u32 {rn(t2)}, {rn(t2)}, {rn(t3)}", [t2], [t2, t3])
    a(f"v_mul_u32_u24 {rn(t2)}, {HROW}, {rn(t2)}", [t2], [t2])
    a(f"v_lshl_add_u32 {rn(t2)}, {rn(t1)}, 4, {rn(t2)}", [t2], [t1, t2], vop3=True)
    a(f"v_add_u32 {rn(VHW)}, {S_W128}, {rn(t2)}", [VHW], [t2])
    a(f"v_mul_u32_u24 {rn(t2)}, {EFROW}, {rn(t0)}", [t2], [t0])
    a(f"v_lshl_add_u32 {rn(t2)}, {rn(t1)}, 4, {rn(t2)}", [t2], [t1, t2], vop3=True)
    a(f"v_add_u32 {rn(VEFW)}, {S_W128}, {rn(t2)}", [VEFW], [t2])
    a(f"v_and_b32 {rn(t6)}, 15, {L}", [t6], [VL])
    a(f"v_lshrrev_b32 {rn(t7)}, 4, {L}", [t7], [VL])
    a(f"v_and_b32 {rn(t2)}, 1, {rn(t7)}", [t2], [t7])
    a(f"v_lshrrev_b32 {rn(t3)}, 1, {rn(t7)}", [t3], [t7])
    a(f"v_mov_b32 {rn(VC1)}, 133", [VC1], [])
    a(f"v_cmp_eq_u32 vcc, {rn(t6)}, {rn(t2)}", [], [t6, t2], sw=["vcc"])
    for tap, rh in enumerate((65, 0, 66)):
        a(f"v_mov_b32 {rn(t5)}, {rh}", [t5], [])
        a(f"v_cndmask_b32 {rn(t4)}, {rn(VC1)}, {rn(t5)}, vcc", [t4], [VC1, t5], sr=["vcc"])
        a(f"v_bfe_u32 {rn(t5)}, {rn(t4)}, 1, 3", [t5], [t4], vop3=True)
        a(f"v_xor_b32 {rn(t5)}, {rn(t3)}, {rn(t5)}", [t5], [t3, t5])
        a(f"v_lshlrev_b32 {rn(t4)}, 7, {rn(t4)}", [t4], [t4])
        a(f"v_lshl_add_u32 {rn(VXH[tap][0])}, {rn(t5)}, 4, {rn(t4)}", [VXH[tap][0]], [t5, t4], vop3=True)
        for k in range(1, 4):
            a(f"v_xor_b32 {rn(VXH[tap][k])}, {32 * k}, {rn(VXH[tap][0])}", [VXH[tap][k]], [VXH[tap][0]])
    a(f"v_mov_b32 {rn(VC1)}, {f32(GC1)}", [VC1], [])
    return ops


def gelu_ops(e, regs, packs, tmps, pump=None):
    v = V(e)
    for g0 in range(0, len(regs), 4):
        xs = regs[g0:g0 + 4]
        ts = tmps[:len(xs)]
        for x, t in zip(xs, ts):
            v(f"v_mul_f32 {rn(t)}, {rn(x)}, {rn(x)}", [t], [x])
        for x, t in zip(xs, ts):
            v(f"v_fmaak_f32 {rn(t)}, {rn(t)}, {rn(VC1)}, {f32(GC0)}", [t], [t, VC1], vop3=True)
        for x, t in zip(xs, ts):
            v(f"v_mul_f32 {rn(t)}, {rn(x)}, {rn(t)}", [t], [x, t])
        for x, t in zip(xs, ts):
            v(f"v_exp_f32 {rn(t)}, {rn(t)}", [t], [t], trans=True)
        for x, t in zip(xs, ts):
            v(f"v_add_f32 {rn(t)}, 1.0, {rn(t)}", [t], [t])
        for x, t in zip(xs, ts):
            v(f"v_rcp_f32 {rn(t)}, {rn(t)}", [t], [t], trans=True)
        for x, t in zip(xs, ts):
            v(f"v_mul_f32 {rn(x)}, {rn(x)}, {rn(t)}", [x], [x, t])
        for i in range(0, len(xs), 2):
            p = packs[(g0 + i) // 2]
            v(f"v_cvt_pk_bf16_f32 {rn(p)}, {rn(xs[i])}, {rn(xs[i + 1])}", [p], [xs[i], xs[i + 1]], vop3=True)
        if pump:
            pump()


def exp_stage(e, src, keep, dst, n, vmax, pump=None):
    v = V(e)
    for i in range(n):
        v(f"v_mul_f32 {rn(keep + i)}, {f32(TSC)}, {rn(src + i)}", [keep + i], [src + i], vop3=True)
    for i in range(n):
        v(f"v_exp_f32 {rn(dst + i)}, {rn(keep + i)}", [dst + i], [keep + i], trans=True)
        if i % 2 == 1:
            v(f"v_max3_f32 {rn(vmax)}, |{rn(keep + i - 1)}|, |{rn(keep + i)}|, {rn(vmax)}",
              [vmax], [keep + i - 1, keep + i, vmax], vop3=True)
        if pump and i % 8 == 7:
            pump()


def publish_flag(e, vmax, slot_extra):
    e.salu(f"s_mov_b32 {S_LIM}, {f32(125.0)}")
    e.valu(f"v_cmp_lt_f32 vcc, {S_LIM}, {rn(vmax)}", [], [vmax], sw=["vcc"])
    e.nop(2)
    e.salu("s_cmp_lg_u64 vcc, 0")
    e.salu(f"s_cselect_b32 {S_FLAG}, 1, 0")
    e.salu(f"s_lshl_b32 {S_T1}, {S_W}, 2")
    e.salu(f"s_add_u32 {S_T1}, {S_T1}, {FLAG + slot_extra}")
    e.valu(f"v_mov_b32 {rn(T[0])}, {S_FLAG}", [T[0]], [])
    e.valu(f"v_mov_b32 {rn(T[1])}, {S_T1}", [T[1]], [])
    e.ds_write(1, T[1], T[0])


def flag_check(e, label):
    v = V(e)
    v(f"v_mov_b32 {rn(T[1])}, {FLAG}", [T[1]], [])
    e.ds_read(4, T[2], T[1])
    v(f"v_or3_b32 {rn(T[0])}, {rn(T[2])}, {rn(T[3])}, {rn(T[4])}", [T[0]], [T[2], T[3], T[4]], vop3=True)
    v(f"v_or_b32 {rn(T[0])}, {rn(T[0])}, {rn(T[5])}", [T[0]], [T[0], T[5]])
    e.ds_read(4, T[2], T[1], 16)
    v(f"v_or3_b32 {rn(T[0])}, {rn(T[2])}, {rn(T[3])}, {rn(T[0])}", [T[0]], [T[2], T[3], T[0]], vop3=True)
    v(f"v_or3_b32 {rn(T[0])}, {rn(T[4])}, {rn(T[5])}, {rn(T[0])}", [T[0]], [T[4], T[5], T[0]], vop3=True)
    e.rfl(S_FLAG, T[0])
    e.salu(f"s_cmp_lg_u32 {S_FLAG}, 0")
    e.salu(f"s_cbranch_scc1 {label}")


def produce_ops(e, slow, vefr, vjw, EGb, EF, WK, PK, nrows):
    v = V(e)
    ops = []
    ops.append(lambda: e.ds_read(4, EF, vefr, 0))
    ops.append(lambda: e.ds_read(4, EF + 4, vefr, 512))
    for uu in range(nrows):
        for h in range(2):
            els = range(4 * h, 4 * h + 4)
            for i in els:
                if slow:
                    ops.append(lambda i=i, uu=uu: v(
                        f"v_add_f32 {rn(WK + i)}, {rn(EF + i)}, {rn(EGb + 8 * uu + i)}",
                        [WK + i], [EF + i, EGb + 8 * uu + i]))
                else:
                    ops.append(lambda i=i, uu=uu: v(
                        f"v_fma_f32 {rn(WK + i)}, {rn(EF + i)}, {rn(EGb + 8 * uu + i)}, 1.0",
                        [WK + i], [EF + i, EGb + 8 * uu + i], vop3=True))
            if slow:
                for i in els:
                    ops.append(lambda i=i: v(f"v_exp_f32 {rn(WK + i)}, {rn(WK + i)}", [WK + i], [WK + i], trans=True))
                for i in els:
                    ops.append(lambda i=i: v(f"v_add_f32 {rn(WK + i)}, 1.0, {rn(WK + i)}", [WK + i], [WK + i]))
            for i in els:
                ops.append(lambda i=i: v(f"v_rcp_f32 {rn(WK + i)}, {rn(WK + i)}", [WK + i], [WK + i], trans=True))
            for i in els:
                ops.append(lambda i=i: v(f"v_fma_f32 {rn(WK + i)}, {rn(WK + i)}, -2.0, 1.0",
                                         [WK + i], [WK + i], vop3=True))
            for i in (4 * h, 4 * h + 2):
                ops.append(lambda i=i: v(
                    f"v_cvt_pk_bf16_f32 {rn(PK + i // 2)}, {rn(WK + i)}, {rn(WK + i + 1)}",
                    [PK + i // 2], [WK + i, WK + i + 1], vop3=True))
        ops.append(lambda uu=uu: e.ds_write(4, vjw, PK, uu * HROW))
    ops.append(lambda: v(f"v_add_u32 {rn(vefr)}, {4 * EFROW}, {rn(vefr)}", [vefr], [vefr]))
    return ops


def rotate3(e, regs, tmp):
    v = V(e)
    return [lambda: v(f"v_mov_b32 {rn(tmp)}, {rn(regs[0])}", [tmp], [regs[0]]),
            lambda: v(f"v_mov_b32 {rn(regs[0])}, {rn(regs[1])}", [regs[0]], [regs[1]]),
            lambda: v(f"v_mov_b32 {rn(regs[1])}, {rn(regs[2])}", [regs[1]], [regs[2]]),
            lambda: v(f"v_mov_b32 {rn(regs[2])}, {rn(tmp)}", [regs[2]], [tmp])]


def readback_store_ops(e, vor, vos, regs):
    ops = []
    for i in range(4):
        ops.append(lambda i=i: e.ds_read(4, regs + 4 * i, vor, i * 8 * OROW))
    for i in range(4):
        def st(i=i):
            e.bstore(4, regs + 4 * i, vos, SOUT, S_OS)
            e.salu(f"s_add_u32 {S_OS}, {S_OS}, 4096")
        ops.append(st)
    return ops


def loop_fence(e):
    e.pend = {r: p for r, p in e.pend.items() if p[0] == 'v'}
    e.ldone = e.lseq


def gen_compute(e):
    v = V(e)
    stamp = Stamper(e)
    st = Stream(e, RS, VS, FBUF)
    for s in range(4):
        for tap in range(3):
            for k in range(4):
                st.add(SW1, (f"s{44 + s}", tap * 131072 + 16 * k * 512))
    for k in range(48):
        st.add(SW2, k * 8192)
    for k in range(16):
        st.add(SWF, k * 8192)
    U_1, U_2, U_F = 0, 48, 96

    stamp()
    e.salu(f"s_lshl_b32 {S_RING}, {S_W}, 14")
    e.salu(f"s_add_u32 {S_RING}, {S_RING}, {RING}")
    for i in range(4):
        e.salu(f"s_lshl_b32 s{44 + i}, s{44 + i}, 8")
    for _ in range(RS):
        st.do_dma()
    tr_consts(e, False)
    c_consts_ge(e)
    for f in c_consts_ops(e):
        f()

    steps = [(s, tap, k) for s in range(4) for tap in range(3) for k in range(4)]

    def b_reads1(i):
        s, tap, k = steps[i]
        base = BFR + 12 * (i % 2)
        return [lambda: e.ds_read(4, base, VXB[tap][k], s * XSL),
                lambda: e.ds_read(4, base + 4, VXB[tap][k], s * XSL + 4096),
                lambda: e.ds_read(4, base + 8, VXH[tap][k], s * XSL)]

    for i, (s, tap, k) in enumerate(steps):
        u = U_1 + i
        if i in (24, 36):
            stamp()
        if i in (0, 12):
            st.ensure(u)
            stamp("bar")
            e.raw("    s_barrier")
            stamp()
            stamp("bar")
            for f in b_reads1(i):
                f()
        st.ensure(u + (1 if "ahead" in X_C1 else 0))
        d = st.dest(u)
        bb = BFR + 12 * (i % 2)
        mains = []
        for nt in range(2):
            for mt in range(2):
                a = ACC + 16 * (2 * mt + nt)
                mains.append(lambda a=a, mt=mt, nt=nt: e.mfma(True, a, d + 4 * mt, bb + 4 * nt, a if i else None))
        for mt in range(2):
            a = HACC + 4 * mt
            mains.append(lambda a=a, mt=mt: e.mfma(False, a, d + 4 * mt, bb + 8, a if i else None))
        br = b_reads1(i + 1) if (i + 1 < 48 and i + 1 != 12) else []
        mains[0]()
        for f in br:
            f()
        mains[1]()
        st.pump(1)
        mains[2]()
        st.pump(1)
        mains[3]()
        if "nohalo" not in X_C1:
            mains[4]()
            mains[5]()
        st.cu += 1
    stamp()
    e.raw("    s_barrier")
    stamp()
    pump = lambda: st.pump(2)
    gt = rng(TMP + 24, 4)
    for nt in range(2):
        for mt in range(2):
            a = ACC + 16 * (2 * mt + nt)
            pk = TMP + 8 * mt
            gelu_ops(e, rng(a, 16), rng(pk, 8), gt, pump)
            for h in range(2):
                e.ds_write(4, VHW, pk + 4 * h, nt * 16 * HROW + 64 * mt + 32 * h)
    gelu_ops(e, rng(HACC, 8), rng(TMP + 16, 4), gt, pump)
    for mt in range(2):
        e.ds_write(2, VHH, TMP + 16 + 2 * mt, 64 * mt)
    e.barrier()

    def small_gemm(ubase, nsteps, boff):
        def bread(i):
            return lambda: e.ds_read(4, BFR + 4 * (i % 4), VHR, boff(i))
        bread(0)()
        bread(1)()
        for i in range(nsteps):
            u = ubase + i
            st.ensure(u)
            d = st.dest(u)
            mains = [lambda mt=mt: e.mfma(True, ACC + 16 * mt, d + 4 * mt, BFR + 4 * (i % 4),
                                          ACC + 16 * mt if i else None) for mt in range(2)]
            fill = []
            if i + 2 < nsteps:
                fill.append(bread(i + 2))
            fill += [lambda: st.pump(1), lambda: st.pump(1)]
            interleave(mains, fill)
            st.cu += 1

    stamp()
    tapoff = [0, HEVEN * HROW, HROW]
    small_gemm(U_2, 48, lambda i: tapoff[i // 16] + 32 * (i % 16))
    stamp()
    for mt in range(2):
        pk = TMP + 8 * mt
        gelu_ops(e, rng(ACC + 16 * mt, 16), rng(pk, 8), gt, pump)
        for h in range(2):
            e.ds_write(4, VFW, pk + 4 * h, FB + 64 * mt + 32 * h)
    e.barrier()
    stamp()
    small_gemm(U_F, 16, lambda i: FB + 32 * i)
    prod_consts(e, VEFR, VEGR, PJW, 0)
    store_consts(e, POR[2], VOS, S_RING)
    for i in range(2):
        v(f"v_add_u32 {rn(POR[i])}, {(i + 1) * TBSZ}, {rn(POR[2])}", [POR[i]], [POR[2]])
    exp_stage(e, ACC, KEEPA, ACC + 32, 32, VMAX)
    for mt in range(2):
        for h in range(2):
            for pl in range(2):
                e.ds_write(4, VEFW, ACC + 32 + 16 * mt + 8 * h + 4 * pl, 64 * mt + 32 * h + 512 * pl)
    publish_flag(e, VMAX, 0)
    e.barrier()
    stamp()
    flag_check(e, "L_c_slow")
    snap = (copy.deepcopy(e.pend), e.lseq, e.vseq, e.ldone, e.vdone)

    def out_stage(slow, tag):
        for uu in range(3):
            for pl in range(2):
                e.ds_read(4, PEG + 8 * uu + 4 * pl, VEGR, uu * 1024 + pl * 512)
        for c in range(2):
            for f in produce_ops(e, slow, VEFR, PJW[c], PEG, PEF, PWK, PPK, 3):
                f()
        e.salu(f"s_mov_b32 {S_CNT}, 0")
        e.salu(f"s_mov_b32 {S_OS}, 0x7ff00000")
        e.barrier()
        if not slow:
            stamp()
        loop_fence(e)
        if STAMPS:
            e.salu("s_mov_b32 s101, 0")
        e.label(f"L_c_loop{tag}")
        stamp.loop_top()
        e.salu(f"s_cmp_eq_u32 {S_CNT}, 2")
        e.salu(f"s_cselect_b32 {S_OS}, {S_OBASE}, {S_OS}")
        ops = produce_ops(e, slow, VEFR, PJW[2], PEG, PEF, PWK, PPK, 3)
        sto = readback_store_ops(e, POR[0], VOS, PRB)
        if X_NOSTORE:
            sto = [lambda: None] * 8
        if X_NOPPROD:
            ops = [lambda: None] * 5
        seq = sto[:4] + ops[:len(ops) // 5]
        for q in range(4):
            seq += sto[4 + q:5 + q] + ops[(q + 1) * len(ops) // 5:(q + 2) * len(ops) // 5]
        for f in seq + rotate3(e, PJW, T[0]) + rotate3(e, POR, T[1]):
            f()
        stamp.loop_pre_barrier()
        e.salu(f"s_add_u32 {S_CNT}, {S_CNT}, 1")
        e.salu(f"s_cmp_lg_u32 {S_CNT}, 8")
        e.barrier()
        e.salu(f"s_cbranch_scc1 L_c_loop{tag}")
        if not slow:
            stamp()
        for f in readback_store_ops(e, POR[0], VOS, PRB):
            f()

    out_stage(False, "")
    if STAMPS:
        e.wait_all_vm()
    stamp()
    stamp.dump(False)
    e.salu("s_endpgm")

    e.label("L_c_slow")
    (e.pend, e.lseq, e.vseq, e.ldone, e.vdone) = snap
    e.wr.clear(); e.stw.clear(); e.sgpr_valu.clear()
    e.nop(8)
    e.barrier()
    for mt in range(2):
        for h in range(2):
            for pl in range(2):
                e.ds_write(4, VEFW, KEEPA + 16 * mt + 8 * h + 4 * pl, 64 * mt + 32 * h + 512 * pl)
    e.barrier()
    out_stage(True, "s")
    e.salu("s_endpgm")


def gen_helper(e):
    v = V(e)
    stamp = Stamper(e)
    t0, t1, t2, t3, t4, t5, t6, t7 = T
    L = rn(VL)
    SDBG, SWS = 40, 52
    HVG, HVEGW, HVST, GMAX = 39, 25, 24, 23
    RAW, NFL = MACC, 4
    GFR = MPO
    GEF = MEG
    GACC, GKEEP = MWK, MPK
    e.label("L_helper")
    e.salu("s_setprio 3")
    stamp()
    e.salu(f"s_lshl_b32 {S_RING}, {S_W}, 12")
    e.salu(f"s_add_u32 {S_RING}, {S_RING}, {J2}")
    e.salu(f"s_cmp_ge_u32 s2, 125")
    e.salu(f"s_cselect_b32 {S_B}, 1, 0")
    e.salu(f"s_cmp_ge_u32 s2, {NWG}")
    e.salu("s_cbranch_scc1 L_h_setup2")
    v(f"v_lshlrev_b32 {rn(HVP)}, 6, {L}", [HVP], [VL])
    e.salu(f"s_lshl_b32 {S_LIM}, s48, 2")
    e.salu(f"s_add_u32 {S_LIM}, {S_LIM}, {S_W}")
    e.salu(f"s_lshl_b32 {S_LIM}, {S_LIM}, 12")
    for srd in (SW1, SW2, SWF, SWO):
        e.bload(1, MWK, HVP, srd, S_LIM)
    e.salu(f"s_mul_i32 {S_T1}, {S_B}, 125")
    e.salu(f"s_sub_u32 {S_T0}, s2, {S_T1}")
    e.salu(f"s_lshl_b32 {S_T0}, {S_T0}, 7")
    e.salu(f"s_lshl_b32 {S_T1}, {S_W}, 3")
    e.salu(f"s_mul_i32 {S_CNT}, {S_B}, 16000")
    e.salu(f"s_lshl_b32 {S_D}, {S_W}, 10")
    v(f"v_mov_b32 {rn(HC)}, 133", [HC], [])
    v(f"v_bfrev_b32 {rn(HVMAX)}, 1", [HVMAX], [])
    v(f"v_lshrrev_b32 {rn(t6)}, 3, {L}", [t6], [VL])
    v(f"v_add_u32 {rn(t0)}, {S_T1}, {rn(t6)}", [t0], [t6])
    v(f"v_and_b32 {rn(t1)}, 7, {L}", [t1], [VL])
    xseq = {}

    def xconst(j):
        if j < 4:
            v(f"v_add_u32 {rn(t2)}, {32 * j}, {rn(t0)}", [t2], [t0])
        else:
            v(f"v_add_u32 {rn(t2)}, 128, {rn(t6)}", [t2], [t6])
        v(f"v_bfe_u32 {rn(t3)}, {rn(t2)}, 1, 3", [t3], [t2], vop3=True)
        v(f"v_xor_b32 {rn(t3)}, {rn(t1)}, {rn(t3)}", [t3], [t1, t3])
        v(f"v_lshlrev_b32 {rn(t4)}, 1, {rn(t2)}", [t4], [t2])
        v(f"v_cmp_lt_u32 vcc, 64, {rn(t2)}", [], [t2], sw=["vcc"])
        v(f"v_cndmask_b32 {rn(t5)}, 2, {rn(HC)}, vcc", [t5], [HC], sr=["vcc"])
        v(f"v_sub_u32 {rn(t4)}, {rn(t4)}, {rn(t5)}", [t4], [t4, t5])
        v(f"v_add_u32 {rn(t4)}, {S_T0}, {rn(t4)}", [t4], [t4])
        v(f"v_add_u32 {rn(t5)}, {S_CNT}, {rn(t4)}", [t5], [t4])
        v(f"v_lshlrev_b32 {rn(t5)}, 9, {rn(t5)}", [t5], [t5])
        v(f"v_lshl_add_u32 {rn(t5)}, {rn(t3)}, 4, {rn(t5)}", [t5], [t3, t5], vop3=True)
        if j < 4:
            v(f"v_cmp_gt_i32 vcc, 0, {rn(t4)}", [], [t4], sw=["vcc"])
        else:
            v(f"v_cmp_lt_u32 vcc, 130, {rn(t2)}", [], [t2], sw=["vcc"])
        v(f"v_cndmask_b32 {rn(HVX[j])}, {rn(t5)}, {rn(HVMAX)}, vcc", [HVX[j]], [t5, HVMAX], sr=["vcc"])

    def xdma(s, j):
        e.salu(f"s_add_u32 m0, {S_D}, {s * XSL + 4096 * j}", m0=True)
        xseq[s] = e.dma(HVX[j], SX, f"s{44 + s}", flags="nt")

    for j in range(4):
        xconst(j)
        xdma(0, j)
    xconst(4)
    e.salu(f"s_mul_i32 {S_T1}, {S_W}, {XSL}")
    e.salu(f"s_add_u32 {S_T2}, s48, {S_W}")
    e.salu(f"s_and_b32 {S_T2}, {S_T2}, 3")
    e.salu(f"s_lshl_b32 {S_T2}, {S_T2}, 7")
    e.salu(f"s_add_u32 m0, {S_T1}, 16384", m0=True)
    xseq[0] = e.dma(HVX[4], SX, S_T2, flags="nt")
    for j in range(4):
        xdma(1, j)
    e.wait(vseq=xseq[0])
    e.raw("    s_barrier")
    stamp()
    for s in range(2, 4):
        for j in range(4):
            xdma(s, j)
    e.label("L_h_setup2")
    e.salu("s_setprio 0")
    e.salu(f"s_sub_u32 {S_T1}, s2, {NWG}")
    e.salu(f"s_cmp_ge_u32 s2, {NWG}")
    e.salu(f"s_cselect_b32 {S_B}, {S_T1}, {S_B}")
    e.salu(f"s_load_dwordx2 s[{SDBG}:{SDBG + 1}], s[0:1], 64")
    e.salu(f"s_load_dwordx2 s[{SWS}:{SWS + 1}], s[0:1], 72")
    e.salu("s_waitcnt lgkmcnt(0)")
    e.salu(f"s_and_b32 s{SDBG + 1}, s{SDBG + 1}, 0xffff")
    e.salu(f"s_mov_b32 s{SDBG + 2}, 256")
    e.salu(f"s_mov_b32 s{SDBG + 3}, 0x20000")
    e.salu(f"s_and_b32 s{SWS + 1}, s{SWS + 1}, 0xffff")
    e.salu(f"s_mov_b32 s{SWS + 2}, {WS_OFF + 16384}")
    e.salu(f"s_mov_b32 s{SWS + 3}, 0x20000")
    tr_consts(e, False)
    v(f"v_and_b32 {rn(t0)}, 15, {L}", [t0], [VL])
    v(f"v_lshrrev_b32 {rn(t1)}, 4, {L}", [t1], [VL])
    v(f"v_xor_b32 {rn(t2)}, {rn(t0)}, {rn(t1)}", [t2], [t0, t1])
    v(f"v_and_b32 {rn(t2)}, 1, {rn(t2)}", [t2], [t2])
    v(f"v_lshrrev_b32 {rn(t3)}, 1, {rn(t0)}", [t3], [t0])
    e.salu(f"s_lshl_b32 {S_T1}, {S_B}, 3")
    v(f"v_add_u32 {rn(t3)}, {S_T1}, {rn(t3)}", [t3], [t3])
    v(f"v_lshlrev_b32 {rn(t3)}, 9, {rn(t3)}", [t3], [t3])
    v(f"v_lshrrev_b32 {rn(t4)}, 1, {rn(t1)}", [t4], [t1])
    v(f"v_lshl_add_u32 {rn(t3)}, {rn(t4)}, 4, {rn(t3)}", [t3], [t4, t3], vop3=True)
    v(f"v_lshl_or_b32 {rn(HVG)}, {rn(t2)}, 31, {rn(t3)}", [HVG], [t2, t3], vop3=True)
    v(f"v_and_b32 {rn(t2)}, 1, {rn(t0)}", [t2], [t0])
    v(f"v_lshl_or_b32 {rn(t2)}, {rn(t2)}, 2, {rn(t1)}", [t2], [t2, t1], vop3=True)
    perm_q(e, t4, t2, t6, t7)
    v(f"v_lshrrev_b32 {rn(t3)}, 1, {rn(t0)}", [t3], [t0])
    v(f"v_lshlrev_b32 {rn(t3)}, 10, {rn(t3)}", [t3], [t3])
    v(f"v_and_b32 {rn(t5)}, 1, {rn(t4)}", [t5], [t4])
    v(f"v_lshl_add_u32 {rn(t3)}, {rn(t5)}, 9, {rn(t3)}", [t3], [t5, t3], vop3=True)
    v(f"v_lshrrev_b32 {rn(t5)}, 1, {rn(t4)}", [t5], [t4])
    v(f"v_lshl_add_u32 {rn(t3)}, {rn(t5)}, 4, {rn(t3)}", [t3], [t5, t3], vop3=True)
    v(f"v_add_u32 {rn(t3)}, {S_W128}, {rn(t3)}", [t3], [t3])
    v(f"v_add_u32 {rn(HVEGW)}, {EG}, {rn(t3)}", [HVEGW], [t3])
    v(f"v_lshlrev_b32 {rn(t3)}, 4, {L}", [t3], [VL])
    v(f"v_add_u32 {rn(HVST)}, {S_RING}, {rn(t3)}", [HVST], [t3])
    v(f"v_mov_b32 {rn(GMAX)}, 0", [GMAX], [])
    e.salu(f"s_lshl_b32 {S_T0}, {S_B}, 2")
    e.salu(f"s_add_u32 {S_T0}, {S_T0}, {S_W}")
    e.salu(f"s_lshl_b32 {S_T0}, {S_T0}, 11")
    e.salu(f"s_add_u32 {S_T0}, {S_T0}, {WS_OFF}")
    e.salu(f"s_lshl_b32 {S_D}, {S_B}, 2")
    e.salu(f"s_cmp_ge_u32 s2, {NWG}")
    e.salu("s_cbranch_scc1 L_ge")
    v(f"v_lshrrev_b32 {rn(t0)}, 3, {L}", [t0], [VL])
    v(f"v_lshlrev_b32 {rn(t0)}, 9, {rn(t0)}", [t0], [t0])
    v(f"v_add_u32 {rn(t0)}, {S_W128}, {rn(t0)}", [t0], [t0])
    v(f"v_and_b32 {rn(t1)}, 7, {L}", [t1], [VL])
    v(f"v_lshrrev_b32 {rn(t2)}, 3, {L}", [t2], [VL])
    v(f"v_and_b32 {rn(t2)}, 2, {rn(t2)}", [t2], [t2])
    v(f"v_xor_b32 {rn(t2)}, {rn(t1)}, {rn(t2)}", [t2], [t1, t2])
    v(f"v_lshl_add_u32 {rn(VWO0)}, {rn(t2)}, 4, {rn(t0)}", [VWO0], [t2, t0], vop3=True)
    v(f"v_add_u32 {rn(VWO1)}, 3072, {rn(VWO0)}", [VWO1], [VWO0])
    tr_consts(e, True)
    prod_consts(e, MEFR, MEGR, MJW, 3)
    v(f"v_mul_u32_u24 {rn(t2)}, {HROW}, {rn(t0)}", [t2], [t0])
    v(f"v_lshl_add_u32 {rn(t2)}, {rn(t1)}, 4, {rn(t2)}", [t2], [t1, t2], vop3=True)
    for i in range(3):
        v(f"v_add_u32 {rn(MJR[i])}, {JB[i]}, {rn(t2)}", [MJR[i]], [t2])
    e.salu(f"s_lshl_b32 {S_T2}, {S_W}, 14")
    e.salu(f"s_add_u32 {S_T2}, {S_T2}, {RING}")
    v(f"v_mul_u32_u24 {rn(t2)}, {OROW}, {rn(t0)}", [t2], [t0])
    v(f"v_lshl_add_u32 {rn(t2)}, {rn(t1)}, 6, {rn(t2)}", [t2], [t1, t2], vop3=True)
    v(f"v_add_u32 {rn(MOW[0])}, {S_T2}, {rn(t2)}", [MOW[0]], [t2])
    for i in (1, 2):
        v(f"v_add_u32 {rn(MOW[i])}, {i * TBSZ}, {rn(MOW[0])}", [MOW[i]], [MOW[0]])
    store_consts(e, MOR, MOS, S_T2)
    v(f"v_add_u32 {rn(MOR)}, {TBSZ}, {rn(MOR)}", [MOR], [MOR])
    e.wait(vseq=xseq[3])
    e.raw("    s_barrier")
    stamp()

    def run_units(srd, wo):
        trseq = {}

        def load(u):
            e.salu(f"s_mov_b32 {S_SOFF}, {u * 8192}")
            r = RAW + 8 * (u % NFL)
            e.bload(4, r, VWO0 if wo else VW0, srd, S_SOFF)
            e.bload(4, r + 4, VWO1 if wo else VW1, srd, S_SOFF, off=1024)
            if not wo:
                e.bload(4, GFR + 4 * (u % 4), HVG, SG, 0, off=32 * u)

        nfl = NFL if wo else NFL - 1
        for u in range(nfl):
            load(u)
        for u in range(17):
            if u < 16:
                r = RAW + 8 * (u % NFL)
                slot = (u % 2) * 2048
                if u >= 2:
                    e.wait(lseq=trseq[u - 2])
                e.ds_write(4, HVST, r, slot)
                e.ds_write(4, HVST, r + 4, slot + 1024)
                d = WO_DEST[u] if wo else GEF + 8 * (u % 2)
                va = VTRO if wo else VTR
                for mt in range(2):
                    for jj in range(2):
                        trseq[u] = e.ds_read(2, d + 4 * mt + 2 * jj, va[mt], slot + jj * 512, tr=True)
            if not wo and u >= 1:
                dp = GEF + 8 * ((u - 1) % 2)
                for mt in range(2):
                    e.mfma(False, GACC + 4 * mt, dp + 4 * mt, GFR + 4 * ((u - 1) % 4), GACC + 4 * mt if u > 1 else None)
            if u + nfl < 16:
                load(u + nfl)

    e.raw("    s_barrier")
    run_units(SWO, True)
    stamp()
    e.barrier()
    v(f"v_mov_b32 {rn(t0)}, 0", [t0], [])
    e.bload(1, t1, t0, SDBG, S_D, flags="sc0 sc1")
    e.rfl(S_T1, t1)
    e.salu(f"s_cmp_lg_u32 {S_T1}, {4 if not X_NOPUB else 99}")
    e.salu("s_cbranch_scc1 L_ge")
    v(f"v_lshlrev_b32 {rn(t3)}, 4, {L}", [t3], [VL])
    e.bload(4, GACC, t3, SWS, S_T0, flags="sc0 sc1")
    e.bload(4, GACC + 4, t3, SWS, S_T0, off=1024, flags="sc0 sc1")
    e.wait_all_vm()
    e.salu("s_branch L_ge_done")
    e.label("L_ge")
    e.pend.clear(); e.wr.clear()
    e.ldone, e.vdone = e.lseq, e.vseq
    e.raw("    s_waitcnt vmcnt(0) lgkmcnt(0)")
    run_units(SWG, False)
    e.nop(10)
    e.salu(f"s_cmp_lt_u32 s2, {NWG}")
    e.salu("s_cbranch_scc1 L_ge_done")
    v(f"v_lshlrev_b32 {rn(t3)}, 4, {L}", [t3], [VL])
    e.bstore(4, GACC, t3, SWS, S_T0, flags="sc0 sc1")
    e.bstore(4, GACC + 4, t3, SWS, S_T0, off=1024, flags="sc0 sc1")
    e.wait_all_vm()
    v(f"v_mov_b32 {rn(t0)}, 0", [t0], [])
    v(f"v_mov_b32 {rn(t1)}, 1", [t1], [])
    e.salu("s_mov_b64 exec, 1")
    e.raw(f"    buffer_atomic_add {rn(t1)}, {rn(t0)}, s[{SDBG}:{SDBG + 3}], {S_D} offen sc1")
    e.salu("s_endpgm")
    e.label("L_ge_done")
    e.pend.clear(); e.wr.clear()
    e.ldone, e.vdone = e.lseq, e.vseq
    e.raw("    s_waitcnt vmcnt(0) lgkmcnt(0)")
    exp_stage(e, GACC, GKEEP, 120, 8, GMAX)
    for mt in range(2):
        e.ds_write(4, HVEGW, 120 + 4 * mt, 64 * mt)
    publish_flag(e, GMAX, 16)
    stamp()
    e.barrier()
    e.barrier()
    stamp()
    flag_check(e, "L_h_slow")
    snap = (copy.deepcopy(e.pend), e.lseq, e.vseq, e.ldone, e.vdone)

    def cvt_ops(mt):
        acc = MACC + 16 * mt
        return [lambda k=k: v(f"v_cvt_pk_bf16_f32 {rn(MPO + 8 * mt + k)}, {rn(acc + 2 * k)}, {rn(acc + 2 * k + 1)}",
                              [MPO + 8 * mt + k], [acc + 2 * k, acc + 2 * k + 1], vop3=True) for k in range(8)]

    def tb_ops():
        return [lambda q=q: e.ds_write(4, MOW[0], MPO + 4 * q, 16 * q) for q in range(4)] + rotate3(e, MOW, T[2])

    def jread(idx):
        reg = MJR[0] if idx < 16 else MJR[1]
        return lambda: e.ds_read(4, MBF[idx % 4], reg, 32 * (idx % 16))

    def chunk_body(slow):
        prod = produce_ops(e, slow, MEFR, MJW[2], MEG, MEF, MWK, MPK, 1)
        if X_NOMPROD:
            prod = []
        side = merge(prod, tb_ops())
        nslots = 28
        for ks in range(16):
            wo = WO_DEST[ks]
            for mt in range(2):
                if ks == 0:
                    for f in cvt_ops(mt):
                        f()
                e.mfma(True, MACC + 16 * mt, wo + 4 * mt, MBF[ks % 4], MACC + 16 * mt if ks else None)
                if mt == 0:
                    jread(ks + 2)()
                slot = 2 * ks + mt - 1
                if 0 <= slot < nslots:
                    for f in side[len(side) * slot // nslots:len(side) * (slot + 1) // nslots]:
                        f()
        for f in rotate3(e, MJR, T[0]) + rotate3(e, MJW, T[1]):
            f()

    def out_stage(slow, tag):
        for pl in range(2):
            e.ds_read(4, MEG + 4 * pl, MEGR, pl * 512)
        for c in range(2):
            for f in produce_ops(e, slow, MEFR, MJW[c], MEG, MEF, MWK, MPK, 1):
                f()
        for f in rotate3(e, MOW, T[2]) + rotate3(e, MOW, T[2]):
            f()
        e.salu(f"s_mov_b32 {S_CNT}, 8")
        e.salu(f"s_setprio {X_PRIO}")
        e.barrier()
        jread(0)()
        jread(1)()
        e.wait_all_lds()
        loop_fence(e)
        if STAMPS:
            e.salu("s_mov_b32 s101, 0")
        e.label(f"L_h_loop{tag}")
        stamp.loop_top()
        chunk_body(slow)
        stamp.loop_pre_barrier()
        e.salu(f"s_sub_u32 {S_CNT}, {S_CNT}, 1")
        e.salu(f"s_cmp_lg_u32 {S_CNT}, 0")
        e.barrier()
        e.salu(f"s_cbranch_scc1 L_h_loop{tag}")
        e.nop(4)
        for f in cvt_ops(0) + cvt_ops(1) + tb_ops()[:4]:
            f()
        e.salu(f"s_add_u32 {S_OS}, {S_OBASE}, {7 * 16384}")
        for f in readback_store_ops(e, MOR, MOS, MACC):
            f()

    out_stage(False, "")
    if STAMPS:
        e.wait_all_vm()
    stamp()
    stamp.dump(True)
    e.salu("s_endpgm")

    e.label("L_h_slow")
    (e.pend, e.lseq, e.vseq, e.ldone, e.vdone) = snap
    e.wr.clear(); e.stw.clear(); e.sgpr_valu.clear()
    e.nop(8)
    e.barrier()
    for mt in range(2):
        e.ds_write(4, HVEGW, GKEEP + 4 * mt, 64 * mt)
    e.barrier()
    out_stage(True, "s")
    e.label("L_end")
    e.salu("s_endpgm")


def split_slow(text, label):
    i = text.index(label + ":")
    return text[:i], text[i:]


def generate():
    e0 = Emitter()
    common_prologue(e0)
    ec = Emitter()
    gen_compute(ec)
    eh = Emitter()
    gen_helper(eh)
    cf, cs = split_slow(ec.text(), "L_c_slow")
    hf, hs = split_slow(eh.text(), "L_h_slow")
    return e0.text() + cf + hf + cs + hs, ec, eh


HEADER = f"""; Fused conv stem (2x stride-2 conv1d + gelu) + RNN-T joint network, one workgroup per 32 output frames.
; @launch grid=({NGRID},1,1) block=(512,1,1) lds={LDS_BYTES}
.amdgcn_target "amdgcn-amd-amdhsa--gfx950"
.text
.globl {NAME}_kernel
.p2align 8
.type {NAME}_kernel,@function
{NAME}_kernel:
"""

FOOTER = f""".section .rodata,"a"
.p2align 6
.amdhsa_kernel {NAME}_kernel
  .amdhsa_next_free_vgpr 256
  .amdhsa_next_free_sgpr 102
  .amdhsa_accum_offset {ACCOFF}
  .amdhsa_group_segment_fixed_size 0
  .amdhsa_kernarg_size 80
  .amdhsa_user_sgpr_count 2
  .amdhsa_user_sgpr_kernarg_segment_ptr 1
  .amdhsa_system_sgpr_workgroup_id_x 1
.end_amdhsa_kernel
"""

if __name__ == "__main__":
    STAMPS = "--stamps" in sys.argv
    if "--out" in sys.argv:
        STAMPMODE = "out"
    if "--h" in sys.argv:
        STAMPMODE = "h"
    if "--bar" in sys.argv:
        STAMPMODE = "bar"
    args = [a for a in sys.argv[1:] if not a.startswith("--")]
    text, ec, eh = generate()
    path = args[0] if args else f"cdna_kernels/{NAME}.s"
    open(path, "w").write(HEADER + text + FOOTER)
    cnt = lambda e: sum(1 for l in e.out if l.startswith("    ") and not l.strip().startswith(";"))
    print("instructions C:", cnt(ec), "H:", cnt(eh))
```

```python
import copy
import struct
import sys

from emit import Emitter, rn, rng

NAME = "standalone__seq2seq_rnn_t_joint__speech"
NWG = 250
NGRID = 252
STAMPS = False
STAMPMODE = "front"
import os
X_NOSTORE = "X_NOSTORE" in os.environ
X_NOMPROD = "X_NOMPROD" in os.environ
X_NOPPROD = "X_NOPPROD" in os.environ
X_PRIO = os.environ.get("X_PRIO", "1")
X_NOH = os.environ.get("X_NOH", "")
X_SLACK = int(os.environ.get("X_SLACK", "2"))
X_NOROT = "X_NOROT" in os.environ
X_LAT = float(os.environ.get("X_LAT", "900"))
X_C1 = os.environ.get("X_C1", "")
X_NOPUB = "X_NOPUB" in os.environ
WS_OFF = 1 << 20
WO_SPLIT = [int(x) for x in os.environ.get("WO_SPLIT", "0,0").split(",")]
WO_NFL = int(os.environ.get("WO_NFL", "4"))
WO_B5 = int(os.environ.get("WO_B5", "7"))
X_NOLOOPST = "X_NOLOOPST" in os.environ
X_NOEPI = "X_NOEPI" in os.environ
JD = int(os.environ.get("JD", "3"))
X_FOLD = "X_FOLD" in os.environ
PROWS = int(os.environ.get("PROWS", "4"))
ST0 = int(os.environ.get("ST0", "14"))
STD = int(os.environ.get("STD", "4"))
AHEAD = int(os.environ.get("AHEAD", "1"))
PUMP_EVERY = int(os.environ.get("PUMP_EVERY", "14"))
WO_LATE = int(os.environ.get("WO_LATE", "8"))
X_RT = "X_RT" in os.environ
B4_AT = int(os.environ.get("B4_AT", "26"))

XSL = 17408
ZROW = 3 * XSL + 131 * 128
RING = 69632
EG = 135168
FLAG = 143360
J2 = 143392
DUMMY = 160768
LDS_BYTES = 161792
HROW = 528
HEVEN = 37
FB = 36864
EFROW = 1040
JB = [33280, 50176, J2]
OROW = 144
TBSZ = 32 * OROW

SX, SW1, SW2, SG, SWF, SWG, SWO, SOUT = 8, 12, 16, 20, 24, 28, 32, 36
S_W, S_RING, S_SOFF, S_B, S_T0, S_D, S_OS, S_OBASE, S_FLAG, S_T1, S_T2, S_LIM, S_CNT, S_W128 = \
    "s56", "s57", "s58", "s59", "s60", "s61", "s62", "s63", "s64", "s65", "s66", "s67", "s68", "s69"

ACCOFF = 160
A0 = 256

VL = 1
T = list(range(2, 10))
VW0, VW1 = 10, 11
VTR = [14, 15]
VXB = [[18 + 4 * t + k for k in range(4)] for t in range(3)]
VXH = [[30 + 4 * t + k for k in range(4)] for t in range(3)]
VHW, VHH, VHR, VFW, VEFW, VC1, VMAX, VOS, VEFR, VEGR, VEGW, VGR = range(42, 54)
ACC = 56
HACC = 120
TMP = 128
KEEPA = TMP
FBUF = A0
VS = 8
BFR = A0 + 64
KEEPB = A0 + 88
RS = 8
PEG = ACC
PEF = ACC + 32
PWK = ACC + 40
PPK = ACC + 48
PRB = ACC + 52
PJW = [18, 19, 20]
POR = [21, 22, 23]
VWO0, VWO1 = 12, 13
VTRO = [16, 17]
HVX = [18, 19, 20, 21, 22]
HVP, HVMAX, HC, MEFR, MEGR, MOR, MOS = range(23, 30)
MJR = [30, 31]
MJW = [33, 34, 35]
MOW = 36
MACC = 40
MPO = 72
MOUT = 72
MEG = 104
MEF = 112
MWK = 10
MPK = 22
MBF = [120, 124, 18, 4]
WO_DEST = [A0 + 8 * i for i in range(12)] + [128 + 8 * i for i in range(4)]
HRS = 2

LOG2E = 1.4426950408889634
GC0 = -2.0 * 0.7978845608028654 * LOG2E
GC1 = GC0 * 0.044715
TSC = 2.0 * LOG2E


def f32(x):
    return "0x%08x" % struct.unpack("<I", struct.pack("<f", x))[0]


class Stream:
    LAT = X_LAT
    RATE = 140.0

    def __init__(self, e, rs, vs, fbuf):
        self.e = e
        self.rs, self.vs, self.fbuf = rs, vs, fbuf
        self.units = []
        self.du = self.tu = self.cu = 0
        self.dseq, self.tseq, self.arr = {}, {}, {}
        self.last_arr = 0.0
        self.tr_limit = 10 ** 9
        self.slot_of = {}
        self.free = [fbuf + 8 * i for i in range(vs)]
        self.released = 0

    def add_slots(self, regs):
        self.free += regs

    def _release(self):
        while self.released < self.cu:
            d = self.slot_of[self.released]
            if d not in self.retired:
                self.free.append(d)
            self.released += 1

    retired = set()

    def add(self, srd, soff, wo_idx=None):
        self.units.append((srd, soff, wo_idx))

    def dest(self, u):
        return self.slot_of[u]

    def can_dma(self):
        u = self.du
        slack = X_SLACK if self.rs > 2 else 1
        return u < len(self.units) and (u < self.rs or u - self.rs <= self.tu - slack)

    def do_dma(self):
        e, u = self.e, self.du
        srd, soff, wo = self.units[u]
        if u >= self.rs:
            e.wait(lseq=self.tseq[u - self.rs])
        e.salu(f"s_add_u32 m0, {S_RING}, {(u % self.rs) * 2048}", m0=True)
        if isinstance(soff, tuple):
            e.salu(f"s_add_u32 {S_SOFF}, {soff[0]}, {soff[1]}")
        else:
            e.salu(f"s_mov_b32 {S_SOFF}, {soff}")
        if "nodma" in X_C1 and 12 <= u < 48:
            self.dseq[u] = 0
        else:
            e.dma(VWO0 if wo is not None else VW0, srd, S_SOFF)
            self.dseq[u] = e.dma(VWO1 if wo is not None else VW1, srd, S_SOFF, off=1024)
        self.last_arr = max(e.t + self.LAT, self.last_arr + self.RATE)
        self.arr[u] = self.last_arr
        self.du += 1

    def _dest_free(self, u):
        self._release()
        return len(self.free) > 0

    def can_tr(self, timed=True):
        u = self.tu
        if u >= self.du or u >= self.tr_limit or not self._dest_free(u):
            return False
        return (not timed) or self.arr[u] <= self.e.t

    def do_tr(self):
        e, u = self.e, self.tu
        wo = self.units[u][2]
        e.wait(vseq=self.dseq[u])
        e.t = max(e.t, self.arr[u])
        self._release()
        d = self.slot_of[u] = self.free.pop(0)
        va = VTRO if wo is not None else VTR
        for mt in range(2):
            for jj in range(2):
                self.tseq[u] = e.ds_read(2, d + 4 * mt + 2 * jj, va[mt], (u % self.rs) * 2048 + jj * 512, tr=True)
        self.tu += 1

    def pump(self, max_ops=2):
        n = 0
        while n < max_ops:
            if self.can_tr():
                self.do_tr()
            elif self.can_dma():
                self.do_dma()
            else:
                break
            n += 1

    def ensure(self, u):
        while self.tu <= u:
            while self.du <= self.tu:
                assert self.can_dma()
                self.do_dma()
            assert self.can_tr(timed=False), (u, self.tu, self.cu)
            self.do_tr()

    def state(self):
        return (self.du, self.tu, self.cu, dict(self.dseq), dict(self.tseq), dict(self.arr), self.last_arr, self.tr_limit)

    def restore(self, s):
        (self.du, self.tu, self.cu, self.dseq, self.tseq, self.arr, self.last_arr, self.tr_limit) = \
            (s[0], s[1], s[2], dict(s[3]), dict(s[4]), dict(s[5]), s[6], s[7])


def interleave(mains, fillers):
    n = len(mains)
    k = 0
    for i, m in enumerate(mains):
        m()
        upto = (len(fillers) * (i + 1) + n - 1) // n
        while k < upto:
            fillers[k]()
            k += 1


def merge(a, b):
    out = []
    ia = ib = 0
    na, nb = len(a), len(b)
    while ia < na or ib < nb:
        if ib >= nb or (ia < na and ia * max(nb, 1) <= ib * max(na, 1)):
            out.append(a[ia]); ia += 1
        else:
            out.append(b[ib]); ib += 1
    return out


class Stamper:
    def __init__(self, e):
        self.e, self.n = e, 0

    def __call__(self, tag="front"):
        if not STAMPS or (tag != STAMPMODE and self.n > 0) or self.n >= 14:
            return
        e = self.e
        e.wait_all_lds()
        e.salu(f"{'s_memrealtime' if X_RT else 's_memtime'} s[{70 + 2 * self.n}:{71 + 2 * self.n}]")
        e.salu("s_waitcnt lgkmcnt(0)")
        self.n += 1

    def loop_top(self):
        if not STAMPS or X_NOLOOPST:
            return
        e = self.e
        e.salu("s_memtime s[98:99]")
        e.salu("s_waitcnt lgkmcnt(0)")
        e.salu("s_mov_b32 s100, s98")

    def loop_pre_barrier(self):
        if not STAMPS or X_NOLOOPST:
            return
        e = self.e
        e.wait_all_lds()
        e.salu("s_memtime s[98:99]")
        e.salu("s_waitcnt lgkmcnt(0)")
        e.salu("s_sub_u32 s98, s98, s100")
        e.salu("s_add_u32 s101, s101, s98")

    def dump(self, helper):
        if not STAMPS:
            return
        e = self.e
        e.salu("s_load_dwordx2 s[40:41], s[0:1], 72")
        e.salu("s_waitcnt lgkmcnt(0)")
        e.salu("s_and_b32 s41, s41, 0xffff")
        e.salu("s_mov_b32 s42, 131072")
        e.salu("s_mov_b32 s43, 0x20000")
        e.salu(f"s_lshl_b32 {S_T1}, s2, 3")
        e.salu(f"s_add_u32 {S_T1}, {S_T1}, {S_W}")
        if helper:
            e.salu(f"s_add_u32 {S_T1}, {S_T1}, 4")
        e.salu(f"s_lshl_b32 {S_T1}, {S_T1}, 6")
        e.valu(f"v_mov_b32 {rn(T[1])}, 0", [T[1]], [])
        for i in range(16):
            if i == 15:
                e.salu("s_add_u32 s101, s101, s70")
                e.valu(f"v_mov_b32 {rn(T[0])}, s101", [T[0]], [])
            else:
                e.valu(f"v_mov_b32 {rn(T[0])}, s{70 + 2 * min(i, self.n - 1)}", [T[0]], [])
            e.bstore(1, T[0], T[1], 40, S_T1, off=4 * i)


def V(e):
    return lambda text, w=(), r=(), **kw: e.valu(text, w, r, **kw)


def common_prologue(e):
    v = V(e)
    e.salu(f"s_cmp_ge_u32 s2, {NGRID}")
    e.salu("s_cbranch_scc1 L_end")
    e.salu("s_load_dwordx16 s[40:55], s[0:1], 0")
    v(f"v_and_b32 {rn(VL)}, 63, v0", [VL], [0])
    v(f"v_lshrrev_b32 {rn(T[0])}, 6, v0", [T[0]], [0])
    e.rfl(S_CNT, T[0])
    e.salu(f"s_and_b32 {S_W}, {S_CNT}, 3")
    e.salu(f"s_lshl_b32 {S_W128}, {S_W}, 7")
    e.salu(f"s_lshl_b32 {S_OBASE}, s2, 17")
    t0, t1, t2 = T[:3]
    L = rn(VL)
    v(f"v_lshrrev_b32 {rn(t0)}, 3, {L}", [t0], [VL])
    v(f"v_lshlrev_b32 {rn(t0)}, 9, {rn(t0)}", [t0], [t0])
    v(f"v_add_u32 {rn(t0)}, {S_W128}, {rn(t0)}", [t0], [t0])
    v(f"v_and_b32 {rn(t1)}, 7, {L}", [t1], [VL])
    v(f"v_lshrrev_b32 {rn(t2)}, 2, {L}", [t2], [VL])
    v(f"v_and_b32 {rn(t2)}, 4, {rn(t2)}", [t2], [t2])
    v(f"v_xor_b32 {rn(t2)}, {rn(t1)}, {rn(t2)}", [t2], [t1, t2])
    v(f"v_lshl_add_u32 {rn(VW0)}, {rn(t2)}, 4, {rn(t0)}", [VW0], [t2, t0], vop3=True)
    v(f"v_add_u32 {rn(VW1)}, 3072, {rn(VW0)}", [VW1], [VW0])
    sizes = [16384000, 393216, 393216, 8192, 131072, 131072, 131072, 32768000]
    for i, srd in enumerate([SX, SW1, SW2, SG, SWF, SWG, SWO, SOUT]):
        e.salu(f"s_mov_b32 s{srd + 2}, {sizes[i]}")
        e.salu(f"s_mov_b32 s{srd + 3}, 0x20000")
    e.salu("s_waitcnt lgkmcnt(0)")
    for i, srd in enumerate([SX, SW1, SW2, SG, SWF, SWG, SWO, SOUT]):
        e.salu(f"s_mov_b32 s{srd}, s{40 + 2 * i}")
        e.salu(f"s_and_b32 s{srd + 1}, s{41 + 2 * i}, 0xffff")
    e.salu("s_lshr_b32 s48, s2, 3")
    for i in range(4):
        e.salu(f"s_add_u32 s{44 + i}, {0 if X_NOROT else 's48'}, {i}")
        e.salu(f"s_and_b32 s{44 + i}, s{44 + i}, 3")
        e.salu(f"s_lshl_b32 s{44 + i}, s{44 + i}, 7")
    e.salu(f"s_cmp_ge_u32 {S_CNT}, 4")
    e.salu("s_cbranch_scc1 L_helper")
    e.salu(f"s_cmp_ge_u32 s2, {NWG}")
    e.salu("s_cbranch_scc1 L_end")


def perm_q(e, dst, q, ta, tb):
    v = V(e)
    v(f"v_and_b32 {rn(ta)}, 1, {rn(q)}", [ta], [q])
    v(f"v_bfe_u32 {rn(tb)}, {rn(q)}, 1, 1", [tb], [q], vop3=True)
    v(f"v_lshl_or_b32 {rn(ta)}, {rn(ta)}, 1, {rn(tb)}", [ta], [ta, tb], vop3=True)
    v(f"v_and_or_b32 {rn(dst)}, {rn(q)}, 4, {rn(ta)}", [dst], [q, ta], vop3=True)


def tr_consts(e, wo):
    v = V(e)
    t0, t1, t2, t3, t4, t5, t6, t7 = T
    L = rn(VL)
    v(f"v_lshrrev_b32 {rn(t0)}, 4, {L}", [t0], [VL])
    v(f"v_bfe_u32 {rn(t1)}, {L}, 2, 2", [t1], [VL], vop3=True)
    v(f"v_and_b32 {rn(t2)}, 3, {L}", [t2], [VL])
    v(f"v_and_b32 {rn(t3)}, 1, {rn(t0)}", [t3], [t0])
    v(f"v_lshl_or_b32 {rn(t2)}, {rn(t3)}, 2, {rn(t2)}", [t2], [t3, t2], vop3=True)
    v(f"v_lshrrev_b32 {rn(t3)}, 1, {rn(t0)}", [t3], [t0])
    v(f"v_lshlrev_b32 {rn(t3)}, 10, {rn(t3)}", [t3], [t3])
    v(f"v_lshl_add_u32 {rn(t3)}, {rn(t1)}, 7, {rn(t3)}", [t3], [t1, t3], vop3=True)
    v(f"v_add_u32 {rn(t3)}, {S_RING}, {rn(t3)}", [t3], [t3])
    v(f"v_lshrrev_b32 {rn(t1)}, 1, {rn(t1)}", [t1], [t1])
    if not wo:
        perm_q(e, t4, t2, t6, t7)
        v(f"v_lshlrev_b32 {rn(t4)}, 3, {rn(t4)}", [t4], [t4])
        v(f"v_lshl_or_b32 {rn(t4)}, {rn(t1)}, 6, {rn(t4)}", [t4], [t1, t4], vop3=True)
        v(f"v_add_u32 {rn(VTR[0])}, {rn(t3)}, {rn(t4)}", [VTR[0]], [t3, t4])
        v(f"v_xor_b32 {rn(t4)}, 64, {rn(t4)}", [t4], [t4])
        v(f"v_add_u32 {rn(VTR[1])}, {rn(t3)}, {rn(t4)}", [VTR[1]], [t3, t4])
    else:
        v(f"v_and_b32 {rn(t4)}, 1, {rn(t2)}", [t4], [t2])
        v(f"v_lshlrev_b32 {rn(t4)}, 6, {rn(t4)}", [t4], [t4])
        v(f"v_lshrrev_b32 {rn(t5)}, 1, {rn(t2)}", [t5], [t2])
        v(f"v_lshl_or_b32 {rn(t4)}, {rn(t5)}, 3, {rn(t4)}", [t4], [t5, t4], vop3=True)
        v(f"v_lshl_or_b32 {rn(t4)}, {rn(t1)}, 5, {rn(t4)}", [t4], [t1, t4], vop3=True)
        v(f"v_add_u32 {rn(VTRO[0])}, {rn(t3)}, {rn(t4)}", [VTRO[0]], [t3, t4])
        v(f"v_xor_b32 {rn(t4)}, 32, {rn(t4)}", [t4], [t4])
        v(f"v_add_u32 {rn(VTRO[1])}, {rn(t3)}, {rn(t4)}", [VTRO[1]], [t3, t4])


def store_consts(e, vor, vos, ring_sgpr):
    v = V(e)
    t2, t3, t4 = T[2:5]
    L = rn(VL)
    v(f"v_lshrrev_b32 {rn(t2)}, 3, {L}", [t2], [VL])
    v(f"v_and_b32 {rn(t3)}, 7, {L}", [t3], [VL])
    v(f"v_lshlrev_b32 {rn(t3)}, 4, {rn(t3)}", [t3], [t3])
    v(f"v_mul_u32_u24 {rn(t4)}, {OROW}, {rn(t2)}", [t4], [t2])
    v(f"v_add3_u32 {rn(vor)}, {rn(t4)}, {rn(t3)}, {ring_sgpr}", [vor], [t4, t3], vop3=True)
    v(f"v_lshl_add_u32 {rn(t4)}, {rn(t2)}, 9, {rn(t3)}", [t4], [t2, t3], vop3=True)
    v(f"v_add_u32 {rn(vos)}, {S_W128}, {rn(t4)}", [vos], [t4])


def prod_consts(e, vefr, vegr, vjw, uu0):
    v = V(e)
    t0, t1, t2, t3 = T[:4]
    L = rn(VL)
    v(f"v_and_b32 {rn(t0)}, 31, {L}", [t0], [VL])
    v(f"v_lshrrev_b32 {rn(t1)}, 5, {L}", [t1], [VL])
    e.salu(f"s_mul_i32 {S_T1}, {S_W}, {EFROW}")
    v(f"v_lshlrev_b32 {rn(t2)}, 4, {rn(t0)}", [t2], [t0])
    v(f"v_add_u32 {rn(vefr)}, {S_T1}, {rn(t2)}", [vefr], [t2])
    v(f"v_lshl_add_u32 {rn(t3)}, {rn(t1)}, 12, {rn(t2)}", [t3], [t1, t2], vop3=True)
    v(f"v_add_u32 {rn(vegr)}, {EG + uu0 * 1024}, {rn(t3)}", [vegr], [t3])
    e.salu(f"s_mul_i32 {S_T1}, {S_W}, {8 * HROW}")
    v(f"v_mul_u32_u24 {rn(t3)}, {4 * HROW}, {rn(t1)}", [t3], [t1])
    v(f"v_add3_u32 {rn(t3)}, {rn(t3)}, {rn(t2)}, {S_T1}", [t3], [t3, t2], vop3=True)
    for i in range(3):
        v(f"v_add_u32 {rn(vjw[i])}, {JB[i] + uu0 * HROW}, {rn(t3)}", [vjw[i]], [t3])


def c_consts_ge(e):
    v = V(e)
    t0, t1, t2, t3, t4, t5, t6, t7 = T
    L = rn(VL)
    v(f"v_and_b32 {rn(t0)}, 15, {L}", [t0], [VL])
    v(f"v_lshrrev_b32 {rn(t1)}, 4, {L}", [t1], [VL])
    v(f"v_and_b32 {rn(t2)}, 1, {rn(t0)}", [t2], [t0])
    v(f"v_lshl_or_b32 {rn(t2)}, {rn(t2)}, 2, {rn(t1)}", [t2], [t2, t1], vop3=True)
    perm_q(e, t4, t2, t6, t7)
    v(f"v_lshlrev_b32 {rn(t3)}, 3, {rn(t4)}", [t3], [t4])
    v(f"v_add_u32 {rn(t3)}, {S_W128}, {rn(t3)}", [t3], [t3])
    v(f"v_mov_b32 {rn(t5)}, {DUMMY}", [t5], [])
    v(f"v_cmp_gt_u32 vcc, 2, {rn(t0)}", [], [t0], sw=["vcc"])
    v(f"v_cndmask_b32 {rn(VHH)}, {rn(t5)}, {rn(t3)}, vcc", [VHH], [t5, t3], sr=["vcc"])
    v(f"v_mov_b32 {rn(VMAX)}, 0", [VMAX], [])
    e.salu(f"s_lshl_b32 {S_T1}, {S_W}, 13")
    e.salu(f"s_add_u32 {S_T1}, {S_T1}, {FB}")
    v(f"v_lshlrev_b32 {rn(t3)}, 4, {L}", [t3], [VL])
    v(f"v_add_u32 {rn(VGR)}, {S_T1}, {rn(t3)}", [VGR], [t3])
    e.salu(f"s_lshl_b32 {S_T1}, {S_W}, 12")
    e.salu(f"s_add_u32 {S_T1}, {S_T1}, {J2}")
    v(f"v_add_u32 {rn(VEGW)}, {S_T1}, {rn(t3)}", [VEGW], [t3])


def c_consts_ops(e):
    v = V(e)
    t0, t1, t2, t3, t4, t5, t6, t7 = T
    L = rn(VL)
    ops = []
    a = lambda *args, **kw: ops.append(lambda: v(*args, **kw))
    a(f"v_and_b32 {rn(t0)}, 31, {L}", [t0], [VL])
    a(f"v_lshrrev_b32 {rn(t1)}, 5, {L}", [t1], [VL])
    for tap, r0 in enumerate((66, 1, 67)):
        a(f"v_add_u32 {rn(t4)}, {r0}, {rn(t0)}", [t4], [t0])
        a(f"v_bfe_u32 {rn(t5)}, {rn(t4)}, 1, 3", [t5], [t4], vop3=True)
        a(f"v_xor_b32 {rn(t5)}, {rn(t1)}, {rn(t5)}", [t5], [t1, t5])
        a(f"v_lshlrev_b32 {rn(t4)}, 7, {rn(t4)}", [t4], [t4])
        a(f"v_lshl_add_u32 {rn(VXB[tap][0])}, {rn(t5)}, 4, {rn(t4)}", [VXB[tap][0]], [t5, t4], vop3=True)
        for k in range(1, 4):
            a(f"v_xor_b32 {rn(VXB[tap][k])}, {32 * k}, {rn(VXB[tap][0])}", [VXB[tap][k]], [VXB[tap][0]])
    a(f"v_mul_u32_u24 {rn(t2)}, {HROW}, {rn(t0)}", [t2], [t0])
    a(f"v_lshl_add_u32 {rn(VHR)}, {rn(t1)}, 4, {rn(t2)}", [VHR], [t1, t2], vop3=True)
    a(f"v_add_u32 {rn(VFW)}, {S_W128}, {rn(VHR)}", [VFW], [VHR])
    a(f"v_and_b32 {rn(t2)}, 1, {rn(t0)}", [t2], [t0])
    a(f"v_cmp_eq_u32 vcc, 1, {rn(t2)}", [], [t2], sw=["vcc"])
    a(f"v_mov_b32 {rn(t3)}, 1", [t3], [])
    a(f"v_cndmask_b32 {rn(t3)}, {HEVEN}, {rn(t3)}, vcc", [t3], [t3], sr=["vcc"])
    a(f"v_lshrrev_b32 {rn(t2)}, 1, {rn(t0)}", [t2], [t0])
    a(f"v_add_u32 {rn(t2)}, {rn(t2)}, {rn(t3)}", [t2], [t2, t3])
    a(f"v_mul_u32_u24 {rn(t2)}, {HROW}, {rn(t2)}", [t2], [t2])
    a(f"v_lshl_add_u32 {rn(t2)}, {rn(t1)}, 4, {rn(t2)}", [t2], [t1, t2], vop3=True)
    a(f"v_add_u32 {rn(VHW)}, {S_W128}, {rn(t2)}", [VHW], [t2])
    a(f"v_mul_u32_u24 {rn(t2)}, {EFROW}, {rn(t0)}", [t2], [t0])
    a(f"v_lshl_add_u32 {rn(t2)}, {rn(t1)}, 4, {rn(t2)}", [t2], [t1, t2], vop3=True)
    a(f"v_add_u32 {rn(VEFW)}, {S_W128}, {rn(t2)}", [VEFW], [t2])
    a(f"v_and_b32 {rn(t6)}, 15, {L}", [t6], [VL])
    a(f"v_lshrrev_b32 {rn(t7)}, 4, {L}", [t7], [VL])
    a(f"v_and_b32 {rn(t2)}, 1, {rn(t7)}", [t2], [t7])
    a(f"v_lshrrev_b32 {rn(t3)}, 1, {rn(t7)}", [t3], [t7])
    a(f"v_mov_b32 {rn(VC1)}, 133", [VC1], [])
    a(f"v_cmp_eq_u32 vcc, {rn(t6)}, {rn(t2)}", [], [t6, t2], sw=["vcc"])
    for tap, rh in enumerate((65, 0, 66)):
        a(f"v_mov_b32 {rn(t5)}, {rh}", [t5], [])
        a(f"v_cndmask_b32 {rn(t4)}, {rn(VC1)}, {rn(t5)}, vcc", [t4], [VC1, t5], sr=["vcc"])
        a(f"v_bfe_u32 {rn(t5)}, {rn(t4)}, 1, 3", [t5], [t4], vop3=True)
        a(f"v_xor_b32 {rn(t5)}, {rn(t3)}, {rn(t5)}", [t5], [t3, t5])
        a(f"v_lshlrev_b32 {rn(t4)}, 7, {rn(t4)}", [t4], [t4])
        a(f"v_lshl_add_u32 {rn(VXH[tap][0])}, {rn(t5)}, 4, {rn(t4)}", [VXH[tap][0]], [t5, t4], vop3=True)
        for k in range(1, 4):
            a(f"v_xor_b32 {rn(VXH[tap][k])}, {32 * k}, {rn(VXH[tap][0])}", [VXH[tap][k]], [VXH[tap][0]])
    a(f"v_mov_b32 {rn(VC1)}, {f32(GC1)}", [VC1], [])
    return ops


def gelu_list(e, regs, packs, tmps, vc1=None):
    VC1 = vc1 if vc1 is not None else globals()['VC1']
    v = V(e)
    ops = []
    a = lambda *args, **kw: ops.append(lambda: v(*args, **kw))
    for g0 in range(0, len(regs), 4):
        xs = regs[g0:g0 + 4]
        ts = tmps[:len(xs)]
        for x, t in zip(xs, ts):
            a(f"v_mul_f32 {rn(t)}, {rn(x)}, {rn(x)}", [t], [x])
        for x, t in zip(xs, ts):
            a(f"v_fmaak_f32 {rn(t)}, {rn(t)}, {rn(VC1)}, {f32(GC0)}", [t], [t, VC1], vop3=True)
        for x, t in zip(xs, ts):
            a(f"v_mul_f32 {rn(t)}, {rn(x)}, {rn(t)}", [t], [x, t])
        for x, t in zip(xs, ts):
            a(f"v_exp_f32 {rn(t)}, {rn(t)}", [t], [t], trans=True)
        for x, t in zip(xs, ts):
            a(f"v_add_f32 {rn(t)}, 1.0, {rn(t)}", [t], [t])
        for x, t in zip(xs, ts):
            a(f"v_rcp_f32 {rn(t)}, {rn(t)}", [t], [t], trans=True)
        for x, t in zip(xs, ts):
            a(f"v_mul_f32 {rn(x)}, {rn(x)}, {rn(t)}", [x], [x, t])
        for i in range(0, len(xs), 2):
            p = packs[(g0 + i) // 2]
            a(f"v_cvt_pk_bf16_f32 {rn(p)}, {rn(xs[i])}, {rn(xs[i + 1])}", [p], [xs[i], xs[i + 1]], vop3=True)
    return ops


def run_with_pump(ops, pump, every=30):
    for i, f in enumerate(ops):
        f()
        if i % every == every - 1:
            pump()


def exp_stage(e, src, keep, dst, n, vmax, pump=None):
    v = V(e)
    for i in range(n):
        v(f"v_mul_f32 {rn(keep + i)}, {f32(TSC)}, {rn(src + i)}", [keep + i], [src + i], vop3=True)
    for i in range(n):
        v(f"v_exp_f32 {rn(dst + i)}, {rn(keep + i)}", [dst + i], [keep + i], trans=True)
        if i % 2 == 1:
            v(f"v_max3_f32 {rn(vmax)}, |{rn(keep + i - 1)}|, |{rn(keep + i)}|, {rn(vmax)}",
              [vmax], [keep + i - 1, keep + i, vmax], vop3=True)
        if pump and i % 8 == 7:
            pump()


def publish_flag(e, vmax, slot_extra):
    e.salu(f"s_mov_b32 {S_LIM}, {f32(125.0)}")
    e.valu(f"v_cmp_lt_f32 vcc, {S_LIM}, {rn(vmax)}", [], [vmax], sw=["vcc"])
    e.nop(2)
    e.salu("s_cmp_lg_u64 vcc, 0")
    e.salu(f"s_cselect_b32 {S_FLAG}, 1, 0")
    e.salu(f"s_lshl_b32 {S_T1}, {S_W}, 2")
    e.salu(f"s_add_u32 {S_T1}, {S_T1}, {FLAG + slot_extra}")
    e.valu(f"v_mov_b32 {rn(T[0])}, {S_FLAG}", [T[0]], [])
    e.valu(f"v_mov_b32 {rn(T[1])}, {S_T1}", [T[1]], [])
    e.ds_write(1, T[1], T[0])


def flag_check(e, label):
    v = V(e)
    v(f"v_mov_b32 {rn(T[1])}, {FLAG}", [T[1]], [])
    e.ds_read(4, T[2], T[1])
    v(f"v_or3_b32 {rn(T[0])}, {rn(T[2])}, {rn(T[3])}, {rn(T[4])}", [T[0]], [T[2], T[3], T[4]], vop3=True)
    v(f"v_or_b32 {rn(T[0])}, {rn(T[0])}, {rn(T[5])}", [T[0]], [T[0], T[5]])
    e.ds_read(4, T[2], T[1], 16)
    v(f"v_or3_b32 {rn(T[0])}, {rn(T[2])}, {rn(T[3])}, {rn(T[0])}", [T[0]], [T[2], T[3], T[0]], vop3=True)
    v(f"v_or3_b32 {rn(T[0])}, {rn(T[4])}, {rn(T[5])}, {rn(T[0])}", [T[0]], [T[4], T[5], T[0]], vop3=True)
    e.rfl(S_FLAG, T[0])
    e.salu(f"s_cmp_lg_u32 {S_FLAG}, 0")
    e.salu(f"s_cbranch_scc1 {label}")


def ef_read_ops(e, vefr, EF):
    return [lambda: e.ds_read(4, EF, vefr, 0),
            lambda: e.ds_read(4, EF + 4, vefr, 512),
            lambda: e.valu(f"v_add_u32 {rn(vefr)}, {4 * EFROW}, {rn(vefr)}", [vefr], [vefr])]


def produce_ops(e, slow, vefr, vjw, EGb, EF, WK, PK, nrows):
    v = V(e)
    ops = []
    for uu in range(nrows):
        for h in range(2):
            els = range(4 * h, 4 * h + 4)
            for i in els:
                if slow:
                    ops.append(lambda i=i, uu=uu: v(
                        f"v_add_f32 {rn(WK + i)}, {rn(EF + i)}, {rn(EGb + 8 * uu + i)}",
                        [WK + i], [EF + i, EGb + 8 * uu + i]))
                else:
                    ops.append(lambda i=i, uu=uu: v(
                        f"v_fma_f32 {rn(WK + i)}, {rn(EF + i)}, {rn(EGb + 8 * uu + i)}, -0.5",
                        [WK + i], [EF + i, EGb + 8 * uu + i], vop3=True))
        if uu == nrows - 1:
            ops += ef_read_ops(e, vefr, EF)
        for h in range(2):
            els = range(4 * h, 4 * h + 4)
            if slow:
                for i in els:
                    ops.append(lambda i=i: v(f"v_exp_f32 {rn(WK + i)}, {rn(WK + i)}", [WK + i], [WK + i], trans=True))
                for i in els:
                    ops.append(lambda i=i: v(f"v_add_f32 {rn(WK + i)}, 1.0, {rn(WK + i)}", [WK + i], [WK + i]))
            for i in els:
                ops.append(lambda i=i: v(f"v_rcp_f32 {rn(WK + i)}, {rn(WK + i)}", [WK + i], [WK + i], trans=True))
            for i in (els if not X_FOLD else ()):
                if slow:
                    ops.append(lambda i=i: v(f"v_fma_f32 {rn(WK + i)}, {rn(WK + i)}, -2.0, 1.0",
                                             [WK + i], [WK + i], vop3=True))
                else:
                    ops.append(lambda i=i: v(f"v_add_f32 {rn(WK + i)}, 1.0, {rn(WK + i)}", [WK + i], [WK + i]))
            for i in (4 * h, 4 * h + 2):
                ops.append(lambda i=i: v(
                    f"v_cvt_pk_bf16_f32 {rn(PK + i // 2)}, {rn(WK + i)}, {rn(WK + i + 1)}",
                    [PK + i // 2], [WK + i, WK + i + 1], vop3=True))
        ops.append(lambda uu=uu: e.ds_write(4, vjw, PK, uu * HROW))
    return ops


SJ = ["s49", "s50", "s51"]
STB = ["s45", "s46", "s47"]


def init_steps(e):
    for i in range(3):
        e.salu(f"s_mov_b32 {SJ[i]}, {(JB[(i + 1) % 3] - JB[i]) & 0xffffffff}")


def rot_steps(e):
    def f():
        for r in (SJ,):
            e.salu(f"s_mov_b32 {S_T2}, {r[0]}")
            e.salu(f"s_mov_b32 {r[0]}, {r[1]}")
            e.salu(f"s_mov_b32 {r[1]}, {r[2]}")
            e.salu(f"s_mov_b32 {r[2]}, {S_T2}")
    return [f]


def step(e, reg, sgpr):
    return lambda: e.valu(f"v_add_u32 {rn(reg)}, {sgpr}, {rn(reg)}", [reg], [reg])


def rotate3(e, regs, tmp):
    v = V(e)
    return [lambda: v(f"v_mov_b32 {rn(tmp)}, {rn(regs[0])}", [tmp], [regs[0]]),
            lambda: v(f"v_mov_b32 {rn(regs[0])}, {rn(regs[1])}", [regs[0]], [regs[1]]),
            lambda: v(f"v_mov_b32 {rn(regs[1])}, {rn(regs[2])}", [regs[1]], [regs[2]]),
            lambda: v(f"v_mov_b32 {rn(regs[2])}, {rn(tmp)}", [regs[2]], [tmp])]


def readback_store_ops(e, vor, vos, regs):
    ops = []
    for i in range(4):
        ops.append(lambda i=i: e.ds_read(4, regs + 4 * i, vor, i * 8 * OROW))
    for i in range(4):
        def st(i=i):
            e.bstore(4, regs + 4 * i, vos, SOUT, S_OS)
            e.salu(f"s_add_u32 {S_OS}, {S_OS}, 4096")
        ops.append(st)
    return ops


def loop_fence(e):
    e.pend = {r: p for r, p in e.pend.items() if p[0] == 'v'}
    e.ldone = e.lseq


def gen_compute(e):
    v = V(e)
    stamp = Stamper(e)
    st = Stream(e, RS, VS, FBUF)
    for s in range(4):
        for tap in range(3):
            for k in range(4):
                st.add(SW1, (f"s{44 + s}", tap * 131072 + 16 * k * 512))
    kord = [[4 * w + 2 * half + j for w in range(4) for j in range(2)] for half in range(2)]
    c2 = [(tap, kc) for half in range(2) for tap in range(3) for kc in kord[half]]
    cf = [kc for half in range(2) for kc in kord[half]]
    for tap, kc in c2:
        st.add(SW2, (tap * 16 + kc) * 8192)
    for kc in cf:
        st.add(SWF, kc * 8192)
    U_1, U_2, U_F = 0, 48, 96

    stamp()
    e.salu(f"s_lshl_b32 {S_RING}, {S_W}, 14")
    e.salu(f"s_add_u32 {S_RING}, {S_RING}, {RING}")
    for i in range(4):
        e.salu(f"s_lshl_b32 s{44 + i}, s{44 + i}, 8")
    for _ in range(RS):
        st.do_dma()
    tr_consts(e, False)
    c_consts_ge(e)
    for f in c_consts_ops(e):
        f()

    steps = [(s, tap, k) for s in range(4) for tap in range(3) for k in range(4)]

    def b_reads1(i):
        s, tap, k = steps[i]
        base = BFR + 12 * (i % 2)
        return [lambda: e.ds_read(4, base, VXB[tap][k], s * XSL),
                lambda: e.ds_read(4, base + 4, VXB[tap][k], s * XSL + 4096),
                lambda: e.ds_read(4, base + 8, VXH[tap][k], s * XSL)]

    for i, (s, tap, k) in enumerate(steps):
        u = U_1 + i
        if i in (24, 36):
            stamp()
        if i in (0, 12):
            st.ensure(u)
            stamp("bar")
            e.raw("    s_barrier")
            stamp()
            stamp("bar")
            for f in b_reads1(i):
                f()
        st.ensure(u + (1 if "ahead" in X_C1 else 0))
        d = st.dest(u)
        bb = BFR + 12 * (i % 2)
        mains = []
        for nt in range(2):
            for mt in range(2):
                a = ACC + 16 * (2 * mt + nt)
                mains.append(lambda a=a, mt=mt, nt=nt: e.mfma(True, a, d + 4 * mt, bb + 4 * nt, a if i else None))
        for mt in range(2):
            a = HACC + 4 * mt
            mains.append(lambda a=a, mt=mt: e.mfma(False, a, d + 4 * mt, bb + 8, a if i else None))
        br = b_reads1(i + 1) if (i + 1 < 48 and i + 1 != 12) else []
        mains[0]()
        for f in br:
            f()
        mains[1]()
        st.pump(1)
        mains[2]()
        st.pump(1)
        mains[3]()
        if "nohalo" not in X_C1:
            mains[4]()
            mains[5]()
        st.cu += 1
    stamp()
    e.raw("    s_barrier")
    stamp()
    pump = lambda: st.pump(2)
    gt = rng(TMP + 24, 4)
    late2 = [lambda: prod_consts(e, VEFR, VEGR, PJW, 0), lambda: init_steps(e)]

    def epi1():
        ops = []
        for nt in range(2):
            a = ACC + 16 * nt
            pk = TMP + 8 * nt
            ops += gelu_list(e, rng(a, 16), rng(pk, 8), gt)
            for h in range(2):
                ops.append(lambda pk=pk, h=h, nt=nt: e.ds_write(4, VHW, pk + 4 * h, nt * 16 * HROW + 32 * h))
        ops += gelu_list(e, rng(HACC, 8), rng(TMP + 16, 4), gt)
        for mt in range(2):
            ops.append(lambda mt=mt: e.ds_write(2, VHH, TMP + 16 + 2 * mt, 64 * mt))
        return ops

    def epi2():
        ops = gelu_list(e, rng(ACC, 16), rng(TMP, 8), gt)
        for h in range(2):
            ops.append(lambda h=h: e.ds_write(4, VFW, TMP + 4 * h, FB + 32 * h))
        return ops

    def small_gemm(ubase, lo, hi, boff, acc, side=()):
        def bread(i):
            return lambda: e.ds_read(4, BFR + 4 * (i % 4), VHR, boff(i))
        bread(lo)()
        bread(lo + 1)()
        n = hi - lo
        for i in range(lo, hi):
            u = ubase + i
            st.ensure(min(u + AHEAD, len(st.units) - 1))
            while st.can_dma():
                st.do_dma()
            d = st.dest(u)
            mains = [lambda mt=mt: e.mfma(True, acc + 16 * mt, d + 4 * mt, BFR + 4 * (i % 4),
                                          acc + 16 * mt if i else None) for mt in range(2)]
            fill = []
            if i + 2 < hi:
                fill.append(bread(i + 2))
            fill += [lambda: st.pump(1), lambda: st.pump(1)]
            fill = merge(list(side[len(side) * (i - lo) // n:len(side) * (i - lo + 1) // n]), fill)
            interleave(mains, fill)
            st.cu += 1

    for q in range(8):
        e.ds_write(4, VGR, ACC + 32 + 4 * q, 1024 * q)
    e.barrier()
    extra = [ACC + 32 + 8 * i for i in range(4)]
    st.add_slots(extra + [KEEPB, BFR + 16])
    run_with_pump(epi1(), pump, every=PUMP_EVERY)
    e.barrier()
    stamp()
    tapoff = [0, HEVEN * HROW, HROW]
    boff2 = lambda i: tapoff[c2[i][0]] + 32 * c2[i][1]
    st.retired = set(extra)
    small_gemm(U_2, 0, 48, boff2, ACC, late2)
    assert all(st.slot_of[u] not in extra for u in range(st.cu, st.tu))
    st.free = [d for d in st.free if d not in extra]
    e.raw("    s_barrier")
    stamp()
    for q in range(4):
        e.ds_write(4, VEGW, ACC + 16 + 4 * q, 1024 * q)
    e.barrier()
    run_with_pump(epi2(), pump)
    e.barrier()
    stamp()
    bofff = lambda i: FB + 32 * cf[i]
    small_gemm(U_F, 0, 16, bofff, ACC + 32)
    exp_stage(e, ACC + 32, KEEPA, ACC, 32, VMAX)
    for mt in range(2):
        for h in range(2):
            for pl in range(2):
                e.ds_write(4, VEFW, ACC + 16 * mt + 8 * h + 4 * pl, 64 * mt + 32 * h + 512 * pl)
    publish_flag(e, VMAX, 0)
    e.barrier()
    stamp()
    flag_check(e, "L_c_slow")
    snap = (copy.deepcopy(e.pend), e.lseq, e.vseq, e.ldone, e.vdone)

    def out_stage(slow, tag):
        for uu in range(PROWS):
            for pl in range(2):
                e.ds_read(4, PEG + 8 * uu + 4 * pl, VEGR, uu * 1024 + pl * 512)
        for f in ef_read_ops(e, VEFR, PEF):
            f()
        for c in range(2):
            for f in produce_ops(e, slow, VEFR, PJW[c], PEG, PEF, PWK, PPK, PROWS):
                f()
        e.salu(f"s_mov_b32 {S_CNT}, 6")
        e.barrier()
        if not slow:
            stamp()
        loop_fence(e)
        if STAMPS:
            e.salu("s_mov_b32 s101, 0")
        e.label(f"L_c_loop{tag}")
        stamp.loop_top()
        ops = produce_ops(e, slow, VEFR, PJW[2], PEG, PEF, PWK, PPK, PROWS)
        for f in ops + [step(e, PJW[2], SJ[2])] + rot_steps(e):
            f()
        stamp.loop_pre_barrier()
        e.salu(f"s_sub_u32 {S_CNT}, {S_CNT}, 1")
        e.salu(f"s_cmp_lg_u32 {S_CNT}, 0")
        e.barrier()
        e.salu(f"s_cbranch_scc1 L_c_loop{tag}")
        if not slow:
            stamp()

    out_stage(False, "")
    if STAMPS:
        e.wait_all_vm()
    stamp()
    stamp.dump(False)
    e.salu("s_endpgm")

    e.label("L_c_slow")
    (e.pend, e.lseq, e.vseq, e.ldone, e.vdone) = snap
    e.wr.clear(); e.stw.clear(); e.sgpr_valu.clear()
    e.nop(8)
    e.barrier()
    for mt in range(2):
        for h in range(2):
            for pl in range(2):
                e.ds_write(4, VEFW, KEEPA + 16 * mt + 8 * h + 4 * pl, 64 * mt + 32 * h + 512 * pl)
    e.barrier()
    out_stage(True, "s")
    e.salu("s_endpgm")


def gen_helper(e):
    v = V(e)
    stamp = Stamper(e)
    t0, t1, t2, t3, t4, t5, t6, t7 = T
    L = rn(VL)
    SDBG, SWS = 40, 52
    HVG, HVEGW, HVST, GMAX = 39, 25, 24, 23
    RAW, NFL = MACC, 4
    GFR = MPO
    GEF = 88
    GACC, GKEEP = 104, 112
    e.label("L_helper")
    e.salu("s_setprio 3")
    stamp()
    e.salu(f"s_lshl_b32 {S_RING}, {S_W}, 12")
    e.salu(f"s_add_u32 {S_RING}, {S_RING}, {J2}")
    e.salu(f"s_cmp_ge_u32 s2, 125")
    e.salu(f"s_cselect_b32 {S_B}, 1, 0")
    e.salu(f"s_cmp_ge_u32 s2, {NWG}")
    e.salu("s_cbranch_scc1 L_h_setup2")
    v(f"v_lshlrev_b32 {rn(HVP)}, 6, {L}", [HVP], [VL])
    e.salu(f"s_lshl_b32 {S_LIM}, s48, 2")
    e.salu(f"s_add_u32 {S_LIM}, {S_LIM}, {S_W}")
    e.salu(f"s_lshl_b32 {S_LIM}, {S_LIM}, 12")
    for srd in (SW1, SW2, SWF, SWO):
        e.bload(1, 104, HVP, srd, S_LIM)
    e.salu(f"s_mul_i32 {S_T1}, {S_B}, 125")
    e.salu(f"s_sub_u32 {S_T0}, s2, {S_T1}")
    e.salu(f"s_lshl_b32 {S_T0}, {S_T0}, 7")
    e.salu(f"s_lshl_b32 {S_T1}, {S_W}, 3")
    e.salu(f"s_mul_i32 {S_CNT}, {S_B}, 16000")
    e.salu(f"s_lshl_b32 {S_D}, {S_W}, 10")
    v(f"v_mov_b32 {rn(HC)}, 133", [HC], [])
    v(f"v_bfrev_b32 {rn(HVMAX)}, 1", [HVMAX], [])
    v(f"v_lshrrev_b32 {rn(t6)}, 3, {L}", [t6], [VL])
    v(f"v_add_u32 {rn(t0)}, {S_T1}, {rn(t6)}", [t0], [t6])
    v(f"v_and_b32 {rn(t1)}, 7, {L}", [t1], [VL])
    xseq = {}

    def xconst(j):
        if j < 4:
            v(f"v_add_u32 {rn(t2)}, {32 * j}, {rn(t0)}", [t2], [t0])
        else:
            v(f"v_add_u32 {rn(t2)}, 128, {rn(t6)}", [t2], [t6])
        v(f"v_bfe_u32 {rn(t3)}, {rn(t2)}, 1, 3", [t3], [t2], vop3=True)
        v(f"v_xor_b32 {rn(t3)}, {rn(t1)}, {rn(t3)}", [t3], [t1, t3])
        v(f"v_lshlrev_b32 {rn(t4)}, 1, {rn(t2)}", [t4], [t2])
        v(f"v_cmp_lt_u32 vcc, 64, {rn(t2)}", [], [t2], sw=["vcc"])
        v(f"v_cndmask_b32 {rn(t5)}, 2, {rn(HC)}, vcc", [t5], [HC], sr=["vcc"])
        v(f"v_sub_u32 {rn(t4)}, {rn(t4)}, {rn(t5)}", [t4], [t4, t5])
        v(f"v_add_u32 {rn(t4)}, {S_T0}, {rn(t4)}", [t4], [t4])
        v(f"v_add_u32 {rn(t5)}, {S_CNT}, {rn(t4)}", [t5], [t4])
        v(f"v_lshlrev_b32 {rn(t5)}, 9, {rn(t5)}", [t5], [t5])
        v(f"v_lshl_add_u32 {rn(t5)}, {rn(t3)}, 4, {rn(t5)}", [t5], [t3, t5], vop3=True)
        if j < 4:
            v(f"v_cmp_gt_i32 vcc, 0, {rn(t4)}", [], [t4], sw=["vcc"])
        else:
            v(f"v_cmp_lt_u32 vcc, 130, {rn(t2)}", [], [t2], sw=["vcc"])
        v(f"v_cndmask_b32 {rn(HVX[j])}, {rn(t5)}, {rn(HVMAX)}, vcc", [HVX[j]], [t5, HVMAX], sr=["vcc"])

    def xdma(s, j):
        e.salu(f"s_add_u32 m0, {S_D}, {s * XSL + 4096 * j}", m0=True)
        xseq[s] = e.dma(HVX[j], SX, f"s{44 + s}", flags="nt")

    for j in range(4):
        xconst(j)
        xdma(0, j)
    xconst(4)
    e.salu(f"s_mul_i32 {S_T1}, {S_W}, {XSL}")
    e.salu(f"s_add_u32 {S_T2}, s48, {S_W}")
    e.salu(f"s_and_b32 {S_T2}, {S_T2}, 3")
    e.salu(f"s_lshl_b32 {S_T2}, {S_T2}, 7")
    e.salu(f"s_add_u32 m0, {S_T1}, 16384", m0=True)
    xseq[0] = e.dma(HVX[4], SX, S_T2, flags="nt")
    for j in range(4):
        xdma(1, j)
    e.wait(vseq=xseq[0])
    e.raw("    s_barrier")
    stamp()
    for s in range(2, 4):
        for j in range(4):
            xdma(s, j)
    e.label("L_h_setup2")
    e.salu("s_setprio 0")
    e.salu(f"s_sub_u32 {S_T1}, s2, {NWG}")
    e.salu(f"s_cmp_ge_u32 s2, {NWG}")
    e.salu(f"s_cselect_b32 {S_B}, {S_T1}, {S_B}")
    e.salu(f"s_load_dwordx2 s[{SDBG}:{SDBG + 1}], s[0:1], 64")
    e.salu(f"s_load_dwordx2 s[{SWS}:{SWS + 1}], s[0:1], 72")
    e.salu("s_waitcnt lgkmcnt(0)")
    e.salu(f"s_and_b32 s{SDBG + 1}, s{SDBG + 1}, 0xffff")
    e.salu(f"s_mov_b32 s{SDBG + 2}, 256")
    e.salu(f"s_mov_b32 s{SDBG + 3}, 0x20000")
    e.salu(f"s_and_b32 s{SWS + 1}, s{SWS + 1}, 0xffff")
    e.salu(f"s_mov_b32 s{SWS + 2}, {WS_OFF + 16384}")
    e.salu(f"s_mov_b32 s{SWS + 3}, 0x20000")
    tr_consts(e, False)
    v(f"v_and_b32 {rn(t0)}, 15, {L}", [t0], [VL])
    v(f"v_lshrrev_b32 {rn(t1)}, 4, {L}", [t1], [VL])
    v(f"v_xor_b32 {rn(t2)}, {rn(t0)}, {rn(t1)}", [t2], [t0, t1])
    v(f"v_and_b32 {rn(t2)}, 1, {rn(t2)}", [t2], [t2])
    v(f"v_lshrrev_b32 {rn(t3)}, 1, {rn(t0)}", [t3], [t0])
    e.salu(f"s_lshl_b32 {S_T1}, {S_B}, 3")
    v(f"v_add_u32 {rn(t3)}, {S_T1}, {rn(t3)}", [t3], [t3])
    v(f"v_lshlrev_b32 {rn(t3)}, 9, {rn(t3)}", [t3], [t3])
    v(f"v_lshrrev_b32 {rn(t4)}, 1, {rn(t1)}", [t4], [t1])
    v(f"v_lshl_add_u32 {rn(t3)}, {rn(t4)}, 4, {rn(t3)}", [t3], [t4, t3], vop3=True)
    v(f"v_lshl_or_b32 {rn(HVG)}, {rn(t2)}, 31, {rn(t3)}", [HVG], [t2, t3], vop3=True)
    v(f"v_and_b32 {rn(t2)}, 1, {rn(t0)}", [t2], [t0])
    v(f"v_lshl_or_b32 {rn(t2)}, {rn(t2)}, 2, {rn(t1)}", [t2], [t2, t1], vop3=True)
    perm_q(e, t4, t2, t6, t7)
    v(f"v_lshrrev_b32 {rn(t3)}, 1, {rn(t0)}", [t3], [t0])
    v(f"v_lshlrev_b32 {rn(t3)}, 10, {rn(t3)}", [t3], [t3])
    v(f"v_and_b32 {rn(t5)}, 1, {rn(t4)}", [t5], [t4])
    v(f"v_lshl_add_u32 {rn(t3)}, {rn(t5)}, 9, {rn(t3)}", [t3], [t5, t3], vop3=True)
    v(f"v_lshrrev_b32 {rn(t5)}, 1, {rn(t4)}", [t5], [t4])
    v(f"v_lshl_add_u32 {rn(t3)}, {rn(t5)}, 4, {rn(t3)}", [t3], [t5, t3], vop3=True)
    v(f"v_add_u32 {rn(t3)}, {S_W128}, {rn(t3)}", [t3], [t3])
    v(f"v_add_u32 {rn(HVEGW)}, {EG}, {rn(t3)}", [HVEGW], [t3])
    v(f"v_lshlrev_b32 {rn(t3)}, 4, {L}", [t3], [VL])
    v(f"v_add_u32 {rn(HVST)}, {S_RING}, {rn(t3)}", [HVST], [t3])
    v(f"v_mov_b32 {rn(GMAX)}, 0", [GMAX], [])
    e.salu(f"s_lshl_b32 {S_T0}, {S_B}, 2")
    e.salu(f"s_add_u32 {S_T0}, {S_T0}, {S_W}")
    e.salu(f"s_lshl_b32 {S_T0}, {S_T0}, 11")
    e.salu(f"s_add_u32 {S_T0}, {S_T0}, {WS_OFF}")
    e.salu(f"s_lshl_b32 {S_D}, {S_B}, 2")
    v(f"v_lshrrev_b32 {rn(t0)}, 3, {L}", [t0], [VL])
    v(f"v_lshlrev_b32 {rn(t0)}, 9, {rn(t0)}", [t0], [t0])
    v(f"v_add_u32 {rn(t0)}, {S_W128}, {rn(t0)}", [t0], [t0])
    v(f"v_and_b32 {rn(t1)}, 7, {L}", [t1], [VL])
    v(f"v_lshrrev_b32 {rn(t2)}, 3, {L}", [t2], [VL])
    v(f"v_and_b32 {rn(t2)}, 2, {rn(t2)}", [t2], [t2])
    v(f"v_xor_b32 {rn(t2)}, {rn(t1)}, {rn(t2)}", [t2], [t1, t2])
    v(f"v_lshl_add_u32 {rn(VWO0)}, {rn(t2)}, 4, {rn(t0)}", [VWO0], [t2, t0], vop3=True)
    v(f"v_add_u32 {rn(VWO1)}, 3072, {rn(VWO0)}", [VWO1], [VWO0])
    tr_consts(e, True)
    prod_consts(e, MEFR, MEGR, MJW, 3)
    v(f"v_mul_u32_u24 {rn(t2)}, {HROW}, {rn(t0)}", [t2], [t0])
    v(f"v_lshl_add_u32 {rn(t2)}, {rn(t1)}, 4, {rn(t2)}", [t2], [t1, t2], vop3=True)
    for i in range(2):
        v(f"v_add_u32 {rn(MJR[i])}, {JB[i]}, {rn(t2)}", [MJR[i]], [t2])
    e.salu(f"s_lshl_b32 {S_T2}, {S_W}, 14")
    e.salu(f"s_add_u32 {S_T2}, {S_T2}, {RING}")
    v(f"v_mul_u32_u24 {rn(t2)}, {OROW}, {rn(t0)}", [t2], [t0])
    v(f"v_lshl_add_u32 {rn(t2)}, {rn(t1)}, 6, {rn(t2)}", [t2], [t1, t2], vop3=True)
    v(f"v_add3_u32 {rn(MOW)}, {rn(t2)}, {S_T2}, 0", [MOW], [t2], vop3=True)
    store_consts(e, MOR, MOS, S_T2)
    HHW, HFW, HC1, HRAW = 32, 37, 38, 22
    v(f"v_and_b32 {rn(t0)}, 31, {L}", [t0], [VL])
    v(f"v_lshrrev_b32 {rn(t1)}, 5, {L}", [t1], [VL])
    v(f"v_mul_u32_u24 {rn(t2)}, {HROW}, {rn(t0)}", [t2], [t0])
    v(f"v_lshl_add_u32 {rn(t2)}, {rn(t1)}, 4, {rn(t2)}", [t2], [t1, t2], vop3=True)
    v(f"v_add_u32 {rn(HFW)}, {S_W128}, {rn(t2)}", [HFW], [t2])
    v(f"v_and_b32 {rn(t2)}, 1, {rn(t0)}", [t2], [t0])
    v(f"v_cmp_eq_u32 vcc, 1, {rn(t2)}", [], [t2], sw=["vcc"])
    v(f"v_mov_b32 {rn(t3)}, 1", [t3], [])
    v(f"v_cndmask_b32 {rn(t3)}, {HEVEN}, {rn(t3)}, vcc", [t3], [t3], sr=["vcc"])
    v(f"v_lshrrev_b32 {rn(t2)}, 1, {rn(t0)}", [t2], [t0])
    v(f"v_add_u32 {rn(t2)}, {rn(t2)}, {rn(t3)}", [t2], [t2, t3])
    v(f"v_mul_u32_u24 {rn(t2)}, {HROW}, {rn(t2)}", [t2], [t2])
    v(f"v_lshl_add_u32 {rn(t2)}, {rn(t1)}, 4, {rn(t2)}", [t2], [t1, t2], vop3=True)
    v(f"v_add_u32 {rn(HHW)}, {S_W128}, {rn(t2)}", [HHW], [t2])
    v(f"v_mov_b32 {rn(HC1)}, {f32(GC1)}", [HC1], [])
    e.salu(f"s_lshl_b32 {S_T1}, {S_W}, 13")
    e.salu(f"s_add_u32 {S_T1}, {S_T1}, {FB}")
    v(f"v_lshlrev_b32 {rn(t3)}, 4, {L}", [t3], [VL])
    v(f"v_add_u32 {rn(HRAW)}, {S_T1}, {rn(t3)}", [HRAW], [t3])
    e.salu(f"s_cmp_ge_u32 s2, {NWG}")
    e.salu("s_cbranch_scc1 L_ge")
    e.wait(vseq=xseq[3])
    e.raw("    s_barrier")
    stamp()

    def unit_ops(srd, wo, lo=0, hi=16, raw=RAW):
        trseq = {}
        ops = []

        def load(u):
            e.salu(f"s_mov_b32 {S_SOFF}, {u * 8192}")
            r = raw + 8 * (u % NFL)
            e.bload(4, r, VWO0 if wo else VW0, srd, S_SOFF)
            e.bload(4, r + 4, VWO1 if wo else VW1, srd, S_SOFF, off=1024)
            if not wo:
                e.bload(4, GFR + 4 * (u % 4), HVG, SG, 0, off=32 * u)

        def stage(u):
            r = raw + 8 * (u % NFL)
            slot = (u % 2) * 2048
            if u - 2 >= lo:
                e.wait(lseq=trseq[u - 2])
            e.ds_write(4, HVST, r, slot)
            e.ds_write(4, HVST, r + 4, slot + 1024)
            d = WO_DEST[u] if wo else GEF + 8 * (u % 2)
            va = VTRO if wo else VTR
            for mt in range(2):
                for jj in range(2):
                    trseq[u] = e.ds_read(2, d + 4 * mt + 2 * jj, va[mt], slot + jj * 512, tr=True)

        def mm(u):
            dp = GEF + 8 * (u % 2)
            for mt in range(2):
                e.mfma(False, GACC + 4 * mt, dp + 4 * mt, GFR + 4 * (u % 4), GACC + 4 * mt if u else None)

        nfl = NFL if wo else NFL - 1
        for u in range(lo, min(lo + nfl, hi)):
            ops.append(lambda u=u: load(u))
        for u in range(lo, hi + 1):
            if u < hi:
                ops.append(lambda u=u: stage(u))
            if not wo and u >= 1:
                ops.append(lambda u=u: mm(u - 1))
            if u + nfl < hi:
                ops.append(lambda u=u: load(u + nfl))
        return ops

    def run_units(srd, wo, lo=0, hi=16):
        for f in unit_ops(srd, wo, lo, hi):
            f()

    e.raw("    s_barrier")
    wops = unit_ops(SWO, True, 0, WO_SPLIT[0], raw=92) if WO_SPLIT[0] else []
    for f in wops[:NFL]:
        f()
    e.raw("    s_barrier")
    GA, GP, GT = 40, 72, rng(88, 4)
    for q in range(8):
        e.ds_read(4, GA + 4 * q, HRAW, 1024 * q)
    gops = []
    for nt in range(2):
        gops += gelu_list(e, rng(GA + 16 * nt, 16), rng(GP + 8 * nt, 8), GT, HC1)
        for h in range(2):
            gops.append(lambda nt=nt, h=h: e.ds_write(4, HHW, GP + 8 * nt + 4 * h, nt * 16 * HROW + 64 + 32 * h))
    for f in merge(gops, wops[NFL:]):
        f()
    e.wait_all_lds()
    e.salu(f"s_buffer_load_dword {S_T1}, s[{SDBG}:{SDBG + 3}], {S_D}")
    e.salu("s_waitcnt lgkmcnt(0)")
    stamp()
    e.raw("    s_barrier")
    e.salu(f"s_cmp_lg_u32 {S_T1}, {4 if not X_NOPUB else 99}")
    e.salu("s_cbranch_scc1 L_ge")
    v(f"v_lshlrev_b32 {rn(t3)}, 4, {L}", [t3], [VL])
    e.bload(4, GACC, t3, SWS, S_T0, flags="sc1")
    e.bload(4, GACC + 4, t3, SWS, S_T0, off=1024, flags="sc1")
    e.salu("s_branch L_ge_done")
    e.label("L_ge")
    e.pend.clear(); e.wr.clear()
    e.ldone, e.vdone = e.lseq, e.vseq
    e.raw("    s_waitcnt vmcnt(0) lgkmcnt(0)")
    run_units(SWG, False)
    e.nop(10)
    e.salu(f"s_cmp_lt_u32 s2, {NWG}")
    e.salu("s_cbranch_scc1 L_ge_done")
    v(f"v_lshlrev_b32 {rn(t3)}, 4, {L}", [t3], [VL])
    e.bstore(4, GACC, t3, SWS, S_T0, flags="sc0 sc1")
    e.bstore(4, GACC + 4, t3, SWS, S_T0, off=1024, flags="sc0 sc1")
    e.wait_all_vm()
    v(f"v_mov_b32 {rn(t0)}, 0", [t0], [])
    v(f"v_mov_b32 {rn(t1)}, 1", [t1], [])
    e.salu("s_mov_b64 exec, 1")
    e.raw(f"    buffer_atomic_add {rn(t1)}, {rn(t0)}, s[{SDBG}:{SDBG + 3}], {S_D} offen sc1")
    e.salu("s_endpgm")
    e.label("L_ge_done")
    e.pend.clear(); e.wr.clear()
    e.raw("    s_waitcnt lgkmcnt(0)")
    e.ldone = e.lseq
    e.vseq += 2
    for r in rng(GACC, 8):
        e.pend[r] = ('v', e.vseq)

    def finish_ge():
        exp_stage(e, GACC, GKEEP, 120, 8, GMAX)
        for i in range(8):
            v(f"v_mul_f32 {rn(120 + i)}, -0.5, {rn(120 + i)}", [120 + i], [120 + i])
        for mt in range(2):
            e.ds_write(4, HVEGW, 120 + 4 * mt, 64 * mt)
        publish_flag(e, GMAX, 16)

    if WO_SPLIT[1] > WO_SPLIT[0]:
        run_units(SWO, True, WO_SPLIT[0], WO_SPLIT[1])
    finish_ge()
    stamp()
    e.barrier()
    wops = unit_ops(SWO, True, WO_SPLIT[1], WO_LATE, raw=56)
    for f in wops[:NFL]:
        f()
    e.raw("    s_barrier")
    for q in range(4):
        e.ds_read(4, GA + 4 * q, HVST, 1024 * q)
    for f in gelu_list(e, rng(GA, 16), rng(92, 8), GT, HC1):
        f()
    for h in range(2):
        e.ds_write(4, HFW, 92 + 4 * h, FB + 64 + 32 * h)
    e.barrier()
    for f in wops[NFL:]:
        f()
    stamp()
    e.barrier()
    stamp()
    flag_check(e, "L_h_slow")
    snap = (copy.deepcopy(e.pend), e.lseq, e.vseq, e.ldone, e.vdone)

    def epi_ops():
        ops = []
        for q in range(4):
            for i in range(4):
                k = 4 * q + i
                ops.append(lambda k=k: v(f"v_cvt_pk_bf16_f32 {rn(MOUT + k)}, {rn(MOUT + 2 * k)}, {rn(MOUT + 2 * k + 1)}",
                                         [MOUT + k], [MOUT + 2 * k, MOUT + 2 * k + 1], vop3=True))
            ops.append(lambda q=q: e.ds_write(4, MOW, MOUT + 4 * q, 16 * q))
        return ops

    def jread(idx):
        reg = MJR[0] if idx < 16 else MJR[1]
        return lambda: e.ds_read(4, MBF[idx % 4], reg, 32 * (idx % 16))

    def chunk_body(slow):
        prod = produce_ops(e, slow, MEFR, MJW[2], MEG, MEF, MWK, MPK, 1) + [step(e, MJW[2], SJ[2])]
        if X_NOMPROD or PROWS == 4:
            prod = []
        epi = epi_ops()
        rbs = readback_store_ops(e, MOR, MOS, MOUT + 16)
        plan = {}
        for i, f in enumerate(epi):
            plan.setdefault(i // 2, []).append(f)
        for i in range(4):
            plan.setdefault(10 + i, []).append(rbs[i])
            plan.setdefault(ST0 + STD * i, []).append(rbs[4 + i])
        for ks in range(16):
            wo = WO_DEST[ks]
            for mt in range(2):
                dst = (MOUT if ks == 15 else MACC) + 16 * mt
                e.mfma(True, dst, wo + 4 * mt, MBF[ks % 4], MACC + 16 * mt if ks else None)
                if mt == 0:
                    jread(ks + JD)()
                for f in plan.get(2 * ks + mt - 1, []):
                    f()
        v(f"v_mov_b32 {rn(MJR[0])}, {rn(MJR[1])}", [MJR[0]], [MJR[1]])
        step(e, MJR[1], SJ[1])()
        for f in rot_steps(e):
            f()

    def out_stage(slow, tag):
        if WO_LATE < 16:
            run_units(SWO, True, WO_LATE, 16)
        init_steps(e)
        e.salu(f"s_mov_b32 {S_CNT}, 8")
        e.salu(f"s_mov_b32 {S_OS}, 0x7ff00000")
        e.salu(f"s_setprio {X_PRIO}")
        e.barrier()
        for i in range(JD):
            jread(i)()
        e.wait_all_lds()
        loop_fence(e)
        if STAMPS:
            e.salu("s_mov_b32 s101, 0")
        e.label(f"L_h_loop{tag}")
        stamp.loop_top()
        chunk_body(slow)
        stamp.loop_pre_barrier()
        e.salu(f"s_cmp_eq_u32 {S_CNT}, 8")
        e.salu(f"s_cselect_b32 {S_OS}, {S_OBASE}, {S_OS}")
        e.salu(f"s_sub_u32 {S_CNT}, {S_CNT}, 1")
        e.salu(f"s_cmp_lg_u32 {S_CNT}, 0")
        e.barrier()
        e.salu(f"s_cbranch_scc1 L_h_loop{tag}")
        if not slow:
            stamp()
        for f in epi_ops() + readback_store_ops(e, MOR, MOS, MOUT + 16):
            f()

    out_stage(False, "")
    if STAMPS:
        e.wait_all_vm()
    stamp()
    stamp.dump(True)
    e.salu("s_endpgm")

    e.label("L_h_slow")
    (e.pend, e.lseq, e.vseq, e.ldone, e.vdone) = snap
    e.wr.clear(); e.stw.clear(); e.sgpr_valu.clear()
    e.nop(8)
    e.barrier()
    for mt in range(2):
        e.ds_write(4, HVEGW, GKEEP + 4 * mt, 64 * mt)
    e.barrier()
    out_stage(True, "s")
    e.label("L_end")
    e.salu("s_endpgm")


def split_slow(text, label):
    i = text.index(label + ":")
    return text[:i], text[i:]


def generate():
    e0 = Emitter()
    common_prologue(e0)
    ec = Emitter()
    gen_compute(ec)
    eh = Emitter()
    gen_helper(eh)
    cf, cs = split_slow(ec.text(), "L_c_slow")
    hf, hs = split_slow(eh.text(), "L_h_slow")
    return e0.text() + cf + hf + cs + hs, ec, eh


HEADER = f"""; Fused conv stem (2x stride-2 conv1d + gelu) + RNN-T joint network, one workgroup per 32 output frames.
; @launch grid=({NGRID},1,1) block=(512,1,1) lds={LDS_BYTES}
.amdgcn_target "amdgcn-amd-amdhsa--gfx950"
.text
.globl {NAME}_kernel
.p2align 8
.type {NAME}_kernel,@function
{NAME}_kernel:
"""

FOOTER = f""".section .rodata,"a"
.p2align 6
.amdhsa_kernel {NAME}_kernel
  .amdhsa_next_free_vgpr 256
  .amdhsa_next_free_sgpr 102
  .amdhsa_accum_offset {ACCOFF}
  .amdhsa_group_segment_fixed_size 0
  .amdhsa_kernarg_size 80
  .amdhsa_user_sgpr_count 2
  .amdhsa_user_sgpr_kernarg_segment_ptr 1
  .amdhsa_system_sgpr_workgroup_id_x 1
.end_amdhsa_kernel
"""

if __name__ == "__main__":
    STAMPS = "--stamps" in sys.argv
    if "--out" in sys.argv:
        STAMPMODE = "out"
    if "--h" in sys.argv:
        STAMPMODE = "h"
    if "--bar" in sys.argv:
        STAMPMODE = "bar"
    args = [a for a in sys.argv[1:] if not a.startswith("--")]
    text, ec, eh = generate()
    path = args[0] if args else f"cdna_kernels/{NAME}.s"
    open(path, "w").write(HEADER + text + FOOTER)
    cnt = lambda e: sum(1 for l in e.out if l.startswith("    ") and not l.strip().startswith(";"))
    print("instructions C:", cnt(ec), "H:", cnt(eh))
```

```python
import copy
import struct
import sys

from emit import Emitter, rn, rng

NAME = "standalone__seq2seq_rnn_t_joint__speech"
NWG = 250
NGRID = 252
STAMPS = False
STAMPMODE = "front"
import os
X_NOSTORE = "X_NOSTORE" in os.environ
X_NOMPROD = "X_NOMPROD" in os.environ
X_NOPPROD = "X_NOPPROD" in os.environ
X_PRIO = os.environ.get("X_PRIO", "1")
X_NOH = os.environ.get("X_NOH", "")
X_SLACK = int(os.environ.get("X_SLACK", "2"))
X_NOROT = "X_NOROT" in os.environ
X_LAT = float(os.environ.get("X_LAT", "900"))
X_C1 = os.environ.get("X_C1", "")
X_NOPUB = "X_NOPUB" in os.environ
WS_OFF = 1 << 20
WO_SPLIT = [int(x) for x in os.environ.get("WO_SPLIT", "0,0").split(",")]
WO_NFL = int(os.environ.get("WO_NFL", "4"))
WO_B5 = int(os.environ.get("WO_B5", "7"))
X_NOLOOPST = "X_NOLOOPST" in os.environ
X_NOEPI = "X_NOEPI" in os.environ
JD = int(os.environ.get("JD", "3"))
X_FOLD = "X_FOLD" in os.environ
PROWS = int(os.environ.get("PROWS", "4"))
ST0 = int(os.environ.get("ST0", "14"))
STD = int(os.environ.get("STD", "4"))
AHEAD = int(os.environ.get("AHEAD", "1"))
PUMP_EVERY = int(os.environ.get("PUMP_EVERY", "14"))
WO_LATE = int(os.environ.get("WO_LATE", "8"))
X_RT = "X_RT" in os.environ
X_DIAG = "X_DIAG" in os.environ
B4_AT = int(os.environ.get("B4_AT", "26"))

XSL = 17408
ZROW = 3 * XSL + 131 * 128
RING = 69632
EG = 135168
FLAG = 143360
J2 = 143392
DUMMY = 160768
LDS_BYTES = 161792
HROW = 528
HEVEN = 37
FB = 36864
EFROW = 1040
JB = [33280, 50176, J2]
OROW = 144
TBSZ = 32 * OROW

SX, SW1, SW2, SG, SWF, SWG, SWO, SOUT = 8, 12, 16, 20, 24, 28, 32, 36
S_W, S_RING, S_SOFF, S_B, S_T0, S_D, S_OS, S_OBASE, S_FLAG, S_T1, S_T2, S_LIM, S_CNT, S_W128 = \
    "s56", "s57", "s58", "s59", "s60", "s61", "s62", "s63", "s64", "s65", "s66", "s67", "s68", "s69"

ACCOFF = 160
A0 = 256

VL = 1
T = list(range(2, 10))
VW0, VW1 = 10, 11
VTR = [14, 15]
VXB = [[18 + 4 * t + k for k in range(4)] for t in range(3)]
VXH = [[30 + 4 * t + k for k in range(4)] for t in range(3)]
VHW, VHH, VHR, VFW, VEFW, VC1, VMAX, VOS, VEFR, VEGR, VEGW, VGR = range(42, 54)
ACC = 56
HACC = 120
TMP = 128
KEEPA = TMP
FBUF = A0
VS = 8
BFR = A0 + 64
KEEPB = A0 + 88
RS = 8
PEG = ACC
PEF = ACC + 32
PWK = ACC + 40
PPK = ACC + 48
PRB = ACC + 52
PJW = [18, 19, 20]
POR = [21, 22, 23]
VWO0, VWO1 = 12, 13
VTRO = [16, 17]
HVX = [18, 19, 20, 21, 22]
HVP, HVMAX, HC, MEFR, MEGR, MOR, MOS = range(23, 30)
MJR = [30, 31]
MJW = [33, 34, 35]
MOW = 36
MACC = 40
MPO = 72
MOUT = 72
MEG = 104
MEF = 112
MWK = 10
MPK = 22
MBF = [120, 124, 18, 4]
WO_DEST = [A0 + 8 * i for i in range(12)] + [128 + 8 * i for i in range(4)]
HRS = 2

LOG2E = 1.4426950408889634
GC0 = -2.0 * 0.7978845608028654 * LOG2E
GC1 = GC0 * 0.044715
TSC = 2.0 * LOG2E


def f32(x):
    return "0x%08x" % struct.unpack("<I", struct.pack("<f", x))[0]


class Stream:
    LAT = X_LAT
    RATE = 140.0

    def __init__(self, e, rs, vs, fbuf):
        self.e = e
        self.rs, self.vs, self.fbuf = rs, vs, fbuf
        self.units = []
        self.du = self.tu = self.cu = 0
        self.dseq, self.tseq, self.arr = {}, {}, {}
        self.last_arr = 0.0
        self.tr_limit = 10 ** 9
        self.slot_of = {}
        self.free = [fbuf + 8 * i for i in range(vs)]
        self.released = 0

    def add_slots(self, regs):
        self.free += regs

    def _release(self):
        while self.released < self.cu:
            d = self.slot_of[self.released]
            if d not in self.retired:
                self.free.append(d)
            self.released += 1

    retired = set()

    def add(self, srd, soff, wo_idx=None):
        self.units.append((srd, soff, wo_idx))

    def dest(self, u):
        return self.slot_of[u]

    def can_dma(self):
        u = self.du
        slack = X_SLACK if self.rs > 2 else 1
        return u < len(self.units) and (u < self.rs or u - self.rs <= self.tu - slack)

    def do_dma(self):
        e, u = self.e, self.du
        srd, soff, wo = self.units[u]
        if u >= self.rs:
            e.wait(lseq=self.tseq[u - self.rs])
        e.salu(f"s_add_u32 m0, {S_RING}, {(u % self.rs) * 2048}", m0=True)
        if isinstance(soff, tuple):
            e.salu(f"s_add_u32 {S_SOFF}, {soff[0]}, {soff[1]}")
        else:
            e.salu(f"s_mov_b32 {S_SOFF}, {soff}")
        if "nodma" in X_C1 and 12 <= u < 48:
            self.dseq[u] = 0
        else:
            e.dma(VWO0 if wo is not None else VW0, srd, S_SOFF)
            self.dseq[u] = e.dma(VWO1 if wo is not None else VW1, srd, S_SOFF, off=1024)
        self.last_arr = max(e.t + self.LAT, self.last_arr + self.RATE)
        self.arr[u] = self.last_arr
        self.du += 1

    def _dest_free(self, u):
        self._release()
        return len(self.free) > 0

    def can_tr(self, timed=True):
        u = self.tu
        if u >= self.du or u >= self.tr_limit or not self._dest_free(u):
            return False
        return (not timed) or self.arr[u] <= self.e.t

    def do_tr(self):
        e, u = self.e, self.tu
        wo = self.units[u][2]
        e.wait(vseq=self.dseq[u])
        e.t = max(e.t, self.arr[u])
        self._release()
        d = self.slot_of[u] = self.free.pop(0)
        va = VTRO if wo is not None else VTR
        for mt in range(2):
            for jj in range(2):
                self.tseq[u] = e.ds_read(2, d + 4 * mt + 2 * jj, va[mt], (u % self.rs) * 2048 + jj * 512, tr=True)
        self.tu += 1

    def pump(self, max_ops=2):
        n = 0
        while n < max_ops:
            if self.can_tr():
                self.do_tr()
            elif self.can_dma():
                self.do_dma()
            else:
                break
            n += 1

    def ensure(self, u):
        while self.tu <= u:
            while self.du <= self.tu:
                assert self.can_dma()
                self.do_dma()
            assert self.can_tr(timed=False), (u, self.tu, self.cu)
            self.do_tr()

    def state(self):
        return (self.du, self.tu, self.cu, dict(self.dseq), dict(self.tseq), dict(self.arr), self.last_arr, self.tr_limit)

    def restore(self, s):
        (self.du, self.tu, self.cu, self.dseq, self.tseq, self.arr, self.last_arr, self.tr_limit) = \
            (s[0], s[1], s[2], dict(s[3]), dict(s[4]), dict(s[5]), s[6], s[7])


def interleave(mains, fillers):
    n = len(mains)
    k = 0
    for i, m in enumerate(mains):
        m()
        upto = (len(fillers) * (i + 1) + n - 1) // n
        while k < upto:
            fillers[k]()
            k += 1


def merge(a, b):
    out = []
    ia = ib = 0
    na, nb = len(a), len(b)
    while ia < na or ib < nb:
        if ib >= nb or (ia < na and ia * max(nb, 1) <= ib * max(na, 1)):
            out.append(a[ia]); ia += 1
        else:
            out.append(b[ib]); ib += 1
    return out


class Stamper:
    def __init__(self, e):
        self.e, self.n = e, 0

    def __call__(self, tag="front"):
        if not STAMPS or (tag != STAMPMODE and self.n > 0) or self.n >= 14:
            return
        e = self.e
        e.wait_all_lds()
        e.salu(f"{'s_memrealtime' if X_RT else 's_memtime'} s[{70 + 2 * self.n}:{71 + 2 * self.n}]")
        e.salu("s_waitcnt lgkmcnt(0)")
        self.n += 1

    def loop_top(self):
        if not STAMPS or X_NOLOOPST:
            return
        e = self.e
        e.salu("s_memtime s[98:99]")
        e.salu("s_waitcnt lgkmcnt(0)")
        e.salu("s_mov_b32 s100, s98")

    def loop_pre_barrier(self):
        if not STAMPS or X_NOLOOPST:
            return
        e = self.e
        e.wait_all_lds()
        e.salu("s_memtime s[98:99]")
        e.salu("s_waitcnt lgkmcnt(0)")
        e.salu("s_sub_u32 s98, s98, s100")
        e.salu("s_add_u32 s101, s101, s98")

    def dump(self, helper):
        if not STAMPS:
            return
        e = self.e
        e.salu("s_load_dwordx2 s[40:41], s[0:1], 72")
        e.salu("s_waitcnt lgkmcnt(0)")
        e.salu("s_and_b32 s41, s41, 0xffff")
        e.salu("s_mov_b32 s42, 131072")
        e.salu("s_mov_b32 s43, 0x20000")
        e.salu(f"s_lshl_b32 {S_T1}, s2, 3")
        e.salu(f"s_add_u32 {S_T1}, {S_T1}, {S_W}")
        if helper:
            e.salu(f"s_add_u32 {S_T1}, {S_T1}, 4")
        e.salu(f"s_lshl_b32 {S_T1}, {S_T1}, 6")
        e.valu(f"v_mov_b32 {rn(T[1])}, 0", [T[1]], [])
        for i in range(16):
            if i == 15:
                e.salu("s_add_u32 s101, s101, s70")
                e.valu(f"v_mov_b32 {rn(T[0])}, s101", [T[0]], [])
            else:
                e.valu(f"v_mov_b32 {rn(T[0])}, s{70 + 2 * min(i, self.n - 1)}", [T[0]], [])
            e.bstore(1, T[0], T[1], 40, S_T1, off=4 * i)


def V(e):
    return lambda text, w=(), r=(), **kw: e.valu(text, w, r, **kw)


def common_prologue(e):
    v = V(e)
    if X_DIAG:
        e.salu("s_memrealtime s[96:97]")
    e.salu(f"s_cmp_ge_u32 s2, {NGRID}")
    e.salu("s_cbranch_scc1 L_end")
    e.salu("s_load_dwordx16 s[40:55], s[0:1], 0")
    v(f"v_and_b32 {rn(VL)}, 63, v0", [VL], [0])
    v(f"v_lshrrev_b32 {rn(T[0])}, 6, v0", [T[0]], [0])
    e.rfl(S_CNT, T[0])
    e.salu(f"s_and_b32 {S_W}, {S_CNT}, 3")
    e.salu(f"s_lshl_b32 {S_W128}, {S_W}, 7")
    e.salu(f"s_lshl_b32 {S_OBASE}, s2, 17")
    t0, t1, t2 = T[:3]
    L = rn(VL)
    v(f"v_lshrrev_b32 {rn(t0)}, 3, {L}", [t0], [VL])
    v(f"v_lshlrev_b32 {rn(t0)}, 9, {rn(t0)}", [t0], [t0])
    v(f"v_add_u32 {rn(t0)}, {S_W128}, {rn(t0)}", [t0], [t0])
    v(f"v_and_b32 {rn(t1)}, 7, {L}", [t1], [VL])
    v(f"v_lshrrev_b32 {rn(t2)}, 2, {L}", [t2], [VL])
    v(f"v_and_b32 {rn(t2)}, 4, {rn(t2)}", [t2], [t2])
    v(f"v_xor_b32 {rn(t2)}, {rn(t1)}, {rn(t2)}", [t2], [t1, t2])
    v(f"v_lshl_add_u32 {rn(VW0)}, {rn(t2)}, 4, {rn(t0)}", [VW0], [t2, t0], vop3=True)
    v(f"v_add_u32 {rn(VW1)}, 3072, {rn(VW0)}", [VW1], [VW0])
    sizes = [16384000, 393216, 393216, 8192, 131072, 131072, 131072, 32768000]
    for i, srd in enumerate([SX, SW1, SW2, SG, SWF, SWG, SWO, SOUT]):
        e.salu(f"s_mov_b32 s{srd + 2}, {sizes[i]}")
        e.salu(f"s_mov_b32 s{srd + 3}, 0x20000")
    e.salu("s_waitcnt lgkmcnt(0)")
    for i, srd in enumerate([SX, SW1, SW2, SG, SWF, SWG, SWO, SOUT]):
        e.salu(f"s_mov_b32 s{srd}, s{40 + 2 * i}")
        e.salu(f"s_and_b32 s{srd + 1}, s{41 + 2 * i}, 0xffff")
    e.salu("s_lshr_b32 s48, s2, 3")
    for i in range(4):
        e.salu(f"s_add_u32 s{44 + i}, {0 if X_NOROT else 's48'}, {i}")
        e.salu(f"s_and_b32 s{44 + i}, s{44 + i}, 3")
        e.salu(f"s_lshl_b32 s{44 + i}, s{44 + i}, 7")
    e.salu(f"s_cmp_ge_u32 {S_CNT}, 4")
    e.salu("s_cbranch_scc1 L_helper")
    e.salu(f"s_cmp_ge_u32 s2, {NWG}")
    e.salu("s_cbranch_scc1 L_end")


def perm_q(e, dst, q, ta, tb):
    v = V(e)
    v(f"v_and_b32 {rn(ta)}, 1, {rn(q)}", [ta], [q])
    v(f"v_bfe_u32 {rn(tb)}, {rn(q)}, 1, 1", [tb], [q], vop3=True)
    v(f"v_lshl_or_b32 {rn(ta)}, {rn(ta)}, 1, {rn(tb)}", [ta], [ta, tb], vop3=True)
    v(f"v_and_or_b32 {rn(dst)}, {rn(q)}, 4, {rn(ta)}", [dst], [q, ta], vop3=True)


def tr_consts(e, wo):
    v = V(e)
    t0, t1, t2, t3, t4, t5, t6, t7 = T
    L = rn(VL)
    v(f"v_lshrrev_b32 {rn(t0)}, 4, {L}", [t0], [VL])
    v(f"v_bfe_u32 {rn(t1)}, {L}, 2, 2", [t1], [VL], vop3=True)
    v(f"v_and_b32 {rn(t2)}, 3, {L}", [t2], [VL])
    v(f"v_and_b32 {rn(t3)}, 1, {rn(t0)}", [t3], [t0])
    v(f"v_lshl_or_b32 {rn(t2)}, {rn(t3)}, 2, {rn(t2)}", [t2], [t3, t2], vop3=True)
    v(f"v_lshrrev_b32 {rn(t3)}, 1, {rn(t0)}", [t3], [t0])
    v(f"v_lshlrev_b32 {rn(t3)}, 10, {rn(t3)}", [t3], [t3])
    v(f"v_lshl_add_u32 {rn(t3)}, {rn(t1)}, 7, {rn(t3)}", [t3], [t1, t3], vop3=True)
    v(f"v_add_u32 {rn(t3)}, {S_RING}, {rn(t3)}", [t3], [t3])
    v(f"v_lshrrev_b32 {rn(t1)}, 1, {rn(t1)}", [t1], [t1])
    if not wo:
        perm_q(e, t4, t2, t6, t7)
        v(f"v_lshlrev_b32 {rn(t4)}, 3, {rn(t4)}", [t4], [t4])
        v(f"v_lshl_or_b32 {rn(t4)}, {rn(t1)}, 6, {rn(t4)}", [t4], [t1, t4], vop3=True)
        v(f"v_add_u32 {rn(VTR[0])}, {rn(t3)}, {rn(t4)}", [VTR[0]], [t3, t4])
        v(f"v_xor_b32 {rn(t4)}, 64, {rn(t4)}", [t4], [t4])
        v(f"v_add_u32 {rn(VTR[1])}, {rn(t3)}, {rn(t4)}", [VTR[1]], [t3, t4])
    else:
        v(f"v_and_b32 {rn(t4)}, 1, {rn(t2)}", [t4], [t2])
        v(f"v_lshlrev_b32 {rn(t4)}, 6, {rn(t4)}", [t4], [t4])
        v(f"v_lshrrev_b32 {rn(t5)}, 1, {rn(t2)}", [t5], [t2])
        v(f"v_lshl_or_b32 {rn(t4)}, {rn(t5)}, 3, {rn(t4)}", [t4], [t5, t4], vop3=True)
        v(f"v_lshl_or_b32 {rn(t4)}, {rn(t1)}, 5, {rn(t4)}", [t4], [t1, t4], vop3=True)
        v(f"v_add_u32 {rn(VTRO[0])}, {rn(t3)}, {rn(t4)}", [VTRO[0]], [t3, t4])
        v(f"v_xor_b32 {rn(t4)}, 32, {rn(t4)}", [t4], [t4])
        v(f"v_add_u32 {rn(VTRO[1])}, {rn(t3)}, {rn(t4)}", [VTRO[1]], [t3, t4])


def store_consts(e, vor, vos, ring_sgpr):
    v = V(e)
    t2, t3, t4 = T[2:5]
    L = rn(VL)
    v(f"v_lshrrev_b32 {rn(t2)}, 3, {L}", [t2], [VL])
    v(f"v_and_b32 {rn(t3)}, 7, {L}", [t3], [VL])
    v(f"v_lshlrev_b32 {rn(t3)}, 4, {rn(t3)}", [t3], [t3])
    v(f"v_mul_u32_u24 {rn(t4)}, {OROW}, {rn(t2)}", [t4], [t2])
    v(f"v_add3_u32 {rn(vor)}, {rn(t4)}, {rn(t3)}, {ring_sgpr}", [vor], [t4, t3], vop3=True)
    v(f"v_lshl_add_u32 {rn(t4)}, {rn(t2)}, 9, {rn(t3)}", [t4], [t2, t3], vop3=True)
    v(f"v_add_u32 {rn(vos)}, {S_W128}, {rn(t4)}", [vos], [t4])


def prod_consts(e, vefr, vegr, vjw, uu0):
    v = V(e)
    t0, t1, t2, t3 = T[:4]
    L = rn(VL)
    v(f"v_and_b32 {rn(t0)}, 31, {L}", [t0], [VL])
    v(f"v_lshrrev_b32 {rn(t1)}, 5, {L}", [t1], [VL])
    e.salu(f"s_mul_i32 {S_T1}, {S_W}, {EFROW}")
    v(f"v_lshlrev_b32 {rn(t2)}, 4, {rn(t0)}", [t2], [t0])
    v(f"v_add_u32 {rn(vefr)}, {S_T1}, {rn(t2)}", [vefr], [t2])
    v(f"v_lshl_add_u32 {rn(t3)}, {rn(t1)}, 12, {rn(t2)}", [t3], [t1, t2], vop3=True)
    v(f"v_add_u32 {rn(vegr)}, {EG + uu0 * 1024}, {rn(t3)}", [vegr], [t3])
    e.salu(f"s_mul_i32 {S_T1}, {S_W}, {8 * HROW}")
    v(f"v_mul_u32_u24 {rn(t3)}, {4 * HROW}, {rn(t1)}", [t3], [t1])
    v(f"v_add3_u32 {rn(t3)}, {rn(t3)}, {rn(t2)}, {S_T1}", [t3], [t3, t2], vop3=True)
    for i in range(3):
        v(f"v_add_u32 {rn(vjw[i])}, {JB[i] + uu0 * HROW}, {rn(t3)}", [vjw[i]], [t3])


def c_consts_ge(e):
    v = V(e)
    t0, t1, t2, t3, t4, t5, t6, t7 = T
    L = rn(VL)
    v(f"v_and_b32 {rn(t0)}, 15, {L}", [t0], [VL])
    v(f"v_lshrrev_b32 {rn(t1)}, 4, {L}", [t1], [VL])
    v(f"v_and_b32 {rn(t2)}, 1, {rn(t0)}", [t2], [t0])
    v(f"v_lshl_or_b32 {rn(t2)}, {rn(t2)}, 2, {rn(t1)}", [t2], [t2, t1], vop3=True)
    perm_q(e, t4, t2, t6, t7)
    v(f"v_lshlrev_b32 {rn(t3)}, 3, {rn(t4)}", [t3], [t4])
    v(f"v_add_u32 {rn(t3)}, {S_W128}, {rn(t3)}", [t3], [t3])
    v(f"v_mov_b32 {rn(t5)}, {DUMMY}", [t5], [])
    v(f"v_cmp_gt_u32 vcc, 2, {rn(t0)}", [], [t0], sw=["vcc"])
    v(f"v_cndmask_b32 {rn(VHH)}, {rn(t5)}, {rn(t3)}, vcc", [VHH], [t5, t3], sr=["vcc"])
    v(f"v_mov_b32 {rn(VMAX)}, 0", [VMAX], [])
    e.salu(f"s_lshl_b32 {S_T1}, {S_W}, 13")
    e.salu(f"s_add_u32 {S_T1}, {S_T1}, {FB}")
    v(f"v_lshlrev_b32 {rn(t3)}, 4, {L}", [t3], [VL])
    v(f"v_add_u32 {rn(VGR)}, {S_T1}, {rn(t3)}", [VGR], [t3])
    e.salu(f"s_lshl_b32 {S_T1}, {S_W}, 12")
    e.salu(f"s_add_u32 {S_T1}, {S_T1}, {J2}")
    v(f"v_add_u32 {rn(VEGW)}, {S_T1}, {rn(t3)}", [VEGW], [t3])


def c_consts_ops(e):
    v = V(e)
    t0, t1, t2, t3, t4, t5, t6, t7 = T
    L = rn(VL)
    ops = []
    a = lambda *args, **kw: ops.append(lambda: v(*args, **kw))
    a(f"v_and_b32 {rn(t0)}, 31, {L}", [t0], [VL])
    a(f"v_lshrrev_b32 {rn(t1)}, 5, {L}", [t1], [VL])
    for tap, r0 in enumerate((66, 1, 67)):
        a(f"v_add_u32 {rn(t4)}, {r0}, {rn(t0)}", [t4], [t0])
        a(f"v_bfe_u32 {rn(t5)}, {rn(t4)}, 1, 3", [t5], [t4], vop3=True)
        a(f"v_xor_b32 {rn(t5)}, {rn(t1)}, {rn(t5)}", [t5], [t1, t5])
        a(f"v_lshlrev_b32 {rn(t4)}, 7, {rn(t4)}", [t4], [t4])
        a(f"v_lshl_add_u32 {rn(VXB[tap][0])}, {rn(t5)}, 4, {rn(t4)}", [VXB[tap][0]], [t5, t4], vop3=True)
        for k in range(1, 4):
            a(f"v_xor_b32 {rn(VXB[tap][k])}, {32 * k}, {rn(VXB[tap][0])}", [VXB[tap][k]], [VXB[tap][0]])
    a(f"v_mul_u32_u24 {rn(t2)}, {HROW}, {rn(t0)}", [t2], [t0])
    a(f"v_lshl_add_u32 {rn(VHR)}, {rn(t1)}, 4, {rn(t2)}", [VHR], [t1, t2], vop3=True)
    a(f"v_add_u32 {rn(VFW)}, {S_W128}, {rn(VHR)}", [VFW], [VHR])
    a(f"v_and_b32 {rn(t2)}, 1, {rn(t0)}", [t2], [t0])
    a(f"v_cmp_eq_u32 vcc, 1, {rn(t2)}", [], [t2], sw=["vcc"])
    a(f"v_mov_b32 {rn(t3)}, 1", [t3], [])
    a(f"v_cndmask_b32 {rn(t3)}, {HEVEN}, {rn(t3)}, vcc", [t3], [t3], sr=["vcc"])
    a(f"v_lshrrev_b32 {rn(t2)}, 1, {rn(t0)}", [t2], [t0])
    a(f"v_add_u32 {rn(t2)}, {rn(t2)}, {rn(t3)}", [t2], [t2, t3])
    a(f"v_mul_u32_u24 {rn(t2)}, {HROW}, {rn(t2)}", [t2], [t2])
    a(f"v_lshl_add_u32 {rn(t2)}, {rn(t1)}, 4, {rn(t2)}", [t2], [t1, t2], vop3=True)
    a(f"v_add_u32 {rn(VHW)}, {S_W128}, {rn(t2)}", [VHW], [t2])
    a(f"v_mul_u32_u24 {rn(t2)}, {EFROW}, {rn(t0)}", [t2], [t0])
    a(f"v_lshl_add_u32 {rn(t2)}, {rn(t1)}, 4, {rn(t2)}", [t2], [t1, t2], vop3=True)
    a(f"v_add_u32 {rn(VEFW)}, {S_W128}, {rn(t2)}", [VEFW], [t2])
    a(f"v_and_b32 {rn(t6)}, 15, {L}", [t6], [VL])
    a(f"v_lshrrev_b32 {rn(t7)}, 4, {L}", [t7], [VL])
    a(f"v_and_b32 {rn(t2)}, 1, {rn(t7)}", [t2], [t7])
    a(f"v_lshrrev_b32 {rn(t3)}, 1, {rn(t7)}", [t3], [t7])
    a(f"v_mov_b32 {rn(VC1)}, 133", [VC1], [])
    a(f"v_cmp_eq_u32 vcc, {rn(t6)}, {rn(t2)}", [], [t6, t2], sw=["vcc"])
    for tap, rh in enumerate((65, 0, 66)):
        a(f"v_mov_b32 {rn(t5)}, {rh}", [t5], [])
        a(f"v_cndmask_b32 {rn(t4)}, {rn(VC1)}, {rn(t5)}, vcc", [t4], [VC1, t5], sr=["vcc"])
        a(f"v_bfe_u32 {rn(t5)}, {rn(t4)}, 1, 3", [t5], [t4], vop3=True)
        a(f"v_xor_b32 {rn(t5)}, {rn(t3)}, {rn(t5)}", [t5], [t3, t5])
        a(f"v_lshlrev_b32 {rn(t4)}, 7, {rn(t4)}", [t4], [t4])
        a(f"v_lshl_add_u32 {rn(VXH[tap][0])}, {rn(t5)}, 4, {rn(t4)}", [VXH[tap][0]], [t5, t4], vop3=True)
        for k in range(1, 4):
            a(f"v_xor_b32 {rn(VXH[tap][k])}, {32 * k}, {rn(VXH[tap][0])}", [VXH[tap][k]], [VXH[tap][0]])
    a(f"v_mov_b32 {rn(VC1)}, {f32(GC1)}", [VC1], [])
    return ops


def gelu_list(e, regs, packs, tmps, vc1=None):
    VC1 = vc1 if vc1 is not None else globals()['VC1']
    v = V(e)
    ops = []
    a = lambda *args, **kw: ops.append(lambda: v(*args, **kw))
    for g0 in range(0, len(regs), 4):
        xs = regs[g0:g0 + 4]
        ts = tmps[:len(xs)]
        for x, t in zip(xs, ts):
            a(f"v_mul_f32 {rn(t)}, {rn(x)}, {rn(x)}", [t], [x])
        for x, t in zip(xs, ts):
            a(f"v_fmaak_f32 {rn(t)}, {rn(t)}, {rn(VC1)}, {f32(GC0)}", [t], [t, VC1], vop3=True)
        for x, t in zip(xs, ts):
            a(f"v_mul_f32 {rn(t)}, {rn(x)}, {rn(t)}", [t], [x, t])
        for x, t in zip(xs, ts):
            a(f"v_exp_f32 {rn(t)}, {rn(t)}", [t], [t], trans=True)
        for x, t in zip(xs, ts):
            a(f"v_add_f32 {rn(t)}, 1.0, {rn(t)}", [t], [t])
        for x, t in zip(xs, ts):
            a(f"v_rcp_f32 {rn(t)}, {rn(t)}", [t], [t], trans=True)
        for x, t in zip(xs, ts):
            a(f"v_mul_f32 {rn(x)}, {rn(x)}, {rn(t)}", [x], [x, t])
        for i in range(0, len(xs), 2):
            p = packs[(g0 + i) // 2]
            a(f"v_cvt_pk_bf16_f32 {rn(p)}, {rn(xs[i])}, {rn(xs[i + 1])}", [p], [xs[i], xs[i + 1]], vop3=True)
    return ops


def run_with_pump(ops, pump, every=30):
    for i, f in enumerate(ops):
        f()
        if i % every == every - 1:
            pump()


def exp_stage(e, src, keep, dst, n, vmax, pump=None):
    v = V(e)
    for i in range(n):
        v(f"v_mul_f32 {rn(keep + i)}, {f32(TSC)}, {rn(src + i)}", [keep + i], [src + i], vop3=True)
    for i in range(n):
        v(f"v_exp_f32 {rn(dst + i)}, {rn(keep + i)}", [dst + i], [keep + i], trans=True)
        if i % 2 == 1:
            v(f"v_max3_f32 {rn(vmax)}, |{rn(keep + i - 1)}|, |{rn(keep + i)}|, {rn(vmax)}",
              [vmax], [keep + i - 1, keep + i, vmax], vop3=True)
        if pump and i % 8 == 7:
            pump()


def publish_flag(e, vmax, slot_extra):
    e.salu(f"s_mov_b32 {S_LIM}, {f32(125.0)}")
    e.valu(f"v_cmp_lt_f32 vcc, {S_LIM}, {rn(vmax)}", [], [vmax], sw=["vcc"])
    e.nop(2)
    e.salu("s_cmp_lg_u64 vcc, 0")
    e.salu(f"s_cselect_b32 {S_FLAG}, 1, 0")
    e.salu(f"s_lshl_b32 {S_T1}, {S_W}, 2")
    e.salu(f"s_add_u32 {S_T1}, {S_T1}, {FLAG + slot_extra}")
    e.valu(f"v_mov_b32 {rn(T[0])}, {S_FLAG}", [T[0]], [])
    e.valu(f"v_mov_b32 {rn(T[1])}, {S_T1}", [T[1]], [])
    e.ds_write(1, T[1], T[0])


def flag_check(e, label):
    v = V(e)
    v(f"v_mov_b32 {rn(T[1])}, {FLAG}", [T[1]], [])
    e.ds_read(4, T[2], T[1])
    v(f"v_or3_b32 {rn(T[0])}, {rn(T[2])}, {rn(T[3])}, {rn(T[4])}", [T[0]], [T[2], T[3], T[4]], vop3=True)
    v(f"v_or_b32 {rn(T[0])}, {rn(T[0])}, {rn(T[5])}", [T[0]], [T[0], T[5]])
    e.ds_read(4, T[2], T[1], 16)
    v(f"v_or3_b32 {rn(T[0])}, {rn(T[2])}, {rn(T[3])}, {rn(T[0])}", [T[0]], [T[2], T[3], T[0]], vop3=True)
    v(f"v_or3_b32 {rn(T[0])}, {rn(T[4])}, {rn(T[5])}, {rn(T[0])}", [T[0]], [T[4], T[5], T[0]], vop3=True)
    e.rfl(S_FLAG, T[0])
    e.salu(f"s_cmp_lg_u32 {S_FLAG}, 0")
    e.salu(f"s_cbranch_scc1 {label}")


def ef_read_ops(e, vefr, EF):
    return [lambda: e.ds_read(4, EF, vefr, 0),
            lambda: e.ds_read(4, EF + 4, vefr, 512),
            lambda: e.valu(f"v_add_u32 {rn(vefr)}, {4 * EFROW}, {rn(vefr)}", [vefr], [vefr])]


def produce_ops(e, slow, vefr, vjw, EGb, EF, WK, PK, nrows):
    v = V(e)
    ops = []
    for uu in range(nrows):
        for h in range(2):
            els = range(4 * h, 4 * h + 4)
            for i in els:
                if slow:
                    ops.append(lambda i=i, uu=uu: v(
                        f"v_add_f32 {rn(WK + i)}, {rn(EF + i)}, {rn(EGb + 8 * uu + i)}",
                        [WK + i], [EF + i, EGb + 8 * uu + i]))
                else:
                    ops.append(lambda i=i, uu=uu: v(
                        f"v_fma_f32 {rn(WK + i)}, {rn(EF + i)}, {rn(EGb + 8 * uu + i)}, -0.5",
                        [WK + i], [EF + i, EGb + 8 * uu + i], vop3=True))
        if uu == nrows - 1:
            ops += ef_read_ops(e, vefr, EF)
        for h in range(2):
            els = range(4 * h, 4 * h + 4)
            if slow:
                for i in els:
                    ops.append(lambda i=i: v(f"v_exp_f32 {rn(WK + i)}, {rn(WK + i)}", [WK + i], [WK + i], trans=True))
                for i in els:
                    ops.append(lambda i=i: v(f"v_add_f32 {rn(WK + i)}, 1.0, {rn(WK + i)}", [WK + i], [WK + i]))
            for i in els:
                ops.append(lambda i=i: v(f"v_rcp_f32 {rn(WK + i)}, {rn(WK + i)}", [WK + i], [WK + i], trans=True))
            for i in (els if not X_FOLD else ()):
                if slow:
                    ops.append(lambda i=i: v(f"v_fma_f32 {rn(WK + i)}, {rn(WK + i)}, -2.0, 1.0",
                                             [WK + i], [WK + i], vop3=True))
                else:
                    ops.append(lambda i=i: v(f"v_add_f32 {rn(WK + i)}, 1.0, {rn(WK + i)}", [WK + i], [WK + i]))
            for i in (4 * h, 4 * h + 2):
                ops.append(lambda i=i: v(
                    f"v_cvt_pk_bf16_f32 {rn(PK + i // 2)}, {rn(WK + i)}, {rn(WK + i + 1)}",
                    [PK + i // 2], [WK + i, WK + i + 1], vop3=True))
        ops.append(lambda uu=uu: e.ds_write(4, vjw, PK, uu * HROW))
    return ops


SJ = ["s49", "s50", "s51"]
STB = ["s45", "s46", "s47"]


def init_steps(e):
    for i in range(3):
        e.salu(f"s_mov_b32 {SJ[i]}, {(JB[(i + 1) % 3] - JB[i]) & 0xffffffff}")


def rot_steps(e):
    def f():
        for r in (SJ,):
            e.salu(f"s_mov_b32 {S_T2}, {r[0]}")
            e.salu(f"s_mov_b32 {r[0]}, {r[1]}")
            e.salu(f"s_mov_b32 {r[1]}, {r[2]}")
            e.salu(f"s_mov_b32 {r[2]}, {S_T2}")
    return [f]


def step(e, reg, sgpr):
    return lambda: e.valu(f"v_add_u32 {rn(reg)}, {sgpr}, {rn(reg)}", [reg], [reg])


def rotate3(e, regs, tmp):
    v = V(e)
    return [lambda: v(f"v_mov_b32 {rn(tmp)}, {rn(regs[0])}", [tmp], [regs[0]]),
            lambda: v(f"v_mov_b32 {rn(regs[0])}, {rn(regs[1])}", [regs[0]], [regs[1]]),
            lambda: v(f"v_mov_b32 {rn(regs[1])}, {rn(regs[2])}", [regs[1]], [regs[2]]),
            lambda: v(f"v_mov_b32 {rn(regs[2])}, {rn(tmp)}", [regs[2]], [tmp])]


def readback_store_ops(e, vor, vos, regs):
    ops = []
    for i in range(4):
        ops.append(lambda i=i: e.ds_read(4, regs + 4 * i, vor, i * 8 * OROW))
    for i in range(4):
        def st(i=i):
            e.bstore(4, regs + 4 * i, vos, SOUT, S_OS)
            e.salu(f"s_add_u32 {S_OS}, {S_OS}, 4096")
        ops.append(st)
    return ops


def loop_fence(e):
    e.pend = {r: p for r, p in e.pend.items() if p[0] == 'v'}
    e.ldone = e.lseq


def gen_compute(e):
    v = V(e)
    stamp = Stamper(e)
    st = Stream(e, RS, VS, FBUF)
    for s in range(4):
        for tap in range(3):
            for k in range(4):
                st.add(SW1, (f"s{44 + s}", tap * 131072 + 16 * k * 512))
    kord = [[4 * w + 2 * half + j for w in range(4) for j in range(2)] for half in range(2)]
    c2 = [(tap, kc) for half in range(2) for tap in range(3) for kc in kord[half]]
    cf = [kc for half in range(2) for kc in kord[half]]
    for tap, kc in c2:
        st.add(SW2, (tap * 16 + kc) * 8192)
    for kc in cf:
        st.add(SWF, kc * 8192)
    U_1, U_2, U_F = 0, 48, 96

    stamp()
    e.salu(f"s_lshl_b32 {S_RING}, {S_W}, 14")
    e.salu(f"s_add_u32 {S_RING}, {S_RING}, {RING}")
    for i in range(4):
        e.salu(f"s_lshl_b32 s{44 + i}, s{44 + i}, 8")
    for _ in range(RS):
        st.do_dma()
    tr_consts(e, False)
    c_consts_ge(e)
    for f in c_consts_ops(e):
        f()

    steps = [(s, tap, k) for s in range(4) for tap in range(3) for k in range(4)]

    def b_reads1(i):
        s, tap, k = steps[i]
        base = BFR + 12 * (i % 2)
        return [lambda: e.ds_read(4, base, VXB[tap][k], s * XSL),
                lambda: e.ds_read(4, base + 4, VXB[tap][k], s * XSL + 4096),
                lambda: e.ds_read(4, base + 8, VXH[tap][k], s * XSL)]

    for i, (s, tap, k) in enumerate(steps):
        u = U_1 + i
        if i in (24, 36):
            stamp()
        if i in (0, 12):
            st.ensure(u)
            stamp("bar")
            e.raw("    s_barrier")
            stamp()
            stamp("bar")
            for f in b_reads1(i):
                f()
        st.ensure(u + (1 if "ahead" in X_C1 else 0))
        d = st.dest(u)
        bb = BFR + 12 * (i % 2)
        mains = []
        for nt in range(2):
            for mt in range(2):
                a = ACC + 16 * (2 * mt + nt)
                mains.append(lambda a=a, mt=mt, nt=nt: e.mfma(True, a, d + 4 * mt, bb + 4 * nt, a if i else None))
        for mt in range(2):
            a = HACC + 4 * mt
            mains.append(lambda a=a, mt=mt: e.mfma(False, a, d + 4 * mt, bb + 8, a if i else None))
        br = b_reads1(i + 1) if (i + 1 < 48 and i + 1 != 12) else []
        mains[0]()
        for f in br:
            f()
        mains[1]()
        st.pump(1)
        mains[2]()
        st.pump(1)
        mains[3]()
        if "nohalo" not in X_C1:
            mains[4]()
            mains[5]()
        st.cu += 1
    stamp()
    e.raw("    s_barrier")
    stamp()
    pump = lambda: st.pump(2)
    gt = rng(TMP + 24, 4)
    late2 = [lambda: prod_consts(e, VEFR, VEGR, PJW, 0), lambda: init_steps(e)]

    def epi1():
        ops = []
        for nt in range(2):
            a = ACC + 16 * nt
            pk = TMP + 8 * nt
            ops += gelu_list(e, rng(a, 16), rng(pk, 8), gt)
            for h in range(2):
                ops.append(lambda pk=pk, h=h, nt=nt: e.ds_write(4, VHW, pk + 4 * h, nt * 16 * HROW + 32 * h))
        ops += gelu_list(e, rng(HACC, 8), rng(TMP + 16, 4), gt)
        for mt in range(2):
            ops.append(lambda mt=mt: e.ds_write(2, VHH, TMP + 16 + 2 * mt, 64 * mt))
        return ops

    def epi2():
        ops = gelu_list(e, rng(ACC, 16), rng(TMP, 8), gt)
        for h in range(2):
            ops.append(lambda h=h: e.ds_write(4, VFW, TMP + 4 * h, FB + 32 * h))
        return ops

    def small_gemm(ubase, lo, hi, boff, acc, side=()):
        def bread(i):
            return lambda: e.ds_read(4, BFR + 4 * (i % 4), VHR, boff(i))
        bread(lo)()
        bread(lo + 1)()
        n = hi - lo
        for i in range(lo, hi):
            u = ubase + i
            st.ensure(min(u + AHEAD, len(st.units) - 1))
            while st.can_dma():
                st.do_dma()
            d = st.dest(u)
            mains = [lambda mt=mt: e.mfma(True, acc + 16 * mt, d + 4 * mt, BFR + 4 * (i % 4),
                                          acc + 16 * mt if i else None) for mt in range(2)]
            fill = []
            if i + 2 < hi:
                fill.append(bread(i + 2))
            fill += [lambda: st.pump(1), lambda: st.pump(1)]
            fill = merge(list(side[len(side) * (i - lo) // n:len(side) * (i - lo + 1) // n]), fill)
            interleave(mains, fill)
            st.cu += 1

    for q in range(8):
        e.ds_write(4, VGR, ACC + 32 + 4 * q, 1024 * q)
    e.barrier()
    extra = [ACC + 32 + 8 * i for i in range(4)]
    st.add_slots(extra + [KEEPB, BFR + 16])
    run_with_pump(epi1(), pump, every=PUMP_EVERY)
    e.barrier()
    stamp()
    tapoff = [0, HEVEN * HROW, HROW]
    boff2 = lambda i: tapoff[c2[i][0]] + 32 * c2[i][1]
    st.retired = set(extra)
    small_gemm(U_2, 0, 48, boff2, ACC, late2)
    assert all(st.slot_of[u] not in extra for u in range(st.cu, st.tu))
    st.free = [d for d in st.free if d not in extra]
    e.raw("    s_barrier")
    stamp()
    for q in range(4):
        e.ds_write(4, VEGW, ACC + 16 + 4 * q, 1024 * q)
    e.barrier()
    run_with_pump(epi2(), pump)
    e.barrier()
    stamp()
    bofff = lambda i: FB + 32 * cf[i]
    small_gemm(U_F, 0, 16, bofff, ACC + 32)
    exp_stage(e, ACC + 32, KEEPA, ACC, 32, VMAX)
    for mt in range(2):
        for h in range(2):
            for pl in range(2):
                e.ds_write(4, VEFW, ACC + 16 * mt + 8 * h + 4 * pl, 64 * mt + 32 * h + 512 * pl)
    publish_flag(e, VMAX, 0)
    e.barrier()
    stamp()
    flag_check(e, "L_c_slow")
    snap = (copy.deepcopy(e.pend), e.lseq, e.vseq, e.ldone, e.vdone)

    def out_stage(slow, tag):
        for uu in range(PROWS):
            for pl in range(2):
                e.ds_read(4, PEG + 8 * uu + 4 * pl, VEGR, uu * 1024 + pl * 512)
        for f in ef_read_ops(e, VEFR, PEF):
            f()
        for c in range(2):
            for f in produce_ops(e, slow, VEFR, PJW[c], PEG, PEF, PWK, PPK, PROWS):
                f()
        e.salu(f"s_mov_b32 {S_CNT}, 6")
        e.barrier()
        if not slow:
            stamp()
        loop_fence(e)
        if STAMPS:
            e.salu("s_mov_b32 s101, 0")
        e.label(f"L_c_loop{tag}")
        stamp.loop_top()
        ops = produce_ops(e, slow, VEFR, PJW[2], PEG, PEF, PWK, PPK, PROWS)
        for f in ops + [step(e, PJW[2], SJ[2])] + rot_steps(e):
            f()
        stamp.loop_pre_barrier()
        e.salu(f"s_sub_u32 {S_CNT}, {S_CNT}, 1")
        e.salu(f"s_cmp_lg_u32 {S_CNT}, 0")
        e.barrier()
        e.salu(f"s_cbranch_scc1 L_c_loop{tag}")
        if not slow:
            stamp()

    out_stage(False, "")
    if STAMPS:
        e.wait_all_vm()
    stamp()
    stamp.dump(False)
    e.salu("s_endpgm")

    e.label("L_c_slow")
    (e.pend, e.lseq, e.vseq, e.ldone, e.vdone) = snap
    e.wr.clear(); e.stw.clear(); e.sgpr_valu.clear()
    e.nop(8)
    e.barrier()
    for mt in range(2):
        for h in range(2):
            for pl in range(2):
                e.ds_write(4, VEFW, KEEPA + 16 * mt + 8 * h + 4 * pl, 64 * mt + 32 * h + 512 * pl)
    e.barrier()
    out_stage(True, "s")
    e.salu("s_endpgm")


def gen_helper(e):
    v = V(e)
    stamp = Stamper(e)
    t0, t1, t2, t3, t4, t5, t6, t7 = T
    L = rn(VL)
    SDBG, SWS = 40, 52
    HVG, HVEGW, HVST, GMAX = 39, 25, 24, 23
    RAW, NFL = MACC, 4
    GFR = MPO
    GEF = 88
    GACC, GKEEP = 104, 112
    e.label("L_helper")
    e.salu("s_setprio 3")
    stamp()
    e.salu(f"s_lshl_b32 {S_RING}, {S_W}, 12")
    e.salu(f"s_add_u32 {S_RING}, {S_RING}, {J2}")
    e.salu(f"s_cmp_ge_u32 s2, 125")
    e.salu(f"s_cselect_b32 {S_B}, 1, 0")
    e.salu(f"s_cmp_ge_u32 s2, {NWG}")
    e.salu("s_cbranch_scc1 L_h_setup2")
    v(f"v_lshlrev_b32 {rn(HVP)}, 6, {L}", [HVP], [VL])
    e.salu(f"s_lshl_b32 {S_LIM}, s48, 2")
    e.salu(f"s_add_u32 {S_LIM}, {S_LIM}, {S_W}")
    e.salu(f"s_lshl_b32 {S_LIM}, {S_LIM}, 12")
    for srd in (SW1, SW2, SWF, SWO):
        e.bload(1, 104, HVP, srd, S_LIM)
    e.salu(f"s_mul_i32 {S_T1}, {S_B}, 125")
    e.salu(f"s_sub_u32 {S_T0}, s2, {S_T1}")
    e.salu(f"s_lshl_b32 {S_T0}, {S_T0}, 7")
    e.salu(f"s_lshl_b32 {S_T1}, {S_W}, 3")
    e.salu(f"s_mul_i32 {S_CNT}, {S_B}, 16000")
    e.salu(f"s_lshl_b32 {S_D}, {S_W}, 10")
    v(f"v_mov_b32 {rn(HC)}, 133", [HC], [])
    v(f"v_bfrev_b32 {rn(HVMAX)}, 1", [HVMAX], [])
    v(f"v_lshrrev_b32 {rn(t6)}, 3, {L}", [t6], [VL])
    v(f"v_add_u32 {rn(t0)}, {S_T1}, {rn(t6)}", [t0], [t6])
    v(f"v_and_b32 {rn(t1)}, 7, {L}", [t1], [VL])
    xseq = {}

    def xconst(j):
        if j < 4:
            v(f"v_add_u32 {rn(t2)}, {32 * j}, {rn(t0)}", [t2], [t0])
        else:
            v(f"v_add_u32 {rn(t2)}, 128, {rn(t6)}", [t2], [t6])
        v(f"v_bfe_u32 {rn(t3)}, {rn(t2)}, 1, 3", [t3], [t2], vop3=True)
        v(f"v_xor_b32 {rn(t3)}, {rn(t1)}, {rn(t3)}", [t3], [t1, t3])
        v(f"v_lshlrev_b32 {rn(t4)}, 1, {rn(t2)}", [t4], [t2])
        v(f"v_cmp_lt_u32 vcc, 64, {rn(t2)}", [], [t2], sw=["vcc"])
        v(f"v_cndmask_b32 {rn(t5)}, 2, {rn(HC)}, vcc", [t5], [HC], sr=["vcc"])
        v(f"v_sub_u32 {rn(t4)}, {rn(t4)}, {rn(t5)}", [t4], [t4, t5])
        v(f"v_add_u32 {rn(t4)}, {S_T0}, {rn(t4)}", [t4], [t4])
        v(f"v_add_u32 {rn(t5)}, {S_CNT}, {rn(t4)}", [t5], [t4])
        v(f"v_lshlrev_b32 {rn(t5)}, 9, {rn(t5)}", [t5], [t5])
        v(f"v_lshl_add_u32 {rn(t5)}, {rn(t3)}, 4, {rn(t5)}", [t5], [t3, t5], vop3=True)
        if j < 4:
            v(f"v_cmp_gt_i32 vcc, 0, {rn(t4)}", [], [t4], sw=["vcc"])
        else:
            v(f"v_cmp_lt_u32 vcc, 130, {rn(t2)}", [], [t2], sw=["vcc"])
        v(f"v_cndmask_b32 {rn(HVX[j])}, {rn(t5)}, {rn(HVMAX)}, vcc", [HVX[j]], [t5, HVMAX], sr=["vcc"])

    def xdma(s, j):
        e.salu(f"s_add_u32 m0, {S_D}, {s * XSL + 4096 * j}", m0=True)
        xseq[s] = e.dma(HVX[j], SX, f"s{44 + s}", flags="nt")

    for j in range(4):
        xconst(j)
        xdma(0, j)
    xconst(4)
    e.salu(f"s_mul_i32 {S_T1}, {S_W}, {XSL}")
    e.salu(f"s_add_u32 {S_T2}, s48, {S_W}")
    e.salu(f"s_and_b32 {S_T2}, {S_T2}, 3")
    e.salu(f"s_lshl_b32 {S_T2}, {S_T2}, 7")
    e.salu(f"s_add_u32 m0, {S_T1}, 16384", m0=True)
    xseq[0] = e.dma(HVX[4], SX, S_T2, flags="nt")
    for j in range(4):
        xdma(1, j)
    e.wait(vseq=xseq[0])
    e.raw("    s_barrier")
    stamp()
    for s in range(2, 4):
        for j in range(4):
            xdma(s, j)
    e.label("L_h_setup2")
    e.salu("s_setprio 0")
    e.salu(f"s_sub_u32 {S_T1}, s2, {NWG}")
    e.salu(f"s_cmp_ge_u32 s2, {NWG}")
    e.salu(f"s_cselect_b32 {S_B}, {S_T1}, {S_B}")
    e.salu(f"s_load_dwordx2 s[{SDBG}:{SDBG + 1}], s[0:1], 64")
    e.salu(f"s_load_dwordx2 s[{SWS}:{SWS + 1}], s[0:1], 72")
    e.salu("s_waitcnt lgkmcnt(0)")
    e.salu(f"s_and_b32 s{SDBG + 1}, s{SDBG + 1}, 0xffff")
    e.salu(f"s_mov_b32 s{SDBG + 2}, 256")
    e.salu(f"s_mov_b32 s{SDBG + 3}, 0x20000")
    e.salu(f"s_and_b32 s{SWS + 1}, s{SWS + 1}, 0xffff")
    e.salu(f"s_mov_b32 s{SWS + 2}, {WS_OFF + 16384}")
    e.salu(f"s_mov_b32 s{SWS + 3}, 0x20000")
    tr_consts(e, False)
    v(f"v_and_b32 {rn(t0)}, 15, {L}", [t0], [VL])
    v(f"v_lshrrev_b32 {rn(t1)}, 4, {L}", [t1], [VL])
    v(f"v_xor_b32 {rn(t2)}, {rn(t0)}, {rn(t1)}", [t2], [t0, t1])
    v(f"v_and_b32 {rn(t2)}, 1, {rn(t2)}", [t2], [t2])
    v(f"v_lshrrev_b32 {rn(t3)}, 1, {rn(t0)}", [t3], [t0])
    e.salu(f"s_lshl_b32 {S_T1}, {S_B}, 3")
    v(f"v_add_u32 {rn(t3)}, {S_T1}, {rn(t3)}", [t3], [t3])
    v(f"v_lshlrev_b32 {rn(t3)}, 9, {rn(t3)}", [t3], [t3])
    v(f"v_lshrrev_b32 {rn(t4)}, 1, {rn(t1)}", [t4], [t1])
    v(f"v_lshl_add_u32 {rn(t3)}, {rn(t4)}, 4, {rn(t3)}", [t3], [t4, t3], vop3=True)
    v(f"v_lshl_or_b32 {rn(HVG)}, {rn(t2)}, 31, {rn(t3)}", [HVG], [t2, t3], vop3=True)
    v(f"v_and_b32 {rn(t2)}, 1, {rn(t0)}", [t2], [t0])
    v(f"v_lshl_or_b32 {rn(t2)}, {rn(t2)}, 2, {rn(t1)}", [t2], [t2, t1], vop3=True)
    perm_q(e, t4, t2, t6, t7)
    v(f"v_lshrrev_b32 {rn(t3)}, 1, {rn(t0)}", [t3], [t0])
    v(f"v_lshlrev_b32 {rn(t3)}, 10, {rn(t3)}", [t3], [t3])
    v(f"v_and_b32 {rn(t5)}, 1, {rn(t4)}", [t5], [t4])
    v(f"v_lshl_add_u32 {rn(t3)}, {rn(t5)}, 9, {rn(t3)}", [t3], [t5, t3], vop3=True)
    v(f"v_lshrrev_b32 {rn(t5)}, 1, {rn(t4)}", [t5], [t4])
    v(f"v_lshl_add_u32 {rn(t3)}, {rn(t5)}, 4, {rn(t3)}", [t3], [t5, t3], vop3=True)
    v(f"v_add_u32 {rn(t3)}, {S_W128}, {rn(t3)}", [t3], [t3])
    v(f"v_add_u32 {rn(HVEGW)}, {EG}, {rn(t3)}", [HVEGW], [t3])
    v(f"v_lshlrev_b32 {rn(t3)}, 4, {L}", [t3], [VL])
    v(f"v_add_u32 {rn(HVST)}, {S_RING}, {rn(t3)}", [HVST], [t3])
    v(f"v_mov_b32 {rn(GMAX)}, 0", [GMAX], [])
    e.salu(f"s_lshl_b32 {S_T0}, {S_B}, 2")
    e.salu(f"s_add_u32 {S_T0}, {S_T0}, {S_W}")
    e.salu(f"s_lshl_b32 {S_T0}, {S_T0}, 11")
    e.salu(f"s_add_u32 {S_T0}, {S_T0}, {WS_OFF}")
    e.salu(f"s_lshl_b32 {S_D}, {S_B}, 2")
    v(f"v_lshrrev_b32 {rn(t0)}, 3, {L}", [t0], [VL])
    v(f"v_lshlrev_b32 {rn(t0)}, 9, {rn(t0)}", [t0], [t0])
    v(f"v_add_u32 {rn(t0)}, {S_W128}, {rn(t0)}", [t0], [t0])
    v(f"v_and_b32 {rn(t1)}, 7, {L}", [t1], [VL])
    v(f"v_lshrrev_b32 {rn(t2)}, 3, {L}", [t2], [VL])
    v(f"v_and_b32 {rn(t2)}, 2, {rn(t2)}", [t2], [t2])
    v(f"v_xor_b32 {rn(t2)}, {rn(t1)}, {rn(t2)}", [t2], [t1, t2])
    v(f"v_lshl_add_u32 {rn(VWO0)}, {rn(t2)}, 4, {rn(t0)}", [VWO0], [t2, t0], vop3=True)
    v(f"v_add_u32 {rn(VWO1)}, 3072, {rn(VWO0)}", [VWO1], [VWO0])
    tr_consts(e, True)
    prod_consts(e, MEFR, MEGR, MJW, 3)
    v(f"v_mul_u32_u24 {rn(t2)}, {HROW}, {rn(t0)}", [t2], [t0])
    v(f"v_lshl_add_u32 {rn(t2)}, {rn(t1)}, 4, {rn(t2)}", [t2], [t1, t2], vop3=True)
    for i in range(2):
        v(f"v_add_u32 {rn(MJR[i])}, {JB[i]}, {rn(t2)}", [MJR[i]], [t2])
    e.salu(f"s_lshl_b32 {S_T2}, {S_W}, 14")
    e.salu(f"s_add_u32 {S_T2}, {S_T2}, {RING}")
    v(f"v_mul_u32_u24 {rn(t2)}, {OROW}, {rn(t0)}", [t2], [t0])
    v(f"v_lshl_add_u32 {rn(t2)}, {rn(t1)}, 6, {rn(t2)}", [t2], [t1, t2], vop3=True)
    v(f"v_add3_u32 {rn(MOW)}, {rn(t2)}, {S_T2}, 0", [MOW], [t2], vop3=True)
    store_consts(e, MOR, MOS, S_T2)
    HHW, HFW, HC1, HRAW = 32, 37, 38, 22
    v(f"v_and_b32 {rn(t0)}, 31, {L}", [t0], [VL])
    v(f"v_lshrrev_b32 {rn(t1)}, 5, {L}", [t1], [VL])
    v(f"v_mul_u32_u24 {rn(t2)}, {HROW}, {rn(t0)}", [t2], [t0])
    v(f"v_lshl_add_u32 {rn(t2)}, {rn(t1)}, 4, {rn(t2)}", [t2], [t1, t2], vop3=True)
    v(f"v_add_u32 {rn(HFW)}, {S_W128}, {rn(t2)}", [HFW], [t2])
    v(f"v_and_b32 {rn(t2)}, 1, {rn(t0)}", [t2], [t0])
    v(f"v_cmp_eq_u32 vcc, 1, {rn(t2)}", [], [t2], sw=["vcc"])
    v(f"v_mov_b32 {rn(t3)}, 1", [t3], [])
    v(f"v_cndmask_b32 {rn(t3)}, {HEVEN}, {rn(t3)}, vcc", [t3], [t3], sr=["vcc"])
    v(f"v_lshrrev_b32 {rn(t2)}, 1, {rn(t0)}", [t2], [t0])
    v(f"v_add_u32 {rn(t2)}, {rn(t2)}, {rn(t3)}", [t2], [t2, t3])
    v(f"v_mul_u32_u24 {rn(t2)}, {HROW}, {rn(t2)}", [t2], [t2])
    v(f"v_lshl_add_u32 {rn(t2)}, {rn(t1)}, 4, {rn(t2)}", [t2], [t1, t2], vop3=True)
    v(f"v_add_u32 {rn(HHW)}, {S_W128}, {rn(t2)}", [HHW], [t2])
    v(f"v_mov_b32 {rn(HC1)}, {f32(GC1)}", [HC1], [])
    e.salu(f"s_lshl_b32 {S_T1}, {S_W}, 13")
    e.salu(f"s_add_u32 {S_T1}, {S_T1}, {FB}")
    v(f"v_lshlrev_b32 {rn(t3)}, 4, {L}", [t3], [VL])
    v(f"v_add_u32 {rn(HRAW)}, {S_T1}, {rn(t3)}", [HRAW], [t3])
    e.salu(f"s_cmp_ge_u32 s2, {NWG}")
    e.salu("s_cbranch_scc1 L_ge")
    e.wait(vseq=xseq[3])
    e.raw("    s_barrier")
    stamp()

    def unit_ops(srd, wo, lo=0, hi=16, raw=RAW):
        trseq = {}
        ops = []

        def load(u):
            e.salu(f"s_mov_b32 {S_SOFF}, {u * 8192}")
            r = raw + 8 * (u % NFL)
            e.bload(4, r, VWO0 if wo else VW0, srd, S_SOFF)
            e.bload(4, r + 4, VWO1 if wo else VW1, srd, S_SOFF, off=1024)
            if not wo:
                e.bload(4, GFR + 4 * (u % 4), HVG, SG, 0, off=32 * u)

        def stage(u):
            r = raw + 8 * (u % NFL)
            slot = (u % 2) * 2048
            if u - 2 >= lo:
                e.wait(lseq=trseq[u - 2])
            e.ds_write(4, HVST, r, slot)
            e.ds_write(4, HVST, r + 4, slot + 1024)
            d = WO_DEST[u] if wo else GEF + 8 * (u % 2)
            va = VTRO if wo else VTR
            for mt in range(2):
                for jj in range(2):
                    trseq[u] = e.ds_read(2, d + 4 * mt + 2 * jj, va[mt], slot + jj * 512, tr=True)

        def mm(u):
            dp = GEF + 8 * (u % 2)
            for mt in range(2):
                e.mfma(False, GACC + 4 * mt, dp + 4 * mt, GFR + 4 * (u % 4), GACC + 4 * mt if u else None)

        nfl = NFL if wo else NFL - 1
        for u in range(lo, min(lo + nfl, hi)):
            ops.append(lambda u=u: load(u))
        for u in range(lo, hi + 1):
            if u < hi:
                ops.append(lambda u=u: stage(u))
            if not wo and u >= 1:
                ops.append(lambda u=u: mm(u - 1))
            if u + nfl < hi:
                ops.append(lambda u=u: load(u + nfl))
        return ops

    def run_units(srd, wo, lo=0, hi=16):
        for f in unit_ops(srd, wo, lo, hi):
            f()

    e.raw("    s_barrier")
    wops = unit_ops(SWO, True, 0, WO_SPLIT[0], raw=92) if WO_SPLIT[0] else []
    for f in wops[:NFL]:
        f()
    e.raw("    s_barrier")
    GA, GP, GT = 40, 72, rng(88, 4)
    for q in range(8):
        e.ds_read(4, GA + 4 * q, HRAW, 1024 * q)
    gops = []
    for nt in range(2):
        gops += gelu_list(e, rng(GA + 16 * nt, 16), rng(GP + 8 * nt, 8), GT, HC1)
        for h in range(2):
            gops.append(lambda nt=nt, h=h: e.ds_write(4, HHW, GP + 8 * nt + 4 * h, nt * 16 * HROW + 64 + 32 * h))
    for f in merge(gops, wops[NFL:]):
        f()
    e.wait_all_lds()
    e.salu(f"s_buffer_load_dword {S_T1}, s[{SDBG}:{SDBG + 3}], {S_D}")
    e.salu("s_waitcnt lgkmcnt(0)")
    stamp()
    e.raw("    s_barrier")
    e.salu(f"s_cmp_lg_u32 {S_T1}, {4 if not X_NOPUB else 99}")
    e.salu("s_cbranch_scc1 L_ge")
    v(f"v_lshlrev_b32 {rn(t3)}, 4, {L}", [t3], [VL])
    e.bload(4, GACC, t3, SWS, S_T0, flags="sc1")
    e.bload(4, GACC + 4, t3, SWS, S_T0, off=1024, flags="sc1")
    e.salu("s_branch L_ge_done")
    e.label("L_ge")
    e.pend.clear(); e.wr.clear()
    e.ldone, e.vdone = e.lseq, e.vseq
    e.raw("    s_waitcnt vmcnt(0) lgkmcnt(0)")
    run_units(SWG, False)
    e.nop(10)
    e.salu(f"s_cmp_lt_u32 s2, {NWG}")
    e.salu("s_cbranch_scc1 L_ge_done")
    v(f"v_lshlrev_b32 {rn(t3)}, 4, {L}", [t3], [VL])
    e.bstore(4, GACC, t3, SWS, S_T0, flags="sc0 sc1")
    e.bstore(4, GACC + 4, t3, SWS, S_T0, off=1024, flags="sc0 sc1")
    e.wait_all_vm()
    v(f"v_mov_b32 {rn(t0)}, 0", [t0], [])
    v(f"v_mov_b32 {rn(t1)}, 1", [t1], [])
    e.salu("s_mov_b64 exec, 1")
    e.raw(f"    buffer_atomic_add {rn(t1)}, {rn(t0)}, s[{SDBG}:{SDBG + 3}], {S_D} offen sc1")
    e.salu("s_endpgm")
    e.label("L_ge_done")
    e.pend.clear(); e.wr.clear()
    e.raw("    s_waitcnt lgkmcnt(0)")
    e.ldone = e.lseq
    e.vseq += 2
    for r in rng(GACC, 8):
        e.pend[r] = ('v', e.vseq)

    def finish_ge():
        exp_stage(e, GACC, GKEEP, 120, 8, GMAX)
        for i in range(8):
            v(f"v_mul_f32 {rn(120 + i)}, -0.5, {rn(120 + i)}", [120 + i], [120 + i])
        for mt in range(2):
            e.ds_write(4, HVEGW, 120 + 4 * mt, 64 * mt)
        publish_flag(e, GMAX, 16)

    if WO_SPLIT[1] > WO_SPLIT[0]:
        run_units(SWO, True, WO_SPLIT[0], WO_SPLIT[1])
    finish_ge()
    stamp()
    e.barrier()
    wops = unit_ops(SWO, True, WO_SPLIT[1], WO_LATE, raw=56)
    for f in wops[:NFL]:
        f()
    e.raw("    s_barrier")
    for q in range(4):
        e.ds_read(4, GA + 4 * q, HVST, 1024 * q)
    for f in gelu_list(e, rng(GA, 16), rng(92, 8), GT, HC1):
        f()
    for h in range(2):
        e.ds_write(4, HFW, 92 + 4 * h, FB + 64 + 32 * h)
    e.barrier()
    for f in wops[NFL:]:
        f()
    stamp()
    e.barrier()
    stamp()
    flag_check(e, "L_h_slow")
    snap = (copy.deepcopy(e.pend), e.lseq, e.vseq, e.ldone, e.vdone)

    def epi_ops():
        ops = []
        for q in range(4):
            for i in range(4):
                k = 4 * q + i
                ops.append(lambda k=k: v(f"v_cvt_pk_bf16_f32 {rn(MOUT + k)}, {rn(MOUT + 2 * k)}, {rn(MOUT + 2 * k + 1)}",
                                         [MOUT + k], [MOUT + 2 * k, MOUT + 2 * k + 1], vop3=True))
            ops.append(lambda q=q: e.ds_write(4, MOW, MOUT + 4 * q, 16 * q))
        return ops

    def jread(idx):
        reg = MJR[0] if idx < 16 else MJR[1]
        return lambda: e.ds_read(4, MBF[idx % 4], reg, 32 * (idx % 16))

    def chunk_body(slow):
        prod = produce_ops(e, slow, MEFR, MJW[2], MEG, MEF, MWK, MPK, 1) + [step(e, MJW[2], SJ[2])]
        if X_NOMPROD or PROWS == 4:
            prod = []
        epi = epi_ops()
        rbs = readback_store_ops(e, MOR, MOS, MOUT + 16)
        plan = {}
        for i, f in enumerate(epi):
            plan.setdefault(i // 2, []).append(f)
        for i in range(4):
            plan.setdefault(10 + i, []).append(rbs[i])
            plan.setdefault(ST0 + STD * i, []).append(rbs[4 + i])
        for ks in range(16):
            wo = WO_DEST[ks]
            for mt in range(2):
                dst = (MOUT if ks == 15 else MACC) + 16 * mt
                e.mfma(True, dst, wo + 4 * mt, MBF[ks % 4], MACC + 16 * mt if ks else None)
                if mt == 0:
                    jread(ks + JD)()
                for f in plan.get(2 * ks + mt - 1, []):
                    f()
        v(f"v_mov_b32 {rn(MJR[0])}, {rn(MJR[1])}", [MJR[0]], [MJR[1]])
        step(e, MJR[1], SJ[1])()
        for f in rot_steps(e):
            f()

    def out_stage(slow, tag):
        if WO_LATE < 16:
            run_units(SWO, True, WO_LATE, 16)
        init_steps(e)
        e.salu(f"s_mov_b32 {S_CNT}, 8")
        e.salu(f"s_mov_b32 {S_OS}, 0x7ff00000")
        e.salu(f"s_setprio {X_PRIO}")
        e.barrier()
        for i in range(JD):
            jread(i)()
        e.wait_all_lds()
        loop_fence(e)
        if STAMPS:
            e.salu("s_mov_b32 s101, 0")
        e.label(f"L_h_loop{tag}")
        stamp.loop_top()
        chunk_body(slow)
        stamp.loop_pre_barrier()
        e.salu(f"s_cmp_eq_u32 {S_CNT}, 8")
        e.salu(f"s_cselect_b32 {S_OS}, {S_OBASE}, {S_OS}")
        e.salu(f"s_sub_u32 {S_CNT}, {S_CNT}, 1")
        e.salu(f"s_cmp_lg_u32 {S_CNT}, 0")
        e.barrier()
        e.salu(f"s_cbranch_scc1 L_h_loop{tag}")
        if not slow:
            stamp()
        for f in epi_ops() + readback_store_ops(e, MOR, MOS, MOUT + 16):
            f()

    out_stage(False, "")
    if STAMPS:
        e.wait_all_vm()
    stamp()
    stamp.dump(True)
    if X_DIAG:
        e.wait_all_vm()
        e.salu("s_memrealtime s[98:99]")
        e.salu("s_waitcnt lgkmcnt(0)")
        e.salu("s_not_b32 s97, s96")
        e.salu("s_sub_u32 s99, s98, s96")
        v(f"v_mov_b32 {rn(t0)}, 0", [t0], [])
        v(f"v_mov_b32 {rn(t1)}, s98", [t1], [])
        v(f"v_mov_b32 {rn(t2)}, s97", [t2], [])
        v(f"v_mov_b32 {rn(t3)}, s99", [t3], [])
        v(f"v_mov_b32 {rn(t4)}, s96", [t4], [])
        e.salu("s_mov_b64 exec, 1")
        e.raw(f"    buffer_atomic_umax {rn(t1)}, {rn(t0)}, s[{SDBG}:{SDBG + 3}], 0 offen offset:32")
        e.raw(f"    buffer_atomic_umax {rn(t2)}, {rn(t0)}, s[{SDBG}:{SDBG + 3}], 0 offen offset:36")
        e.raw(f"    buffer_atomic_umax {rn(t3)}, {rn(t0)}, s[{SDBG}:{SDBG + 3}], 0 offen offset:40")
        e.raw(f"    buffer_atomic_umax {rn(t4)}, {rn(t0)}, s[{SDBG}:{SDBG + 3}], 0 offen offset:44")
    e.salu("s_endpgm")

    e.label("L_h_slow")
    (e.pend, e.lseq, e.vseq, e.ldone, e.vdone) = snap
    e.wr.clear(); e.stw.clear(); e.sgpr_valu.clear()
    e.nop(8)
    e.barrier()
    for mt in range(2):
        e.ds_write(4, HVEGW, GKEEP + 4 * mt, 64 * mt)
    e.barrier()
    out_stage(True, "s")
    e.label("L_end")
    e.salu("s_endpgm")


def split_slow(text, label):
    i = text.index(label + ":")
    return text[:i], text[i:]


def generate():
    e0 = Emitter()
    common_prologue(e0)
    ec = Emitter()
    gen_compute(ec)
    eh = Emitter()
    gen_helper(eh)
    cf, cs = split_slow(ec.text(), "L_c_slow")
    hf, hs = split_slow(eh.text(), "L_h_slow")
    return e0.text() + cf + hf + cs + hs, ec, eh


HEADER = f"""; Fused conv stem (2x stride-2 conv1d + gelu) + RNN-T joint network, one workgroup per 32 output frames.
; @launch grid=({NGRID},1,1) block=(512,1,1) lds={LDS_BYTES}
.amdgcn_target "amdgcn-amd-amdhsa--gfx950"
.text
.globl {NAME}_kernel
.p2align 8
.type {NAME}_kernel,@function
{NAME}_kernel:
"""

FOOTER = f""".section .rodata,"a"
.p2align 6
.amdhsa_kernel {NAME}_kernel
  .amdhsa_next_free_vgpr 256
  .amdhsa_next_free_sgpr 102
  .amdhsa_accum_offset {ACCOFF}
  .amdhsa_group_segment_fixed_size 0
  .amdhsa_kernarg_size 80
  .amdhsa_user_sgpr_count 2
  .amdhsa_user_sgpr_kernarg_segment_ptr 1
  .amdhsa_system_sgpr_workgroup_id_x 1
.end_amdhsa_kernel
"""

if __name__ == "__main__":
    STAMPS = "--stamps" in sys.argv
    if "--out" in sys.argv:
        STAMPMODE = "out"
    if "--h" in sys.argv:
        STAMPMODE = "h"
    if "--bar" in sys.argv:
        STAMPMODE = "bar"
    args = [a for a in sys.argv[1:] if not a.startswith("--")]
    text, ec, eh = generate()
    path = args[0] if args else f"cdna_kernels/{NAME}.s"
    open(path, "w").write(HEADER + text + FOOTER)
    cnt = lambda e: sum(1 for l in e.out if l.startswith("    ") and not l.strip().startswith(";"))
    print("instructions C:", cnt(ec), "H:", cnt(eh))
```

```python
import copy
import struct
import sys

from emit import Emitter, rn, rng

NAME = "standalone__seq2seq_rnn_t_joint__speech"
NWG = 250
NGRID = 252
STAMPS = False
STAMPMODE = "front"
import os
X_NOSTORE = "X_NOSTORE" in os.environ
X_NOMPROD = "X_NOMPROD" in os.environ
X_NOPPROD = "X_NOPPROD" in os.environ
X_PRIO = os.environ.get("X_PRIO", "1")
X_NOH = os.environ.get("X_NOH", "")
X_SLACK = int(os.environ.get("X_SLACK", "2"))
X_NOROT = "X_NOROT" in os.environ
X_LAT = float(os.environ.get("X_LAT", "900"))
X_C1 = os.environ.get("X_C1", "")
X_NOPUB = "X_NOPUB" in os.environ
WS_OFF = 1 << 20
WO_SPLIT = [int(x) for x in os.environ.get("WO_SPLIT", "0,0").split(",")]
WO_NFL = int(os.environ.get("WO_NFL", "4"))
WO_B5 = int(os.environ.get("WO_B5", "7"))
X_NOLOOPST = "X_NOLOOPST" in os.environ
X_NOEPI = "X_NOEPI" in os.environ
JD = int(os.environ.get("JD", "3"))
X_FOLD = "X_FOLD" in os.environ
PROWS = int(os.environ.get("PROWS", "4"))
ST0 = int(os.environ.get("ST0", "14"))
STD = int(os.environ.get("STD", "4"))
AHEAD = int(os.environ.get("AHEAD", "1"))
PUMP_EVERY = int(os.environ.get("PUMP_EVERY", "14"))
WO_LATE = int(os.environ.get("WO_LATE", "8"))
X_RT = "X_RT" in os.environ
X_DIAG = "X_DIAG" in os.environ
ST_FLAGS = os.environ.get("ST_FLAGS", "")
B4_AT = int(os.environ.get("B4_AT", "26"))

XSL = 17408
ZROW = 3 * XSL + 131 * 128
RING = 69632
EG = 135168
FLAG = 143360
J2 = 143392
DUMMY = 160768
LDS_BYTES = 161792
HROW = 528
HEVEN = 37
FB = 36864
EFROW = 1040
JB = [33280, 50176, J2]
OROW = 144
TBSZ = 32 * OROW

SX, SW1, SW2, SG, SWF, SWG, SWO, SOUT = 8, 12, 16, 20, 24, 28, 32, 36
S_W, S_RING, S_SOFF, S_B, S_T0, S_D, S_OS, S_OBASE, S_FLAG, S_T1, S_T2, S_LIM, S_CNT, S_W128 = \
    "s56", "s57", "s58", "s59", "s60", "s61", "s62", "s63", "s64", "s65", "s66", "s67", "s68", "s69"

ACCOFF = 160
A0 = 256

VL = 1
T = list(range(2, 10))
VW0, VW1 = 10, 11
VTR = [14, 15]
VXB = [[18 + 4 * t + k for k in range(4)] for t in range(3)]
VXH = [[30 + 4 * t + k for k in range(4)] for t in range(3)]
VHW, VHH, VHR, VFW, VEFW, VC1, VMAX, VOS, VEFR, VEGR, VEGW, VGR = range(42, 54)
ACC = 56
HACC = 120
TMP = 128
KEEPA = TMP
FBUF = A0
VS = 8
BFR = A0 + 64
KEEPB = A0 + 88
RS = 8
PEG = ACC
PEF = ACC + 32
PWK = ACC + 40
PPK = ACC + 48
PRB = ACC + 52
PJW = [18, 19, 20]
POR = [21, 22, 23]
VWO0, VWO1 = 12, 13
VTRO = [16, 17]
HVX = [18, 19, 20, 21, 22]
HVP, HVMAX, HC, MEFR, MEGR, MOR, MOS = range(23, 30)
MJR = [30, 31]
MJW = [33, 34, 35]
MOW = 36
MACC = 40
MPO = 72
MOUT = 72
MEG = 104
MEF = 112
MWK = 10
MPK = 22
MBF = [120, 124, 18, 4]
WO_DEST = [A0 + 8 * i for i in range(12)] + [128 + 8 * i for i in range(4)]
HRS = 2

LOG2E = 1.4426950408889634
GC0 = -2.0 * 0.7978845608028654 * LOG2E
GC1 = GC0 * 0.044715
TSC = 2.0 * LOG2E


def f32(x):
    return "0x%08x" % struct.unpack("<I", struct.pack("<f", x))[0]


class Stream:
    LAT = X_LAT
    RATE = 140.0

    def __init__(self, e, rs, vs, fbuf):
        self.e = e
        self.rs, self.vs, self.fbuf = rs, vs, fbuf
        self.units = []
        self.du = self.tu = self.cu = 0
        self.dseq, self.tseq, self.arr = {}, {}, {}
        self.last_arr = 0.0
        self.tr_limit = 10 ** 9
        self.slot_of = {}
        self.free = [fbuf + 8 * i for i in range(vs)]
        self.released = 0

    def add_slots(self, regs):
        self.free += regs

    def _release(self):
        while self.released < self.cu:
            d = self.slot_of[self.released]
            if d not in self.retired:
                self.free.append(d)
            self.released += 1

    retired = set()

    def add(self, srd, soff, wo_idx=None):
        self.units.append((srd, soff, wo_idx))

    def dest(self, u):
        return self.slot_of[u]

    def can_dma(self):
        u = self.du
        slack = X_SLACK if self.rs > 2 else 1
        return u < len(self.units) and (u < self.rs or u - self.rs <= self.tu - slack)

    def do_dma(self):
        e, u = self.e, self.du
        srd, soff, wo = self.units[u]
        if u >= self.rs:
            e.wait(lseq=self.tseq[u - self.rs])
        e.salu(f"s_add_u32 m0, {S_RING}, {(u % self.rs) * 2048}", m0=True)
        if isinstance(soff, tuple):
            e.salu(f"s_add_u32 {S_SOFF}, {soff[0]}, {soff[1]}")
        else:
            e.salu(f"s_mov_b32 {S_SOFF}, {soff}")
        if "nodma" in X_C1 and 12 <= u < 48:
            self.dseq[u] = 0
        else:
            e.dma(VWO0 if wo is not None else VW0, srd, S_SOFF)
            self.dseq[u] = e.dma(VWO1 if wo is not None else VW1, srd, S_SOFF, off=1024)
        self.last_arr = max(e.t + self.LAT, self.last_arr + self.RATE)
        self.arr[u] = self.last_arr
        self.du += 1

    def _dest_free(self, u):
        self._release()
        return len(self.free) > 0

    def can_tr(self, timed=True):
        u = self.tu
        if u >= self.du or u >= self.tr_limit or not self._dest_free(u):
            return False
        return (not timed) or self.arr[u] <= self.e.t

    def do_tr(self):
        e, u = self.e, self.tu
        wo = self.units[u][2]
        e.wait(vseq=self.dseq[u])
        e.t = max(e.t, self.arr[u])
        self._release()
        d = self.slot_of[u] = self.free.pop(0)
        va = VTRO if wo is not None else VTR
        for mt in range(2):
            for jj in range(2):
                self.tseq[u] = e.ds_read(2, d + 4 * mt + 2 * jj, va[mt], (u % self.rs) * 2048 + jj * 512, tr=True)
        self.tu += 1

    def pump(self, max_ops=2):
        n = 0
        while n < max_ops:
            if self.can_tr():
                self.do_tr()
            elif self.can_dma():
                self.do_dma()
            else:
                break
            n += 1

    def ensure(self, u):
        while self.tu <= u:
            while self.du <= self.tu:
                assert self.can_dma()
                self.do_dma()
            assert self.can_tr(timed=False), (u, self.tu, self.cu)
            self.do_tr()

    def state(self):
        return (self.du, self.tu, self.cu, dict(self.dseq), dict(self.tseq), dict(self.arr), self.last_arr, self.tr_limit)

    def restore(self, s):
        (self.du, self.tu, self.cu, self.dseq, self.tseq, self.arr, self.last_arr, self.tr_limit) = \
            (s[0], s[1], s[2], dict(s[3]), dict(s[4]), dict(s[5]), s[6], s[7])


def interleave(mains, fillers):
    n = len(mains)
    k = 0
    for i, m in enumerate(mains):
        m()
        upto = (len(fillers) * (i + 1) + n - 1) // n
        while k < upto:
            fillers[k]()
            k += 1


def merge(a, b):
    out = []
    ia = ib = 0
    na, nb = len(a), len(b)
    while ia < na or ib < nb:
        if ib >= nb or (ia < na and ia * max(nb, 1) <= ib * max(na, 1)):
            out.append(a[ia]); ia += 1
        else:
            out.append(b[ib]); ib += 1
    return out


class Stamper:
    def __init__(self, e):
        self.e, self.n = e, 0

    def __call__(self, tag="front"):
        if not STAMPS or (tag != STAMPMODE and self.n > 0) or self.n >= 14:
            return
        e = self.e
        e.wait_all_lds()
        e.salu(f"{'s_memrealtime' if X_RT else 's_memtime'} s[{70 + 2 * self.n}:{71 + 2 * self.n}]")
        e.salu("s_waitcnt lgkmcnt(0)")
        self.n += 1

    def loop_top(self):
        if not STAMPS or X_NOLOOPST:
            return
        e = self.e
        e.salu("s_memtime s[98:99]")
        e.salu("s_waitcnt lgkmcnt(0)")
        e.salu("s_mov_b32 s100, s98")

    def loop_pre_barrier(self):
        if not STAMPS or X_NOLOOPST:
            return
        e = self.e
        e.wait_all_lds()
        e.salu("s_memtime s[98:99]")
        e.salu("s_waitcnt lgkmcnt(0)")
        e.salu("s_sub_u32 s98, s98, s100")
        e.salu("s_add_u32 s101, s101, s98")

    def dump(self, helper):
        if not STAMPS:
            return
        e = self.e
        e.salu("s_load_dwordx2 s[40:41], s[0:1], 72")
        e.salu("s_waitcnt lgkmcnt(0)")
        e.salu("s_and_b32 s41, s41, 0xffff")
        e.salu("s_mov_b32 s42, 131072")
        e.salu("s_mov_b32 s43, 0x20000")
        e.salu(f"s_lshl_b32 {S_T1}, s2, 3")
        e.salu(f"s_add_u32 {S_T1}, {S_T1}, {S_W}")
        if helper:
            e.salu(f"s_add_u32 {S_T1}, {S_T1}, 4")
        e.salu(f"s_lshl_b32 {S_T1}, {S_T1}, 6")
        e.valu(f"v_mov_b32 {rn(T[1])}, 0", [T[1]], [])
        for i in range(16):
            if i == 15:
                e.salu("s_add_u32 s101, s101, s70")
                e.valu(f"v_mov_b32 {rn(T[0])}, s101", [T[0]], [])
            else:
                e.valu(f"v_mov_b32 {rn(T[0])}, s{70 + 2 * min(i, self.n - 1)}", [T[0]], [])
            e.bstore(1, T[0], T[1], 40, S_T1, off=4 * i)


def V(e):
    return lambda text, w=(), r=(), **kw: e.valu(text, w, r, **kw)


def common_prologue(e):
    v = V(e)
    if X_DIAG:
        e.salu("s_memrealtime s[96:97]")
    e.salu(f"s_cmp_ge_u32 s2, {NGRID}")
    e.salu("s_cbranch_scc1 L_end")
    e.salu("s_load_dwordx16 s[40:55], s[0:1], 0")
    v(f"v_and_b32 {rn(VL)}, 63, v0", [VL], [0])
    v(f"v_lshrrev_b32 {rn(T[0])}, 6, v0", [T[0]], [0])
    e.rfl(S_CNT, T[0])
    e.salu(f"s_and_b32 {S_W}, {S_CNT}, 3")
    e.salu(f"s_lshl_b32 {S_W128}, {S_W}, 7")
    e.salu(f"s_lshl_b32 {S_OBASE}, s2, 17")
    t0, t1, t2 = T[:3]
    L = rn(VL)
    v(f"v_lshrrev_b32 {rn(t0)}, 3, {L}", [t0], [VL])
    v(f"v_lshlrev_b32 {rn(t0)}, 9, {rn(t0)}", [t0], [t0])
    v(f"v_add_u32 {rn(t0)}, {S_W128}, {rn(t0)}", [t0], [t0])
    v(f"v_and_b32 {rn(t1)}, 7, {L}", [t1], [VL])
    v(f"v_lshrrev_b32 {rn(t2)}, 2, {L}", [t2], [VL])
    v(f"v_and_b32 {rn(t2)}, 4, {rn(t2)}", [t2], [t2])
    v(f"v_xor_b32 {rn(t2)}, {rn(t1)}, {rn(t2)}", [t2], [t1, t2])
    v(f"v_lshl_add_u32 {rn(VW0)}, {rn(t2)}, 4, {rn(t0)}", [VW0], [t2, t0], vop3=True)
    v(f"v_add_u32 {rn(VW1)}, 3072, {rn(VW0)}", [VW1], [VW0])
    sizes = [16384000, 393216, 393216, 8192, 131072, 131072, 131072, 32768000]
    for i, srd in enumerate([SX, SW1, SW2, SG, SWF, SWG, SWO, SOUT]):
        e.salu(f"s_mov_b32 s{srd + 2}, {sizes[i]}")
        e.salu(f"s_mov_b32 s{srd + 3}, 0x20000")
    e.salu("s_waitcnt lgkmcnt(0)")
    for i, srd in enumerate([SX, SW1, SW2, SG, SWF, SWG, SWO, SOUT]):
        e.salu(f"s_mov_b32 s{srd}, s{40 + 2 * i}")
        e.salu(f"s_and_b32 s{srd + 1}, s{41 + 2 * i}, 0xffff")
    e.salu("s_lshr_b32 s48, s2, 3")
    for i in range(4):
        e.salu(f"s_add_u32 s{44 + i}, {0 if X_NOROT else 's48'}, {i}")
        e.salu(f"s_and_b32 s{44 + i}, s{44 + i}, 3")
        e.salu(f"s_lshl_b32 s{44 + i}, s{44 + i}, 7")
    e.salu(f"s_cmp_ge_u32 {S_CNT}, 4")
    e.salu("s_cbranch_scc1 L_helper")
    e.salu(f"s_cmp_ge_u32 s2, {NWG}")
    e.salu("s_cbranch_scc1 L_end")


def perm_q(e, dst, q, ta, tb):
    v = V(e)
    v(f"v_and_b32 {rn(ta)}, 1, {rn(q)}", [ta], [q])
    v(f"v_bfe_u32 {rn(tb)}, {rn(q)}, 1, 1", [tb], [q], vop3=True)
    v(f"v_lshl_or_b32 {rn(ta)}, {rn(ta)}, 1, {rn(tb)}", [ta], [ta, tb], vop3=True)
    v(f"v_and_or_b32 {rn(dst)}, {rn(q)}, 4, {rn(ta)}", [dst], [q, ta], vop3=True)


def tr_consts(e, wo):
    v = V(e)
    t0, t1, t2, t3, t4, t5, t6, t7 = T
    L = rn(VL)
    v(f"v_lshrrev_b32 {rn(t0)}, 4, {L}", [t0], [VL])
    v(f"v_bfe_u32 {rn(t1)}, {L}, 2, 2", [t1], [VL], vop3=True)
    v(f"v_and_b32 {rn(t2)}, 3, {L}", [t2], [VL])
    v(f"v_and_b32 {rn(t3)}, 1, {rn(t0)}", [t3], [t0])
    v(f"v_lshl_or_b32 {rn(t2)}, {rn(t3)}, 2, {rn(t2)}", [t2], [t3, t2], vop3=True)
    v(f"v_lshrrev_b32 {rn(t3)}, 1, {rn(t0)}", [t3], [t0])
    v(f"v_lshlrev_b32 {rn(t3)}, 10, {rn(t3)}", [t3], [t3])
    v(f"v_lshl_add_u32 {rn(t3)}, {rn(t1)}, 7, {rn(t3)}", [t3], [t1, t3], vop3=True)
    v(f"v_add_u32 {rn(t3)}, {S_RING}, {rn(t3)}", [t3], [t3])
    v(f"v_lshrrev_b32 {rn(t1)}, 1, {rn(t1)}", [t1], [t1])
    if not wo:
        perm_q(e, t4, t2, t6, t7)
        v(f"v_lshlrev_b32 {rn(t4)}, 3, {rn(t4)}", [t4], [t4])
        v(f"v_lshl_or_b32 {rn(t4)}, {rn(t1)}, 6, {rn(t4)}", [t4], [t1, t4], vop3=True)
        v(f"v_add_u32 {rn(VTR[0])}, {rn(t3)}, {rn(t4)}", [VTR[0]], [t3, t4])
        v(f"v_xor_b32 {rn(t4)}, 64, {rn(t4)}", [t4], [t4])
        v(f"v_add_u32 {rn(VTR[1])}, {rn(t3)}, {rn(t4)}", [VTR[1]], [t3, t4])
    else:
        v(f"v_and_b32 {rn(t4)}, 1, {rn(t2)}", [t4], [t2])
        v(f"v_lshlrev_b32 {rn(t4)}, 6, {rn(t4)}", [t4], [t4])
        v(f"v_lshrrev_b32 {rn(t5)}, 1, {rn(t2)}", [t5], [t2])
        v(f"v_lshl_or_b32 {rn(t4)}, {rn(t5)}, 3, {rn(t4)}", [t4], [t5, t4], vop3=True)
        v(f"v_lshl_or_b32 {rn(t4)}, {rn(t1)}, 5, {rn(t4)}", [t4], [t1, t4], vop3=True)
        v(f"v_add_u32 {rn(VTRO[0])}, {rn(t3)}, {rn(t4)}", [VTRO[0]], [t3, t4])
        v(f"v_xor_b32 {rn(t4)}, 32, {rn(t4)}", [t4], [t4])
        v(f"v_add_u32 {rn(VTRO[1])}, {rn(t3)}, {rn(t4)}", [VTRO[1]], [t3, t4])


def store_consts(e, vor, vos, ring_sgpr):
    v = V(e)
    t2, t3, t4 = T[2:5]
    L = rn(VL)
    v(f"v_lshrrev_b32 {rn(t2)}, 3, {L}", [t2], [VL])
    v(f"v_and_b32 {rn(t3)}, 7, {L}", [t3], [VL])
    v(f"v_lshlrev_b32 {rn(t3)}, 4, {rn(t3)}", [t3], [t3])
    v(f"v_mul_u32_u24 {rn(t4)}, {OROW}, {rn(t2)}", [t4], [t2])
    v(f"v_add3_u32 {rn(vor)}, {rn(t4)}, {rn(t3)}, {ring_sgpr}", [vor], [t4, t3], vop3=True)
    v(f"v_lshl_add_u32 {rn(t4)}, {rn(t2)}, 9, {rn(t3)}", [t4], [t2, t3], vop3=True)
    v(f"v_add_u32 {rn(vos)}, {S_W128}, {rn(t4)}", [vos], [t4])


def prod_consts(e, vefr, vegr, vjw, uu0):
    v = V(e)
    t0, t1, t2, t3 = T[:4]
    L = rn(VL)
    v(f"v_and_b32 {rn(t0)}, 31, {L}", [t0], [VL])
    v(f"v_lshrrev_b32 {rn(t1)}, 5, {L}", [t1], [VL])
    e.salu(f"s_mul_i32 {S_T1}, {S_W}, {EFROW}")
    v(f"v_lshlrev_b32 {rn(t2)}, 4, {rn(t0)}", [t2], [t0])
    v(f"v_add_u32 {rn(vefr)}, {S_T1}, {rn(t2)}", [vefr], [t2])
    v(f"v_lshl_add_u32 {rn(t3)}, {rn(t1)}, 12, {rn(t2)}", [t3], [t1, t2], vop3=True)
    v(f"v_add_u32 {rn(vegr)}, {EG + uu0 * 1024}, {rn(t3)}", [vegr], [t3])
    e.salu(f"s_mul_i32 {S_T1}, {S_W}, {8 * HROW}")
    v(f"v_mul_u32_u24 {rn(t3)}, {4 * HROW}, {rn(t1)}", [t3], [t1])
    v(f"v_add3_u32 {rn(t3)}, {rn(t3)}, {rn(t2)}, {S_T1}", [t3], [t3, t2], vop3=True)
    for i in range(3):
        v(f"v_add_u32 {rn(vjw[i])}, {JB[i] + uu0 * HROW}, {rn(t3)}", [vjw[i]], [t3])


def c_consts_ge(e):
    v = V(e)
    t0, t1, t2, t3, t4, t5, t6, t7 = T
    L = rn(VL)
    v(f"v_and_b32 {rn(t0)}, 15, {L}", [t0], [VL])
    v(f"v_lshrrev_b32 {rn(t1)}, 4, {L}", [t1], [VL])
    v(f"v_and_b32 {rn(t2)}, 1, {rn(t0)}", [t2], [t0])
    v(f"v_lshl_or_b32 {rn(t2)}, {rn(t2)}, 2, {rn(t1)}", [t2], [t2, t1], vop3=True)
    perm_q(e, t4, t2, t6, t7)
    v(f"v_lshlrev_b32 {rn(t3)}, 3, {rn(t4)}", [t3], [t4])
    v(f"v_add_u32 {rn(t3)}, {S_W128}, {rn(t3)}", [t3], [t3])
    v(f"v_mov_b32 {rn(t5)}, {DUMMY}", [t5], [])
    v(f"v_cmp_gt_u32 vcc, 2, {rn(t0)}", [], [t0], sw=["vcc"])
    v(f"v_cndmask_b32 {rn(VHH)}, {rn(t5)}, {rn(t3)}, vcc", [VHH], [t5, t3], sr=["vcc"])
    v(f"v_mov_b32 {rn(VMAX)}, 0", [VMAX], [])
    e.salu(f"s_lshl_b32 {S_T1}, {S_W}, 13")
    e.salu(f"s_add_u32 {S_T1}, {S_T1}, {FB}")
    v(f"v_lshlrev_b32 {rn(t3)}, 4, {L}", [t3], [VL])
    v(f"v_add_u32 {rn(VGR)}, {S_T1}, {rn(t3)}", [VGR], [t3])
    e.salu(f"s_lshl_b32 {S_T1}, {S_W}, 12")
    e.salu(f"s_add_u32 {S_T1}, {S_T1}, {J2}")
    v(f"v_add_u32 {rn(VEGW)}, {S_T1}, {rn(t3)}", [VEGW], [t3])


def c_consts_ops(e):
    v = V(e)
    t0, t1, t2, t3, t4, t5, t6, t7 = T
    L = rn(VL)
    ops = []
    a = lambda *args, **kw: ops.append(lambda: v(*args, **kw))
    a(f"v_and_b32 {rn(t0)}, 31, {L}", [t0], [VL])
    a(f"v_lshrrev_b32 {rn(t1)}, 5, {L}", [t1], [VL])
    for tap, r0 in enumerate((66, 1, 67)):
        a(f"v_add_u32 {rn(t4)}, {r0}, {rn(t0)}", [t4], [t0])
        a(f"v_bfe_u32 {rn(t5)}, {rn(t4)}, 1, 3", [t5], [t4], vop3=True)
        a(f"v_xor_b32 {rn(t5)}, {rn(t1)}, {rn(t5)}", [t5], [t1, t5])
        a(f"v_lshlrev_b32 {rn(t4)}, 7, {rn(t4)}", [t4], [t4])
        a(f"v_lshl_add_u32 {rn(VXB[tap][0])}, {rn(t5)}, 4, {rn(t4)}", [VXB[tap][0]], [t5, t4], vop3=True)
        for k in range(1, 4):
            a(f"v_xor_b32 {rn(VXB[tap][k])}, {32 * k}, {rn(VXB[tap][0])}", [VXB[tap][k]], [VXB[tap][0]])
    a(f"v_mul_u32_u24 {rn(t2)}, {HROW}, {rn(t0)}", [t2], [t0])
    a(f"v_lshl_add_u32 {rn(VHR)}, {rn(t1)}, 4, {rn(t2)}", [VHR], [t1, t2], vop3=True)
    a(f"v_add_u32 {rn(VFW)}, {S_W128}, {rn(VHR)}", [VFW], [VHR])
    a(f"v_and_b32 {rn(t2)}, 1, {rn(t0)}", [t2], [t0])
    a(f"v_cmp_eq_u32 vcc, 1, {rn(t2)}", [], [t2], sw=["vcc"])
    a(f"v_mov_b32 {rn(t3)}, 1", [t3], [])
    a(f"v_cndmask_b32 {rn(t3)}, {HEVEN}, {rn(t3)}, vcc", [t3], [t3], sr=["vcc"])
    a(f"v_lshrrev_b32 {rn(t2)}, 1, {rn(t0)}", [t2], [t0])
    a(f"v_add_u32 {rn(t2)}, {rn(t2)}, {rn(t3)}", [t2], [t2, t3])
    a(f"v_mul_u32_u24 {rn(t2)}, {HROW}, {rn(t2)}", [t2], [t2])
    a(f"v_lshl_add_u32 {rn(t2)}, {rn(t1)}, 4, {rn(t2)}", [t2], [t1, t2], vop3=True)
    a(f"v_add_u32 {rn(VHW)}, {S_W128}, {rn(t2)}", [VHW], [t2])
    a(f"v_mul_u32_u24 {rn(t2)}, {EFROW}, {rn(t0)}", [t2], [t0])
    a(f"v_lshl_add_u32 {rn(t2)}, {rn(t1)}, 4, {rn(t2)}", [t2], [t1, t2], vop3=True)
    a(f"v_add_u32 {rn(VEFW)}, {S_W128}, {rn(t2)}", [VEFW], [t2])
    a(f"v_and_b32 {rn(t6)}, 15, {L}", [t6], [VL])
    a(f"v_lshrrev_b32 {rn(t7)}, 4, {L}", [t7], [VL])
    a(f"v_and_b32 {rn(t2)}, 1, {rn(t7)}", [t2], [t7])
    a(f"v_lshrrev_b32 {rn(t3)}, 1, {rn(t7)}", [t3], [t7])
    a(f"v_mov_b32 {rn(VC1)}, 133", [VC1], [])
    a(f"v_cmp_eq_u32 vcc, {rn(t6)}, {rn(t2)}", [], [t6, t2], sw=["vcc"])
    for tap, rh in enumerate((65, 0, 66)):
        a(f"v_mov_b32 {rn(t5)}, {rh}", [t5], [])
        a(f"v_cndmask_b32 {rn(t4)}, {rn(VC1)}, {rn(t5)}, vcc", [t4], [VC1, t5], sr=["vcc"])
        a(f"v_bfe_u32 {rn(t5)}, {rn(t4)}, 1, 3", [t5], [t4], vop3=True)
        a(f"v_xor_b32 {rn(t5)}, {rn(t3)}, {rn(t5)}", [t5], [t3, t5])
        a(f"v_lshlrev_b32 {rn(t4)}, 7, {rn(t4)}", [t4], [t4])
        a(f"v_lshl_add_u32 {rn(VXH[tap][0])}, {rn(t5)}, 4, {rn(t4)}", [VXH[tap][0]], [t5, t4], vop3=True)
        for k in range(1, 4):
            a(f"v_xor_b32 {rn(VXH[tap][k])}, {32 * k}, {rn(VXH[tap][0])}", [VXH[tap][k]], [VXH[tap][0]])
    a(f"v_mov_b32 {rn(VC1)}, {f32(GC1)}", [VC1], [])
    return ops


def gelu_list(e, regs, packs, tmps, vc1=None):
    VC1 = vc1 if vc1 is not None else globals()['VC1']
    v = V(e)
    ops = []
    a = lambda *args, **kw: ops.append(lambda: v(*args, **kw))
    for g0 in range(0, len(regs), 4):
        xs = regs[g0:g0 + 4]
        ts = tmps[:len(xs)]
        for x, t in zip(xs, ts):
            a(f"v_mul_f32 {rn(t)}, {rn(x)}, {rn(x)}", [t], [x])
        for x, t in zip(xs, ts):
            a(f"v_fmaak_f32 {rn(t)}, {rn(t)}, {rn(VC1)}, {f32(GC0)}", [t], [t, VC1], vop3=True)
        for x, t in zip(xs, ts):
            a(f"v_mul_f32 {rn(t)}, {rn(x)}, {rn(t)}", [t], [x, t])
        for x, t in zip(xs, ts):
            a(f"v_exp_f32 {rn(t)}, {rn(t)}", [t], [t], trans=True)
        for x, t in zip(xs, ts):
            a(f"v_add_f32 {rn(t)}, 1.0, {rn(t)}", [t], [t])
        for x, t in zip(xs, ts):
            a(f"v_rcp_f32 {rn(t)}, {rn(t)}", [t], [t], trans=True)
        for x, t in zip(xs, ts):
            a(f"v_mul_f32 {rn(x)}, {rn(x)}, {rn(t)}", [x], [x, t])
        for i in range(0, len(xs), 2):
            p = packs[(g0 + i) // 2]
            a(f"v_cvt_pk_bf16_f32 {rn(p)}, {rn(xs[i])}, {rn(xs[i + 1])}", [p], [xs[i], xs[i + 1]], vop3=True)
    return ops


def run_with_pump(ops, pump, every=30):
    for i, f in enumerate(ops):
        f()
        if i % every == every - 1:
            pump()


def exp_stage(e, src, keep, dst, n, vmax, pump=None):
    v = V(e)
    for i in range(n):
        v(f"v_mul_f32 {rn(keep + i)}, {f32(TSC)}, {rn(src + i)}", [keep + i], [src + i], vop3=True)
    for i in range(n):
        v(f"v_exp_f32 {rn(dst + i)}, {rn(keep + i)}", [dst + i], [keep + i], trans=True)
        if i % 2 == 1:
            v(f"v_max3_f32 {rn(vmax)}, |{rn(keep + i - 1)}|, |{rn(keep + i)}|, {rn(vmax)}",
              [vmax], [keep + i - 1, keep + i, vmax], vop3=True)
        if pump and i % 8 == 7:
            pump()


def publish_flag(e, vmax, slot_extra):
    e.salu(f"s_mov_b32 {S_LIM}, {f32(125.0)}")
    e.valu(f"v_cmp_lt_f32 vcc, {S_LIM}, {rn(vmax)}", [], [vmax], sw=["vcc"])
    e.nop(2)
    e.salu("s_cmp_lg_u64 vcc, 0")
    e.salu(f"s_cselect_b32 {S_FLAG}, 1, 0")
    e.salu(f"s_lshl_b32 {S_T1}, {S_W}, 2")
    e.salu(f"s_add_u32 {S_T1}, {S_T1}, {FLAG + slot_extra}")
    e.valu(f"v_mov_b32 {rn(T[0])}, {S_FLAG}", [T[0]], [])
    e.valu(f"v_mov_b32 {rn(T[1])}, {S_T1}", [T[1]], [])
    e.ds_write(1, T[1], T[0])


def flag_check(e, label):
    v = V(e)
    v(f"v_mov_b32 {rn(T[1])}, {FLAG}", [T[1]], [])
    e.ds_read(4, T[2], T[1])
    v(f"v_or3_b32 {rn(T[0])}, {rn(T[2])}, {rn(T[3])}, {rn(T[4])}", [T[0]], [T[2], T[3], T[4]], vop3=True)
    v(f"v_or_b32 {rn(T[0])}, {rn(T[0])}, {rn(T[5])}", [T[0]], [T[0], T[5]])
    e.ds_read(4, T[2], T[1], 16)
    v(f"v_or3_b32 {rn(T[0])}, {rn(T[2])}, {rn(T[3])}, {rn(T[0])}", [T[0]], [T[2], T[3], T[0]], vop3=True)
    v(f"v_or3_b32 {rn(T[0])}, {rn(T[4])}, {rn(T[5])}, {rn(T[0])}", [T[0]], [T[4], T[5], T[0]], vop3=True)
    e.rfl(S_FLAG, T[0])
    e.salu(f"s_cmp_lg_u32 {S_FLAG}, 0")
    e.salu(f"s_cbranch_scc1 {label}")


def ef_read_ops(e, vefr, EF):
    return [lambda: e.ds_read(4, EF, vefr, 0),
            lambda: e.ds_read(4, EF + 4, vefr, 512),
            lambda: e.valu(f"v_add_u32 {rn(vefr)}, {4 * EFROW}, {rn(vefr)}", [vefr], [vefr])]


def produce_ops(e, slow, vefr, vjw, EGb, EF, WK, PK, nrows):
    v = V(e)
    ops = []
    for uu in range(nrows):
        for h in range(2):
            els = range(4 * h, 4 * h + 4)
            for i in els:
                if slow:
                    ops.append(lambda i=i, uu=uu: v(
                        f"v_add_f32 {rn(WK + i)}, {rn(EF + i)}, {rn(EGb + 8 * uu + i)}",
                        [WK + i], [EF + i, EGb + 8 * uu + i]))
                else:
                    ops.append(lambda i=i, uu=uu: v(
                        f"v_fma_f32 {rn(WK + i)}, {rn(EF + i)}, {rn(EGb + 8 * uu + i)}, -0.5",
                        [WK + i], [EF + i, EGb + 8 * uu + i], vop3=True))
        if uu == nrows - 1:
            ops += ef_read_ops(e, vefr, EF)
        for h in range(2):
            els = range(4 * h, 4 * h + 4)
            if slow:
                for i in els:
                    ops.append(lambda i=i: v(f"v_exp_f32 {rn(WK + i)}, {rn(WK + i)}", [WK + i], [WK + i], trans=True))
                for i in els:
                    ops.append(lambda i=i: v(f"v_add_f32 {rn(WK + i)}, 1.0, {rn(WK + i)}", [WK + i], [WK + i]))
            for i in els:
                ops.append(lambda i=i: v(f"v_rcp_f32 {rn(WK + i)}, {rn(WK + i)}", [WK + i], [WK + i], trans=True))
            for i in (els if not X_FOLD else ()):
                if slow:
                    ops.append(lambda i=i: v(f"v_fma_f32 {rn(WK + i)}, {rn(WK + i)}, -2.0, 1.0",
                                             [WK + i], [WK + i], vop3=True))
                else:
                    ops.append(lambda i=i: v(f"v_add_f32 {rn(WK + i)}, 1.0, {rn(WK + i)}", [WK + i], [WK + i]))
            for i in (4 * h, 4 * h + 2):
                ops.append(lambda i=i: v(
                    f"v_cvt_pk_bf16_f32 {rn(PK + i // 2)}, {rn(WK + i)}, {rn(WK + i + 1)}",
                    [PK + i // 2], [WK + i, WK + i + 1], vop3=True))
        ops.append(lambda uu=uu: e.ds_write(4, vjw, PK, uu * HROW))
    return ops


SJ = ["s49", "s50", "s51"]
STB = ["s45", "s46", "s47"]


def init_steps(e):
    for i in range(3):
        e.salu(f"s_mov_b32 {SJ[i]}, {(JB[(i + 1) % 3] - JB[i]) & 0xffffffff}")


def rot_steps(e):
    def f():
        for r in (SJ,):
            e.salu(f"s_mov_b32 {S_T2}, {r[0]}")
            e.salu(f"s_mov_b32 {r[0]}, {r[1]}")
            e.salu(f"s_mov_b32 {r[1]}, {r[2]}")
            e.salu(f"s_mov_b32 {r[2]}, {S_T2}")
    return [f]


def step(e, reg, sgpr):
    return lambda: e.valu(f"v_add_u32 {rn(reg)}, {sgpr}, {rn(reg)}", [reg], [reg])


def rotate3(e, regs, tmp):
    v = V(e)
    return [lambda: v(f"v_mov_b32 {rn(tmp)}, {rn(regs[0])}", [tmp], [regs[0]]),
            lambda: v(f"v_mov_b32 {rn(regs[0])}, {rn(regs[1])}", [regs[0]], [regs[1]]),
            lambda: v(f"v_mov_b32 {rn(regs[1])}, {rn(regs[2])}", [regs[1]], [regs[2]]),
            lambda: v(f"v_mov_b32 {rn(regs[2])}, {rn(tmp)}", [regs[2]], [tmp])]


def readback_store_ops(e, vor, vos, regs):
    ops = []
    for i in range(4):
        ops.append(lambda i=i: e.ds_read(4, regs + 4 * i, vor, i * 8 * OROW))
    for i in range(4):
        def st(i=i):
            e.bstore(4, regs + 4 * i, vos, SOUT, S_OS, flags=ST_FLAGS)
            e.salu(f"s_add_u32 {S_OS}, {S_OS}, 4096")
        ops.append(st)
    return ops


def loop_fence(e):
    e.pend = {r: p for r, p in e.pend.items() if p[0] == 'v'}
    e.ldone = e.lseq


def gen_compute(e):
    v = V(e)
    stamp = Stamper(e)
    st = Stream(e, RS, VS, FBUF)
    for s in range(4):
        for tap in range(3):
            for k in range(4):
                st.add(SW1, (f"s{44 + s}", tap * 131072 + 16 * k * 512))
    kord = [[4 * w + 2 * half + j for w in range(4) for j in range(2)] for half in range(2)]
    c2 = [(tap, kc) for half in range(2) for tap in range(3) for kc in kord[half]]
    cf = [kc for half in range(2) for kc in kord[half]]
    for tap, kc in c2:
        st.add(SW2, (tap * 16 + kc) * 8192)
    for kc in cf:
        st.add(SWF, kc * 8192)
    U_1, U_2, U_F = 0, 48, 96

    stamp()
    e.salu(f"s_lshl_b32 {S_RING}, {S_W}, 14")
    e.salu(f"s_add_u32 {S_RING}, {S_RING}, {RING}")
    for i in range(4):
        e.salu(f"s_lshl_b32 s{44 + i}, s{44 + i}, 8")
    for _ in range(RS):
        st.do_dma()
    tr_consts(e, False)
    c_consts_ge(e)
    for f in c_consts_ops(e):
        f()

    steps = [(s, tap, k) for s in range(4) for tap in range(3) for k in range(4)]

    def b_reads1(i):
        s, tap, k = steps[i]
        base = BFR + 12 * (i % 2)
        return [lambda: e.ds_read(4, base, VXB[tap][k], s * XSL),
                lambda: e.ds_read(4, base + 4, VXB[tap][k], s * XSL + 4096),
                lambda: e.ds_read(4, base + 8, VXH[tap][k], s * XSL)]

    for i, (s, tap, k) in enumerate(steps):
        u = U_1 + i
        if i in (24, 36):
            stamp()
        if i in (0, 12):
            st.ensure(u)
            stamp("bar")
            e.raw("    s_barrier")
            stamp()
            stamp("bar")
            for f in b_reads1(i):
                f()
        st.ensure(u + (1 if "ahead" in X_C1 else 0))
        d = st.dest(u)
        bb = BFR + 12 * (i % 2)
        mains = []
        for nt in range(2):
            for mt in range(2):
                a = ACC + 16 * (2 * mt + nt)
                mains.append(lambda a=a, mt=mt, nt=nt: e.mfma(True, a, d + 4 * mt, bb + 4 * nt, a if i else None))
        for mt in range(2):
            a = HACC + 4 * mt
            mains.append(lambda a=a, mt=mt: e.mfma(False, a, d + 4 * mt, bb + 8, a if i else None))
        br = b_reads1(i + 1) if (i + 1 < 48 and i + 1 != 12) else []
        mains[0]()
        for f in br:
            f()
        mains[1]()
        st.pump(1)
        mains[2]()
        st.pump(1)
        mains[3]()
        if "nohalo" not in X_C1:
            mains[4]()
            mains[5]()
        st.cu += 1
    stamp()
    e.raw("    s_barrier")
    stamp()
    pump = lambda: st.pump(2)
    gt = rng(TMP + 24, 4)
    late2 = [lambda: prod_consts(e, VEFR, VEGR, PJW, 0), lambda: init_steps(e)]

    def epi1():
        ops = []
        for nt in range(2):
            a = ACC + 16 * nt
            pk = TMP + 8 * nt
            ops += gelu_list(e, rng(a, 16), rng(pk, 8), gt)
            for h in range(2):
                ops.append(lambda pk=pk, h=h, nt=nt: e.ds_write(4, VHW, pk + 4 * h, nt * 16 * HROW + 32 * h))
        ops += gelu_list(e, rng(HACC, 8), rng(TMP + 16, 4), gt)
        for mt in range(2):
            ops.append(lambda mt=mt: e.ds_write(2, VHH, TMP + 16 + 2 * mt, 64 * mt))
        return ops

    def epi2():
        ops = gelu_list(e, rng(ACC, 16), rng(TMP, 8), gt)
        for h in range(2):
            ops.append(lambda h=h: e.ds_write(4, VFW, TMP + 4 * h, FB + 32 * h))
        return ops

    def small_gemm(ubase, lo, hi, boff, acc, side=()):
        def bread(i):
            return lambda: e.ds_read(4, BFR + 4 * (i % 4), VHR, boff(i))
        bread(lo)()
        bread(lo + 1)()
        n = hi - lo
        for i in range(lo, hi):
            u = ubase + i
            st.ensure(min(u + AHEAD, len(st.units) - 1))
            while st.can_dma():
                st.do_dma()
            d = st.dest(u)
            mains = [lambda mt=mt: e.mfma(True, acc + 16 * mt, d + 4 * mt, BFR + 4 * (i % 4),
                                          acc + 16 * mt if i else None) for mt in range(2)]
            fill = []
            if i + 2 < hi:
                fill.append(bread(i + 2))
            fill += [lambda: st.pump(1), lambda: st.pump(1)]
            fill = merge(list(side[len(side) * (i - lo) // n:len(side) * (i - lo + 1) // n]), fill)
            interleave(mains, fill)
            st.cu += 1

    for q in range(8):
        e.ds_write(4, VGR, ACC + 32 + 4 * q, 1024 * q)
    e.barrier()
    extra = [ACC + 32 + 8 * i for i in range(4)]
    st.add_slots(extra + [KEEPB, BFR + 16])
    run_with_pump(epi1(), pump, every=PUMP_EVERY)
    e.barrier()
    stamp()
    tapoff = [0, HEVEN * HROW, HROW]
    boff2 = lambda i: tapoff[c2[i][0]] + 32 * c2[i][1]
    st.retired = set(extra)
    small_gemm(U_2, 0, 48, boff2, ACC, late2)
    assert all(st.slot_of[u] not in extra for u in range(st.cu, st.tu))
    st.free = [d for d in st.free if d not in extra]
    e.raw("    s_barrier")
    stamp()
    for q in range(4):
        e.ds_write(4, VEGW, ACC + 16 + 4 * q, 1024 * q)
    e.barrier()
    run_with_pump(epi2(), pump)
    e.barrier()
    stamp()
    bofff = lambda i: FB + 32 * cf[i]
    small_gemm(U_F, 0, 16, bofff, ACC + 32)
    exp_stage(e, ACC + 32, KEEPA, ACC, 32, VMAX)
    for mt in range(2):
        for h in range(2):
            for pl in range(2):
                e.ds_write(4, VEFW, ACC + 16 * mt + 8 * h + 4 * pl, 64 * mt + 32 * h + 512 * pl)
    publish_flag(e, VMAX, 0)
    e.barrier()
    stamp()
    flag_check(e, "L_c_slow")
    snap = (copy.deepcopy(e.pend), e.lseq, e.vseq, e.ldone, e.vdone)

    def out_stage(slow, tag):
        for uu in range(PROWS):
            for pl in range(2):
                e.ds_read(4, PEG + 8 * uu + 4 * pl, VEGR, uu * 1024 + pl * 512)
        for f in ef_read_ops(e, VEFR, PEF):
            f()
        for c in range(2):
            for f in produce_ops(e, slow, VEFR, PJW[c], PEG, PEF, PWK, PPK, PROWS):
                f()
        e.salu(f"s_mov_b32 {S_CNT}, 6")
        e.barrier()
        if not slow:
            stamp()
        loop_fence(e)
        if STAMPS:
            e.salu("s_mov_b32 s101, 0")
        e.label(f"L_c_loop{tag}")
        stamp.loop_top()
        ops = produce_ops(e, slow, VEFR, PJW[2], PEG, PEF, PWK, PPK, PROWS)
        for f in ops + [step(e, PJW[2], SJ[2])] + rot_steps(e):
            f()
        stamp.loop_pre_barrier()
        e.salu(f"s_sub_u32 {S_CNT}, {S_CNT}, 1")
        e.salu(f"s_cmp_lg_u32 {S_CNT}, 0")
        e.barrier()
        e.salu(f"s_cbranch_scc1 L_c_loop{tag}")
        if not slow:
            stamp()

    out_stage(False, "")
    if STAMPS:
        e.wait_all_vm()
    stamp()
    stamp.dump(False)
    e.salu("s_endpgm")

    e.label("L_c_slow")
    (e.pend, e.lseq, e.vseq, e.ldone, e.vdone) = snap
    e.wr.clear(); e.stw.clear(); e.sgpr_valu.clear()
    e.nop(8)
    e.barrier()
    for mt in range(2):
        for h in range(2):
            for pl in range(2):
                e.ds_write(4, VEFW, KEEPA + 16 * mt + 8 * h + 4 * pl, 64 * mt + 32 * h + 512 * pl)
    e.barrier()
    out_stage(True, "s")
    e.salu("s_endpgm")


def gen_helper(e):
    v = V(e)
    stamp = Stamper(e)
    t0, t1, t2, t3, t4, t5, t6, t7 = T
    L = rn(VL)
    SDBG, SWS = 40, 52
    HVG, HVEGW, HVST, GMAX = 39, 25, 24, 23
    RAW, NFL = MACC, 4
    GFR = MPO
    GEF = 88
    GACC, GKEEP = 104, 112
    e.label("L_helper")
    e.salu("s_setprio 3")
    stamp()
    e.salu(f"s_lshl_b32 {S_RING}, {S_W}, 12")
    e.salu(f"s_add_u32 {S_RING}, {S_RING}, {J2}")
    e.salu(f"s_cmp_ge_u32 s2, 125")
    e.salu(f"s_cselect_b32 {S_B}, 1, 0")
    e.salu(f"s_cmp_ge_u32 s2, {NWG}")
    e.salu("s_cbranch_scc1 L_h_setup2")
    v(f"v_lshlrev_b32 {rn(HVP)}, 6, {L}", [HVP], [VL])
    e.salu(f"s_lshl_b32 {S_LIM}, s48, 2")
    e.salu(f"s_add_u32 {S_LIM}, {S_LIM}, {S_W}")
    e.salu(f"s_lshl_b32 {S_LIM}, {S_LIM}, 12")
    for srd in (SW1, SW2, SWF, SWO):
        e.bload(1, 104, HVP, srd, S_LIM)
    e.salu(f"s_mul_i32 {S_T1}, {S_B}, 125")
    e.salu(f"s_sub_u32 {S_T0}, s2, {S_T1}")
    e.salu(f"s_lshl_b32 {S_T0}, {S_T0}, 7")
    e.salu(f"s_lshl_b32 {S_T1}, {S_W}, 3")
    e.salu(f"s_mul_i32 {S_CNT}, {S_B}, 16000")
    e.salu(f"s_lshl_b32 {S_D}, {S_W}, 10")
    v(f"v_mov_b32 {rn(HC)}, 133", [HC], [])
    v(f"v_bfrev_b32 {rn(HVMAX)}, 1", [HVMAX], [])
    v(f"v_lshrrev_b32 {rn(t6)}, 3, {L}", [t6], [VL])
    v(f"v_add_u32 {rn(t0)}, {S_T1}, {rn(t6)}", [t0], [t6])
    v(f"v_and_b32 {rn(t1)}, 7, {L}", [t1], [VL])
    xseq = {}

    def xconst(j):
        if j < 4:
            v(f"v_add_u32 {rn(t2)}, {32 * j}, {rn(t0)}", [t2], [t0])
        else:
            v(f"v_add_u32 {rn(t2)}, 128, {rn(t6)}", [t2], [t6])
        v(f"v_bfe_u32 {rn(t3)}, {rn(t2)}, 1, 3", [t3], [t2], vop3=True)
        v(f"v_xor_b32 {rn(t3)}, {rn(t1)}, {rn(t3)}", [t3], [t1, t3])
        v(f"v_lshlrev_b32 {rn(t4)}, 1, {rn(t2)}", [t4], [t2])
        v(f"v_cmp_lt_u32 vcc, 64, {rn(t2)}", [], [t2], sw=["vcc"])
        v(f"v_cndmask_b32 {rn(t5)}, 2, {rn(HC)}, vcc", [t5], [HC], sr=["vcc"])
        v(f"v_sub_u32 {rn(t4)}, {rn(t4)}, {rn(t5)}", [t4], [t4, t5])
        v(f"v_add_u32 {rn(t4)}, {S_T0}, {rn(t4)}", [t4], [t4])
        v(f"v_add_u32 {rn(t5)}, {S_CNT}, {rn(t4)}", [t5], [t4])
        v(f"v_lshlrev_b32 {rn(t5)}, 9, {rn(t5)}", [t5], [t5])
        v(f"v_lshl_add_u32 {rn(t5)}, {rn(t3)}, 4, {rn(t5)}", [t5], [t3, t5], vop3=True)
        if j < 4:
            v(f"v_cmp_gt_i32 vcc, 0, {rn(t4)}", [], [t4], sw=["vcc"])
        else:
            v(f"v_cmp_lt_u32 vcc, 130, {rn(t2)}", [], [t2], sw=["vcc"])
        v(f"v_cndmask_b32 {rn(HVX[j])}, {rn(t5)}, {rn(HVMAX)}, vcc", [HVX[j]], [t5, HVMAX], sr=["vcc"])

    def xdma(s, j):
        e.salu(f"s_add_u32 m0, {S_D}, {s * XSL + 4096 * j}", m0=True)
        xseq[s] = e.dma(HVX[j], SX, f"s{44 + s}", flags="nt")

    for j in range(4):
        xconst(j)
        xdma(0, j)
    xconst(4)
    e.salu(f"s_mul_i32 {S_T1}, {S_W}, {XSL}")
    e.salu(f"s_add_u32 {S_T2}, s48, {S_W}")
    e.salu(f"s_and_b32 {S_T2}, {S_T2}, 3")
    e.salu(f"s_lshl_b32 {S_T2}, {S_T2}, 7")
    e.salu(f"s_add_u32 m0, {S_T1}, 16384", m0=True)
    xseq[0] = e.dma(HVX[4], SX, S_T2, flags="nt")
    for j in range(4):
        xdma(1, j)
    e.wait(vseq=xseq[0])
    e.raw("    s_barrier")
    stamp()
    for s in range(2, 4):
        for j in range(4):
            xdma(s, j)
    e.label("L_h_setup2")
    e.salu("s_setprio 0")
    e.salu(f"s_sub_u32 {S_T1}, s2, {NWG}")
    e.salu(f"s_cmp_ge_u32 s2, {NWG}")
    e.salu(f"s_cselect_b32 {S_B}, {S_T1}, {S_B}")
    e.salu(f"s_load_dwordx2 s[{SDBG}:{SDBG + 1}], s[0:1], 64")
    e.salu(f"s_load_dwordx2 s[{SWS}:{SWS + 1}], s[0:1], 72")
    e.salu("s_waitcnt lgkmcnt(0)")
    e.salu(f"s_and_b32 s{SDBG + 1}, s{SDBG + 1}, 0xffff")
    e.salu(f"s_mov_b32 s{SDBG + 2}, 256")
    e.salu(f"s_mov_b32 s{SDBG + 3}, 0x20000")
    e.salu(f"s_and_b32 s{SWS + 1}, s{SWS + 1}, 0xffff")
    e.salu(f"s_mov_b32 s{SWS + 2}, {WS_OFF + 16384}")
    e.salu(f"s_mov_b32 s{SWS + 3}, 0x20000")
    tr_consts(e, False)
    v(f"v_and_b32 {rn(t0)}, 15, {L}", [t0], [VL])
    v(f"v_lshrrev_b32 {rn(t1)}, 4, {L}", [t1], [VL])
    v(f"v_xor_b32 {rn(t2)}, {rn(t0)}, {rn(t1)}", [t2], [t0, t1])
    v(f"v_and_b32 {rn(t2)}, 1, {rn(t2)}", [t2], [t2])
    v(f"v_lshrrev_b32 {rn(t3)}, 1, {rn(t0)}", [t3], [t0])
    e.salu(f"s_lshl_b32 {S_T1}, {S_B}, 3")
    v(f"v_add_u32 {rn(t3)}, {S_T1}, {rn(t3)}", [t3], [t3])
    v(f"v_lshlrev_b32 {rn(t3)}, 9, {rn(t3)}", [t3], [t3])
    v(f"v_lshrrev_b32 {rn(t4)}, 1, {rn(t1)}", [t4], [t1])
    v(f"v_lshl_add_u32 {rn(t3)}, {rn(t4)}, 4, {rn(t3)}", [t3], [t4, t3], vop3=True)
    v(f"v_lshl_or_b32 {rn(HVG)}, {rn(t2)}, 31, {rn(t3)}", [HVG], [t2, t3], vop3=True)
    v(f"v_and_b32 {rn(t2)}, 1, {rn(t0)}", [t2], [t0])
    v(f"v_lshl_or_b32 {rn(t2)}, {rn(t2)}, 2, {rn(t1)}", [t2], [t2, t1], vop3=True)
    perm_q(e, t4, t2, t6, t7)
    v(f"v_lshrrev_b32 {rn(t3)}, 1, {rn(t0)}", [t3], [t0])
    v(f"v_lshlrev_b32 {rn(t3)}, 10, {rn(t3)}", [t3], [t3])
    v(f"v_and_b32 {rn(t5)}, 1, {rn(t4)}", [t5], [t4])
    v(f"v_lshl_add_u32 {rn(t3)}, {rn(t5)}, 9, {rn(t3)}", [t3], [t5, t3], vop3=True)
    v(f"v_lshrrev_b32 {rn(t5)}, 1, {rn(t4)}", [t5], [t4])
    v(f"v_lshl_add_u32 {rn(t3)}, {rn(t5)}, 4, {rn(t3)}", [t3], [t5, t3], vop3=True)
    v(f"v_add_u32 {rn(t3)}, {S_W128}, {rn(t3)}", [t3], [t3])
    v(f"v_add_u32 {rn(HVEGW)}, {EG}, {rn(t3)}", [HVEGW], [t3])
    v(f"v_lshlrev_b32 {rn(t3)}, 4, {L}", [t3], [VL])
    v(f"v_add_u32 {rn(HVST)}, {S_RING}, {rn(t3)}", [HVST], [t3])
    v(f"v_mov_b32 {rn(GMAX)}, 0", [GMAX], [])
    e.salu(f"s_lshl_b32 {S_T0}, {S_B}, 2")
    e.salu(f"s_add_u32 {S_T0}, {S_T0}, {S_W}")
    e.salu(f"s_lshl_b32 {S_T0}, {S_T0}, 11")
    e.salu(f"s_add_u32 {S_T0}, {S_T0}, {WS_OFF}")
    e.salu(f"s_lshl_b32 {S_D}, {S_B}, 2")
    v(f"v_lshrrev_b32 {rn(t0)}, 3, {L}", [t0], [VL])
    v(f"v_lshlrev_b32 {rn(t0)}, 9, {rn(t0)}", [t0], [t0])
    v(f"v_add_u32 {rn(t0)}, {S_W128}, {rn(t0)}", [t0], [t0])
    v(f"v_and_b32 {rn(t1)}, 7, {L}", [t1], [VL])
    v(f"v_lshrrev_b32 {rn(t2)}, 3, {L}", [t2], [VL])
    v(f"v_and_b32 {rn(t2)}, 2, {rn(t2)}", [t2], [t2])
    v(f"v_xor_b32 {rn(t2)}, {rn(t1)}, {rn(t2)}", [t2], [t1, t2])
    v(f"v_lshl_add_u32 {rn(VWO0)}, {rn(t2)}, 4, {rn(t0)}", [VWO0], [t2, t0], vop3=True)
    v(f"v_add_u32 {rn(VWO1)}, 3072, {rn(VWO0)}", [VWO1], [VWO0])
    tr_consts(e, True)
    prod_consts(e, MEFR, MEGR, MJW, 3)
    v(f"v_mul_u32_u24 {rn(t2)}, {HROW}, {rn(t0)}", [t2], [t0])
    v(f"v_lshl_add_u32 {rn(t2)}, {rn(t1)}, 4, {rn(t2)}", [t2], [t1, t2], vop3=True)
    for i in range(2):
        v(f"v_add_u32 {rn(MJR[i])}, {JB[i]}, {rn(t2)}", [MJR[i]], [t2])
    e.salu(f"s_lshl_b32 {S_T2}, {S_W}, 14")
    e.salu(f"s_add_u32 {S_T2}, {S_T2}, {RING}")
    v(f"v_mul_u32_u24 {rn(t2)}, {OROW}, {rn(t0)}", [t2], [t0])
    v(f"v_lshl_add_u32 {rn(t2)}, {rn(t1)}, 6, {rn(t2)}", [t2], [t1, t2], vop3=True)
    v(f"v_add3_u32 {rn(MOW)}, {rn(t2)}, {S_T2}, 0", [MOW], [t2], vop3=True)
    store_consts(e, MOR, MOS, S_T2)
    HHW, HFW, HC1, HRAW = 32, 37, 38, 22
    v(f"v_and_b32 {rn(t0)}, 31, {L}", [t0], [VL])
    v(f"v_lshrrev_b32 {rn(t1)}, 5, {L}", [t1], [VL])
    v(f"v_mul_u32_u24 {rn(t2)}, {HROW}, {rn(t0)}", [t2], [t0])
    v(f"v_lshl_add_u32 {rn(t2)}, {rn(t1)}, 4, {rn(t2)}", [t2], [t1, t2], vop3=True)
    v(f"v_add_u32 {rn(HFW)}, {S_W128}, {rn(t2)}", [HFW], [t2])
    v(f"v_and_b32 {rn(t2)}, 1, {rn(t0)}", [t2], [t0])
    v(f"v_cmp_eq_u32 vcc, 1, {rn(t2)}", [], [t2], sw=["vcc"])
    v(f"v_mov_b32 {rn(t3)}, 1", [t3], [])
    v(f"v_cndmask_b32 {rn(t3)}, {HEVEN}, {rn(t3)}, vcc", [t3], [t3], sr=["vcc"])
    v(f"v_lshrrev_b32 {rn(t2)}, 1, {rn(t0)}", [t2], [t0])
    v(f"v_add_u32 {rn(t2)}, {rn(t2)}, {rn(t3)}", [t2], [t2, t3])
    v(f"v_mul_u32_u24 {rn(t2)}, {HROW}, {rn(t2)}", [t2], [t2])
    v(f"v_lshl_add_u32 {rn(t2)}, {rn(t1)}, 4, {rn(t2)}", [t2], [t1, t2], vop3=True)
    v(f"v_add_u32 {rn(HHW)}, {S_W128}, {rn(t2)}", [HHW], [t2])
    v(f"v_mov_b32 {rn(HC1)}, {f32(GC1)}", [HC1], [])
    e.salu(f"s_lshl_b32 {S_T1}, {S_W}, 13")
    e.salu(f"s_add_u32 {S_T1}, {S_T1}, {FB}")
    v(f"v_lshlrev_b32 {rn(t3)}, 4, {L}", [t3], [VL])
    v(f"v_add_u32 {rn(HRAW)}, {S_T1}, {rn(t3)}", [HRAW], [t3])
    e.salu(f"s_cmp_ge_u32 s2, {NWG}")
    e.salu("s_cbranch_scc1 L_ge")
    e.wait(vseq=xseq[3])
    e.raw("    s_barrier")
    stamp()

    def unit_ops(srd, wo, lo=0, hi=16, raw=RAW):
        trseq = {}
        ops = []

        def load(u):
            e.salu(f"s_mov_b32 {S_SOFF}, {u * 8192}")
            r = raw + 8 * (u % NFL)
            e.bload(4, r, VWO0 if wo else VW0, srd, S_SOFF)
            e.bload(4, r + 4, VWO1 if wo else VW1, srd, S_SOFF, off=1024)
            if not wo:
                e.bload(4, GFR + 4 * (u % 4), HVG, SG, 0, off=32 * u)

        def stage(u):
            r = raw + 8 * (u % NFL)
            slot = (u % 2) * 2048
            if u - 2 >= lo:
                e.wait(lseq=trseq[u - 2])
            e.ds_write(4, HVST, r, slot)
            e.ds_write(4, HVST, r + 4, slot + 1024)
            d = WO_DEST[u] if wo else GEF + 8 * (u % 2)
            va = VTRO if wo else VTR
            for mt in range(2):
                for jj in range(2):
                    trseq[u] = e.ds_read(2, d + 4 * mt + 2 * jj, va[mt], slot + jj * 512, tr=True)

        def mm(u):
            dp = GEF + 8 * (u % 2)
            for mt in range(2):
                e.mfma(False, GACC + 4 * mt, dp + 4 * mt, GFR + 4 * (u % 4), GACC + 4 * mt if u else None)

        nfl = NFL if wo else NFL - 1
        for u in range(lo, min(lo + nfl, hi)):
            ops.append(lambda u=u: load(u))
        for u in range(lo, hi + 1):
            if u < hi:
                ops.append(lambda u=u: stage(u))
            if not wo and u >= 1:
                ops.append(lambda u=u: mm(u - 1))
            if u + nfl < hi:
                ops.append(lambda u=u: load(u + nfl))
        return ops

    def run_units(srd, wo, lo=0, hi=16):
        for f in unit_ops(srd, wo, lo, hi):
            f()

    e.raw("    s_barrier")
    wops = unit_ops(SWO, True, 0, WO_SPLIT[0], raw=92) if WO_SPLIT[0] else []
    for f in wops[:NFL]:
        f()
    e.raw("    s_barrier")
    GA, GP, GT = 40, 72, rng(88, 4)
    for q in range(8):
        e.ds_read(4, GA + 4 * q, HRAW, 1024 * q)
    gops = []
    for nt in range(2):
        gops += gelu_list(e, rng(GA + 16 * nt, 16), rng(GP + 8 * nt, 8), GT, HC1)
        for h in range(2):
            gops.append(lambda nt=nt, h=h: e.ds_write(4, HHW, GP + 8 * nt + 4 * h, nt * 16 * HROW + 64 + 32 * h))
    for f in merge(gops, wops[NFL:]):
        f()
    e.wait_all_lds()
    e.salu(f"s_buffer_load_dword {S_T1}, s[{SDBG}:{SDBG + 3}], {S_D}")
    e.salu("s_waitcnt lgkmcnt(0)")
    stamp()
    e.raw("    s_barrier")
    e.salu(f"s_cmp_lg_u32 {S_T1}, {4 if not X_NOPUB else 99}")
    e.salu("s_cbranch_scc1 L_ge")
    v(f"v_lshlrev_b32 {rn(t3)}, 4, {L}", [t3], [VL])
    e.bload(4, GACC, t3, SWS, S_T0, flags="sc1")
    e.bload(4, GACC + 4, t3, SWS, S_T0, off=1024, flags="sc1")
    e.salu("s_branch L_ge_done")
    e.label("L_ge")
    e.pend.clear(); e.wr.clear()
    e.ldone, e.vdone = e.lseq, e.vseq
    e.raw("    s_waitcnt vmcnt(0) lgkmcnt(0)")
    run_units(SWG, False)
    e.nop(10)
    e.salu(f"s_cmp_lt_u32 s2, {NWG}")
    e.salu("s_cbranch_scc1 L_ge_done")
    v(f"v_lshlrev_b32 {rn(t3)}, 4, {L}", [t3], [VL])
    e.bstore(4, GACC, t3, SWS, S_T0, flags="sc0 sc1")
    e.bstore(4, GACC + 4, t3, SWS, S_T0, off=1024, flags="sc0 sc1")
    e.wait_all_vm()
    v(f"v_mov_b32 {rn(t0)}, 0", [t0], [])
    v(f"v_mov_b32 {rn(t1)}, 1", [t1], [])
    e.salu("s_mov_b64 exec, 1")
    e.raw(f"    buffer_atomic_add {rn(t1)}, {rn(t0)}, s[{SDBG}:{SDBG + 3}], {S_D} offen sc1")
    e.salu("s_endpgm")
    e.label("L_ge_done")
    e.pend.clear(); e.wr.clear()
    e.raw("    s_waitcnt lgkmcnt(0)")
    e.ldone = e.lseq
    e.vseq += 2
    for r in rng(GACC, 8):
        e.pend[r] = ('v', e.vseq)

    def finish_ge():
        exp_stage(e, GACC, GKEEP, 120, 8, GMAX)
        for i in range(8):
            v(f"v_mul_f32 {rn(120 + i)}, -0.5, {rn(120 + i)}", [120 + i], [120 + i])
        for mt in range(2):
            e.ds_write(4, HVEGW, 120 + 4 * mt, 64 * mt)
        publish_flag(e, GMAX, 16)

    if WO_SPLIT[1] > WO_SPLIT[0]:
        run_units(SWO, True, WO_SPLIT[0], WO_SPLIT[1])
    finish_ge()
    stamp()
    e.barrier()
    wops = unit_ops(SWO, True, WO_SPLIT[1], WO_LATE, raw=56)
    for f in wops[:NFL]:
        f()
    e.raw("    s_barrier")
    for q in range(4):
        e.ds_read(4, GA + 4 * q, HVST, 1024 * q)
    for f in gelu_list(e, rng(GA, 16), rng(92, 8), GT, HC1):
        f()
    for h in range(2):
        e.ds_write(4, HFW, 92 + 4 * h, FB + 64 + 32 * h)
    e.barrier()
    for f in wops[NFL:]:
        f()
    stamp()
    e.barrier()
    stamp()
    flag_check(e, "L_h_slow")
    snap = (copy.deepcopy(e.pend), e.lseq, e.vseq, e.ldone, e.vdone)

    def epi_ops():
        ops = []
        for q in range(4):
            for i in range(4):
                k = 4 * q + i
                ops.append(lambda k=k: v(f"v_cvt_pk_bf16_f32 {rn(MOUT + k)}, {rn(MOUT + 2 * k)}, {rn(MOUT + 2 * k + 1)}",
                                         [MOUT + k], [MOUT + 2 * k, MOUT + 2 * k + 1], vop3=True))
            ops.append(lambda q=q: e.ds_write(4, MOW, MOUT + 4 * q, 16 * q))
        return ops

    def jread(idx):
        reg = MJR[0] if idx < 16 else MJR[1]
        return lambda: e.ds_read(4, MBF[idx % 4], reg, 32 * (idx % 16))

    def chunk_body(slow):
        prod = produce_ops(e, slow, MEFR, MJW[2], MEG, MEF, MWK, MPK, 1) + [step(e, MJW[2], SJ[2])]
        if X_NOMPROD or PROWS == 4:
            prod = []
        epi = epi_ops()
        rbs = readback_store_ops(e, MOR, MOS, MOUT + 16)
        plan = {}
        for i, f in enumerate(epi):
            plan.setdefault(i // 2, []).append(f)
        for i in range(4):
            plan.setdefault(10 + i, []).append(rbs[i])
            plan.setdefault(ST0 + STD * i, []).append(rbs[4 + i])
        for ks in range(16):
            wo = WO_DEST[ks]
            for mt in range(2):
                dst = (MOUT if ks == 15 else MACC) + 16 * mt
                e.mfma(True, dst, wo + 4 * mt, MBF[ks % 4], MACC + 16 * mt if ks else None)
                if mt == 0:
                    jread(ks + JD)()
                for f in plan.get(2 * ks + mt - 1, []):
                    f()
        v(f"v_mov_b32 {rn(MJR[0])}, {rn(MJR[1])}", [MJR[0]], [MJR[1]])
        step(e, MJR[1], SJ[1])()
        for f in rot_steps(e):
            f()

    def out_stage(slow, tag):
        if WO_LATE < 16:
            run_units(SWO, True, WO_LATE, 16)
        init_steps(e)
        e.salu(f"s_mov_b32 {S_CNT}, 8")
        e.salu(f"s_mov_b32 {S_OS}, 0x7ff00000")
        e.salu(f"s_setprio {X_PRIO}")
        e.barrier()
        for i in range(JD):
            jread(i)()
        e.wait_all_lds()
        loop_fence(e)
        if STAMPS:
            e.salu("s_mov_b32 s101, 0")
        e.label(f"L_h_loop{tag}")
        stamp.loop_top()
        chunk_body(slow)
        stamp.loop_pre_barrier()
        e.salu(f"s_cmp_eq_u32 {S_CNT}, 8")
        e.salu(f"s_cselect_b32 {S_OS}, {S_OBASE}, {S_OS}")
        e.salu(f"s_sub_u32 {S_CNT}, {S_CNT}, 1")
        e.salu(f"s_cmp_lg_u32 {S_CNT}, 0")
        e.barrier()
        e.salu(f"s_cbranch_scc1 L_h_loop{tag}")
        if not slow:
            stamp()
        for f in epi_ops() + readback_store_ops(e, MOR, MOS, MOUT + 16):
            f()

    out_stage(False, "")
    if STAMPS:
        e.wait_all_vm()
    stamp()
    stamp.dump(True)
    if X_DIAG:
        e.wait_all_vm()
        e.salu("s_memrealtime s[98:99]")
        e.salu("s_waitcnt lgkmcnt(0)")
        e.salu("s_sub_u32 s99, s98, s96")
        e.salu("s_and_b32 s97, s2, 63")
        e.salu(f"s_or_b32 s97, s97, {S_W}")
        e.salu("s_cmp_lg_u32 s97, 0")
        e.salu("s_cbranch_scc1 L_end")
        e.salu("s_lshr_b32 s97, s2, 6")
        e.salu("s_lshl_b32 s97, s97, 3")
        v(f"v_mov_b32 {rn(t0)}, 0", [t0], [])
        v(f"v_mov_b32 {rn(t2)}, s96", [t2], [])
        v(f"v_mov_b32 {rn(t3)}, s99", [t3], [])
        e.salu("s_mov_b64 exec, 1")
        e.raw(f"    buffer_store_dwordx2 {rn(t2, 2)}, {rn(t0)}, s[{SDBG}:{SDBG + 3}], s97 offen offset:32")
    e.salu("s_endpgm")

    e.label("L_h_slow")
    (e.pend, e.lseq, e.vseq, e.ldone, e.vdone) = snap
    e.wr.clear(); e.stw.clear(); e.sgpr_valu.clear()
    e.nop(8)
    e.barrier()
    for mt in range(2):
        e.ds_write(4, HVEGW, GKEEP + 4 * mt, 64 * mt)
    e.barrier()
    out_stage(True, "s")
    e.label("L_end")
    e.salu("s_endpgm")


def split_slow(text, label):
    i = text.index(label + ":")
    return text[:i], text[i:]


def generate():
    e0 = Emitter()
    common_prologue(e0)
    ec = Emitter()
    gen_compute(ec)
    eh = Emitter()
    gen_helper(eh)
    cf, cs = split_slow(ec.text(), "L_c_slow")
    hf, hs = split_slow(eh.text(), "L_h_slow")
    return e0.text() + cf + hf + cs + hs, ec, eh


HEADER = f"""; Fused conv stem (2x stride-2 conv1d + gelu) + RNN-T joint network, one workgroup per 32 output frames.
; @launch grid=({NGRID},1,1) block=(512,1,1) lds={LDS_BYTES}
.amdgcn_target "amdgcn-amd-amdhsa--gfx950"
.text
.globl {NAME}_kernel
.p2align 8
.type {NAME}_kernel,@function
{NAME}_kernel:
"""

FOOTER = f""".section .rodata,"a"
.p2align 6
.amdhsa_kernel {NAME}_kernel
  .amdhsa_next_free_vgpr 256
  .amdhsa_next_free_sgpr 102
  .amdhsa_accum_offset {ACCOFF}
  .amdhsa_group_segment_fixed_size 0
  .amdhsa_kernarg_size 80
  .amdhsa_user_sgpr_count 2
  .amdhsa_user_sgpr_kernarg_segment_ptr 1
  .amdhsa_system_sgpr_workgroup_id_x 1
.end_amdhsa_kernel
"""

if __name__ == "__main__":
    STAMPS = "--stamps" in sys.argv
    if "--out" in sys.argv:
        STAMPMODE = "out"
    if "--h" in sys.argv:
        STAMPMODE = "h"
    if "--bar" in sys.argv:
        STAMPMODE = "bar"
    args = [a for a in sys.argv[1:] if not a.startswith("--")]
    text, ec, eh = generate()
    path = args[0] if args else f"cdna_kernels/{NAME}.s"
    open(path, "w").write(HEADER + text + FOOTER)
    cnt = lambda e: sum(1 for l in e.out if l.startswith("    ") and not l.strip().startswith(";"))
    print("instructions C:", cnt(ec), "H:", cnt(eh))
```

```python
import copy
import struct
import sys

from emit import Emitter, rn, rng

NAME = "standalone__seq2seq_rnn_t_joint__speech"
NWG = 250
NGRID = 252
STAMPS = False
STAMPMODE = "front"
import os
X_NOSTORE = "X_NOSTORE" in os.environ
X_NOMPROD = "X_NOMPROD" in os.environ
X_NOPPROD = "X_NOPPROD" in os.environ
X_PRIO = os.environ.get("X_PRIO", "1")
X_NOH = os.environ.get("X_NOH", "")
X_SLACK = int(os.environ.get("X_SLACK", "2"))
X_NOROT = "X_NOROT" in os.environ
X_LAT = float(os.environ.get("X_LAT", "900"))
X_C1 = os.environ.get("X_C1", "")
X_NOPUB = "X_NOPUB" in os.environ
WS_OFF = 1 << 20
WO_SPLIT = [int(x) for x in os.environ.get("WO_SPLIT", os.environ.get("WO_EARLY", "16") + "," + os.environ.get("WO_EARLY", "16")).split(",")]
WO_NFL = int(os.environ.get("WO_NFL", "4"))
WO_B5 = int(os.environ.get("WO_B5", "7"))
X_NOLOOPST = "X_NOLOOPST" in os.environ
X_NOEPI = "X_NOEPI" in os.environ
JD = int(os.environ.get("JD", "3"))
X_FOLD = "X_FOLD" in os.environ
PROWS = int(os.environ.get("PROWS", "4"))
ST0 = int(os.environ.get("ST0", "14"))
STD = int(os.environ.get("STD", "4"))
AHEAD = int(os.environ.get("AHEAD", "1"))
PUMP_EVERY = int(os.environ.get("PUMP_EVERY", "14"))
WO_LATE = int(os.environ.get("WO_LATE", "16"))
X_RT = "X_RT" in os.environ
X_DIAG = "X_DIAG" in os.environ
ST_FLAGS = os.environ.get("ST_FLAGS", "sc0 sc1 nt")
XALL = int(os.environ.get("XALL", "0"))
XJIT = "XJIT" in os.environ
TOUCH_LATE = "TOUCH_LATE" in os.environ
C_INIT = int(os.environ.get("C_INIT", "2"))
H_PRIO = int(os.environ.get("H_PRIO", "0"))
WO_EARLY = int(os.environ.get("WO_EARLY", "16"))
NTOUCH = int(os.environ.get("NTOUCH", "1"))
B4_AT = int(os.environ.get("B4_AT", "26"))

XSL = 17408
ZROW = 3 * XSL + 131 * 128
RING = 69632
EG = 135168
FLAG = 143360
J2 = 143392
DUMMY = 160768
LDS_BYTES = 161792
HROW = 528
HEVEN = 37
FB = 36864
EFROW = 1040
JB = [33280, 50176, J2]
OROW = 144
TBSZ = 32 * OROW

SX, SW1, SW2, SG, SWF, SWG, SWO, SOUT = 8, 12, 16, 20, 24, 28, 32, 36
S_W, S_RING, S_SOFF, S_B, S_T0, S_D, S_OS, S_OBASE, S_FLAG, S_T1, S_T2, S_LIM, S_CNT, S_W128 = \
    "s56", "s57", "s58", "s59", "s60", "s61", "s62", "s63", "s64", "s65", "s66", "s67", "s68", "s69"

ACCOFF = 160
A0 = 256

VL = 1
T = list(range(2, 10))
VW0, VW1 = 10, 11
VTR = [14, 15]
VXB = [[18 + 4 * t + k for k in range(4)] for t in range(3)]
VXH = [[30 + 4 * t + k for k in range(4)] for t in range(3)]
VHW, VHH, VHR, VFW, VEFW, VC1, VMAX, VOS, VEFR, VEGR, VEGW, VGR = range(42, 54)
ACC = 56
HACC = 120
TMP = 128
KEEPA = TMP
FBUF = A0
VS = 8
BFR = A0 + 64
KEEPB = A0 + 88
RS = 8
PEG = ACC
PEF = ACC + 32
PWK = ACC + 40
PPK = ACC + 48
PRB = ACC + 52
PJW = [18, 19, 20]
POR = [21, 22, 23]
VWO0, VWO1 = 12, 13
VTRO = [16, 17]
HVX = [18, 19, 20, 21, 22]
HVP, HVMAX, HC, MEFR, MEGR, MOR, MOS = range(23, 30)
MJR = [30, 31]
MJW = [33, 34, 35]
MOW = 36
MACC = 40
MPO = 72
MOUT = 72
MEG = 104
MEF = 112
MWK = 10
MPK = 22
MBF = [120, 124, 18, 4]
WO_DEST = [A0 + 8 * i for i in range(12)] + [128 + 8 * i for i in range(4)]
HRS = 2

LOG2E = 1.4426950408889634
GC0 = -2.0 * 0.7978845608028654 * LOG2E
GC1 = GC0 * 0.044715
TSC = 2.0 * LOG2E


def f32(x):
    return "0x%08x" % struct.unpack("<I", struct.pack("<f", x))[0]


class Stream:
    LAT = X_LAT
    RATE = 140.0

    def __init__(self, e, rs, vs, fbuf):
        self.e = e
        self.rs, self.vs, self.fbuf = rs, vs, fbuf
        self.units = []
        self.du = self.tu = self.cu = 0
        self.dseq, self.tseq, self.arr = {}, {}, {}
        self.last_arr = 0.0
        self.tr_limit = 10 ** 9
        self.slot_of = {}
        self.free = [fbuf + 8 * i for i in range(vs)]
        self.released = 0

    def add_slots(self, regs):
        self.free += regs

    def _release(self):
        while self.released < self.cu:
            d = self.slot_of[self.released]
            if d not in self.retired:
                self.free.append(d)
            self.released += 1

    retired = set()

    def add(self, srd, soff, wo_idx=None):
        self.units.append((srd, soff, wo_idx))

    def dest(self, u):
        return self.slot_of[u]

    def can_dma(self):
        u = self.du
        slack = X_SLACK if self.rs > 2 else 1
        return u < len(self.units) and (u < self.rs or u - self.rs <= self.tu - slack)

    def do_dma(self):
        e, u = self.e, self.du
        srd, soff, wo = self.units[u]
        if u >= self.rs:
            e.wait(lseq=self.tseq[u - self.rs])
        e.salu(f"s_add_u32 m0, {S_RING}, {(u % self.rs) * 2048}", m0=True)
        if isinstance(soff, tuple):
            e.salu(f"s_add_u32 {S_SOFF}, {soff[0]}, {soff[1]}")
        else:
            e.salu(f"s_mov_b32 {S_SOFF}, {soff}")
        if "nodma" in X_C1 and 12 <= u < 48:
            self.dseq[u] = 0
        else:
            e.dma(VWO0 if wo is not None else VW0, srd, S_SOFF)
            self.dseq[u] = e.dma(VWO1 if wo is not None else VW1, srd, S_SOFF, off=1024)
        self.last_arr = max(e.t + self.LAT, self.last_arr + self.RATE)
        self.arr[u] = self.last_arr
        self.du += 1

    def _dest_free(self, u):
        self._release()
        return len(self.free) > 0

    def can_tr(self, timed=True):
        u = self.tu
        if u >= self.du or u >= self.tr_limit or not self._dest_free(u):
            return False
        return (not timed) or self.arr[u] <= self.e.t

    def do_tr(self):
        e, u = self.e, self.tu
        wo = self.units[u][2]
        e.wait(vseq=self.dseq[u])
        e.t = max(e.t, self.arr[u])
        self._release()
        d = self.slot_of[u] = self.free.pop(0)
        va = VTRO if wo is not None else VTR
        for mt in range(2):
            for jj in range(2):
                self.tseq[u] = e.ds_read(2, d + 4 * mt + 2 * jj, va[mt], (u % self.rs) * 2048 + jj * 512, tr=True)
        self.tu += 1

    def pump(self, max_ops=2):
        n = 0
        while n < max_ops:
            if self.can_tr():
                self.do_tr()
            elif self.can_dma():
                self.do_dma()
            else:
                break
            n += 1

    def ensure(self, u):
        while self.tu <= u:
            while self.du <= self.tu:
                assert self.can_dma()
                self.do_dma()
            assert self.can_tr(timed=False), (u, self.tu, self.cu)
            self.do_tr()

    def state(self):
        return (self.du, self.tu, self.cu, dict(self.dseq), dict(self.tseq), dict(self.arr), self.last_arr, self.tr_limit)

    def restore(self, s):
        (self.du, self.tu, self.cu, self.dseq, self.tseq, self.arr, self.last_arr, self.tr_limit) = \
            (s[0], s[1], s[2], dict(s[3]), dict(s[4]), dict(s[5]), s[6], s[7])


def interleave(mains, fillers):
    n = len(mains)
    k = 0
    for i, m in enumerate(mains):
        m()
        upto = (len(fillers) * (i + 1) + n - 1) // n
        while k < upto:
            fillers[k]()
            k += 1


def merge(a, b):
    out = []
    ia = ib = 0
    na, nb = len(a), len(b)
    while ia < na or ib < nb:
        if ib >= nb or (ia < na and ia * max(nb, 1) <= ib * max(na, 1)):
            out.append(a[ia]); ia += 1
        else:
            out.append(b[ib]); ib += 1
    return out


class Stamper:
    def __init__(self, e):
        self.e, self.n = e, 0

    def __call__(self, tag="front"):
        if not STAMPS or (tag != STAMPMODE and self.n > 0) or self.n >= 14:
            return
        e = self.e
        e.wait_all_lds()
        e.salu(f"{'s_memrealtime' if X_RT else 's_memtime'} s[{70 + 2 * self.n}:{71 + 2 * self.n}]")
        e.salu("s_waitcnt lgkmcnt(0)")
        self.n += 1

    def loop_top(self):
        if not STAMPS or X_NOLOOPST:
            return
        e = self.e
        e.salu("s_memtime s[98:99]")
        e.salu("s_waitcnt lgkmcnt(0)")
        e.salu("s_mov_b32 s100, s98")

    def loop_pre_barrier(self):
        if not STAMPS or X_NOLOOPST:
            return
        e = self.e
        e.wait_all_lds()
        e.salu("s_memtime s[98:99]")
        e.salu("s_waitcnt lgkmcnt(0)")
        e.salu("s_sub_u32 s98, s98, s100")
        e.salu("s_add_u32 s101, s101, s98")

    def dump(self, helper):
        if not STAMPS:
            return
        e = self.e
        e.salu("s_load_dwordx2 s[40:41], s[0:1], 72")
        e.salu("s_waitcnt lgkmcnt(0)")
        e.salu("s_and_b32 s41, s41, 0xffff")
        e.salu("s_mov_b32 s42, 131072")
        e.salu("s_mov_b32 s43, 0x20000")
        e.salu(f"s_lshl_b32 {S_T1}, s2, 3")
        e.salu(f"s_add_u32 {S_T1}, {S_T1}, {S_W}")
        if helper:
            e.salu(f"s_add_u32 {S_T1}, {S_T1}, 4")
        e.salu(f"s_lshl_b32 {S_T1}, {S_T1}, 6")
        e.valu(f"v_mov_b32 {rn(T[1])}, 0", [T[1]], [])
        for i in range(16):
            if i == 15:
                e.salu("s_add_u32 s101, s101, s70")
                e.valu(f"v_mov_b32 {rn(T[0])}, s101", [T[0]], [])
            else:
                e.valu(f"v_mov_b32 {rn(T[0])}, s{70 + 2 * min(i, self.n - 1)}", [T[0]], [])
            e.bstore(1, T[0], T[1], 40, S_T1, off=4 * i)


def V(e):
    return lambda text, w=(), r=(), **kw: e.valu(text, w, r, **kw)


def common_prologue(e):
    v = V(e)
    if X_DIAG:
        e.salu("s_memrealtime s[96:97]")
    e.salu(f"s_cmp_ge_u32 s2, {NGRID}")
    e.salu("s_cbranch_scc1 L_end")
    e.salu("s_load_dwordx16 s[40:55], s[0:1], 0")
    v(f"v_and_b32 {rn(VL)}, 63, v0", [VL], [0])
    v(f"v_lshrrev_b32 {rn(T[0])}, 6, v0", [T[0]], [0])
    e.rfl(S_CNT, T[0])
    e.salu(f"s_and_b32 {S_W}, {S_CNT}, 3")
    e.salu(f"s_lshl_b32 {S_W128}, {S_W}, 7")
    e.salu(f"s_lshl_b32 {S_OBASE}, s2, 17")
    t0, t1, t2 = T[:3]
    L = rn(VL)
    v(f"v_lshrrev_b32 {rn(t0)}, 3, {L}", [t0], [VL])
    v(f"v_lshlrev_b32 {rn(t0)}, 9, {rn(t0)}", [t0], [t0])
    v(f"v_add_u32 {rn(t0)}, {S_W128}, {rn(t0)}", [t0], [t0])
    v(f"v_and_b32 {rn(t1)}, 7, {L}", [t1], [VL])
    v(f"v_lshrrev_b32 {rn(t2)}, 2, {L}", [t2], [VL])
    v(f"v_and_b32 {rn(t2)}, 4, {rn(t2)}", [t2], [t2])
    v(f"v_xor_b32 {rn(t2)}, {rn(t1)}, {rn(t2)}", [t2], [t1, t2])
    v(f"v_lshl_add_u32 {rn(VW0)}, {rn(t2)}, 4, {rn(t0)}", [VW0], [t2, t0], vop3=True)
    v(f"v_add_u32 {rn(VW1)}, 3072, {rn(VW0)}", [VW1], [VW0])
    sizes = [16384000, 393216, 393216, 8192, 131072, 131072, 131072, 32768000]
    for i, srd in enumerate([SX, SW1, SW2, SG, SWF, SWG, SWO, SOUT]):
        e.salu(f"s_mov_b32 s{srd + 2}, {sizes[i]}")
        e.salu(f"s_mov_b32 s{srd + 3}, 0x20000")
    e.salu("s_waitcnt lgkmcnt(0)")
    for i, srd in enumerate([SX, SW1, SW2, SG, SWF, SWG, SWO, SOUT]):
        e.salu(f"s_mov_b32 s{srd}, s{40 + 2 * i}")
        e.salu(f"s_and_b32 s{srd + 1}, s{41 + 2 * i}, 0xffff")
    e.salu("s_lshr_b32 s48, s2, 3")
    for i in range(4):
        e.salu(f"s_add_u32 s{44 + i}, {0 if X_NOROT else 's48'}, {i}")
        e.salu(f"s_and_b32 s{44 + i}, s{44 + i}, 3")
        e.salu(f"s_lshl_b32 s{44 + i}, s{44 + i}, 7")
    e.salu(f"s_cmp_lt_u32 {S_CNT}, 4")
    e.salu("s_cbranch_scc1 L_compute")


def perm_q(e, dst, q, ta, tb):
    v = V(e)
    v(f"v_and_b32 {rn(ta)}, 1, {rn(q)}", [ta], [q])
    v(f"v_bfe_u32 {rn(tb)}, {rn(q)}, 1, 1", [tb], [q], vop3=True)
    v(f"v_lshl_or_b32 {rn(ta)}, {rn(ta)}, 1, {rn(tb)}", [ta], [ta, tb], vop3=True)
    v(f"v_and_or_b32 {rn(dst)}, {rn(q)}, 4, {rn(ta)}", [dst], [q, ta], vop3=True)


def tr_consts(e, wo):
    v = V(e)
    t0, t1, t2, t3, t4, t5, t6, t7 = T
    L = rn(VL)
    v(f"v_lshrrev_b32 {rn(t0)}, 4, {L}", [t0], [VL])
    v(f"v_bfe_u32 {rn(t1)}, {L}, 2, 2", [t1], [VL], vop3=True)
    v(f"v_and_b32 {rn(t2)}, 3, {L}", [t2], [VL])
    v(f"v_and_b32 {rn(t3)}, 1, {rn(t0)}", [t3], [t0])
    v(f"v_lshl_or_b32 {rn(t2)}, {rn(t3)}, 2, {rn(t2)}", [t2], [t3, t2], vop3=True)
    v(f"v_lshrrev_b32 {rn(t3)}, 1, {rn(t0)}", [t3], [t0])
    v(f"v_lshlrev_b32 {rn(t3)}, 10, {rn(t3)}", [t3], [t3])
    v(f"v_lshl_add_u32 {rn(t3)}, {rn(t1)}, 7, {rn(t3)}", [t3], [t1, t3], vop3=True)
    v(f"v_add_u32 {rn(t3)}, {S_RING}, {rn(t3)}", [t3], [t3])
    v(f"v_lshrrev_b32 {rn(t1)}, 1, {rn(t1)}", [t1], [t1])
    if not wo:
        perm_q(e, t4, t2, t6, t7)
        v(f"v_lshlrev_b32 {rn(t4)}, 3, {rn(t4)}", [t4], [t4])
        v(f"v_lshl_or_b32 {rn(t4)}, {rn(t1)}, 6, {rn(t4)}", [t4], [t1, t4], vop3=True)
        v(f"v_add_u32 {rn(VTR[0])}, {rn(t3)}, {rn(t4)}", [VTR[0]], [t3, t4])
        v(f"v_xor_b32 {rn(t4)}, 64, {rn(t4)}", [t4], [t4])
        v(f"v_add_u32 {rn(VTR[1])}, {rn(t3)}, {rn(t4)}", [VTR[1]], [t3, t4])
    else:
        v(f"v_and_b32 {rn(t4)}, 1, {rn(t2)}", [t4], [t2])
        v(f"v_lshlrev_b32 {rn(t4)}, 6, {rn(t4)}", [t4], [t4])
        v(f"v_lshrrev_b32 {rn(t5)}, 1, {rn(t2)}", [t5], [t2])
        v(f"v_lshl_or_b32 {rn(t4)}, {rn(t5)}, 3, {rn(t4)}", [t4], [t5, t4], vop3=True)
        v(f"v_lshl_or_b32 {rn(t4)}, {rn(t1)}, 5, {rn(t4)}", [t4], [t1, t4], vop3=True)
        v(f"v_add_u32 {rn(VTRO[0])}, {rn(t3)}, {rn(t4)}", [VTRO[0]], [t3, t4])
        v(f"v_xor_b32 {rn(t4)}, 32, {rn(t4)}", [t4], [t4])
        v(f"v_add_u32 {rn(VTRO[1])}, {rn(t3)}, {rn(t4)}", [VTRO[1]], [t3, t4])


def store_consts(e, vor, vos, ring_sgpr):
    v = V(e)
    t2, t3, t4 = T[2:5]
    L = rn(VL)
    v(f"v_lshrrev_b32 {rn(t2)}, 3, {L}", [t2], [VL])
    v(f"v_and_b32 {rn(t3)}, 7, {L}", [t3], [VL])
    v(f"v_lshlrev_b32 {rn(t3)}, 4, {rn(t3)}", [t3], [t3])
    v(f"v_mul_u32_u24 {rn(t4)}, {OROW}, {rn(t2)}", [t4], [t2])
    v(f"v_add3_u32 {rn(vor)}, {rn(t4)}, {rn(t3)}, {ring_sgpr}", [vor], [t4, t3], vop3=True)
    v(f"v_lshl_add_u32 {rn(t4)}, {rn(t2)}, 9, {rn(t3)}", [t4], [t2, t3], vop3=True)
    v(f"v_add_u32 {rn(vos)}, {S_W128}, {rn(t4)}", [vos], [t4])


def prod_consts(e, vefr, vegr, vjw, uu0):
    v = V(e)
    t0, t1, t2, t3 = T[:4]
    L = rn(VL)
    v(f"v_and_b32 {rn(t0)}, 31, {L}", [t0], [VL])
    v(f"v_lshrrev_b32 {rn(t1)}, 5, {L}", [t1], [VL])
    e.salu(f"s_mul_i32 {S_T1}, {S_W}, {EFROW}")
    v(f"v_lshlrev_b32 {rn(t2)}, 4, {rn(t0)}", [t2], [t0])
    v(f"v_add_u32 {rn(vefr)}, {S_T1}, {rn(t2)}", [vefr], [t2])
    v(f"v_lshl_add_u32 {rn(t3)}, {rn(t1)}, 12, {rn(t2)}", [t3], [t1, t2], vop3=True)
    v(f"v_add_u32 {rn(vegr)}, {EG + uu0 * 1024}, {rn(t3)}", [vegr], [t3])
    e.salu(f"s_mul_i32 {S_T1}, {S_W}, {8 * HROW}")
    v(f"v_mul_u32_u24 {rn(t3)}, {4 * HROW}, {rn(t1)}", [t3], [t1])
    v(f"v_add3_u32 {rn(t3)}, {rn(t3)}, {rn(t2)}, {S_T1}", [t3], [t3, t2], vop3=True)
    for i in range(3):
        v(f"v_add_u32 {rn(vjw[i])}, {JB[i] + uu0 * HROW}, {rn(t3)}", [vjw[i]], [t3])


def c_consts_ge(e):
    v = V(e)
    t0, t1, t2, t3, t4, t5, t6, t7 = T
    L = rn(VL)
    v(f"v_and_b32 {rn(t0)}, 15, {L}", [t0], [VL])
    v(f"v_lshrrev_b32 {rn(t1)}, 4, {L}", [t1], [VL])
    v(f"v_and_b32 {rn(t2)}, 1, {rn(t0)}", [t2], [t0])
    v(f"v_lshl_or_b32 {rn(t2)}, {rn(t2)}, 2, {rn(t1)}", [t2], [t2, t1], vop3=True)
    perm_q(e, t4, t2, t6, t7)
    v(f"v_lshlrev_b32 {rn(t3)}, 3, {rn(t4)}", [t3], [t4])
    v(f"v_add_u32 {rn(t3)}, {S_W128}, {rn(t3)}", [t3], [t3])
    v(f"v_mov_b32 {rn(t5)}, {DUMMY}", [t5], [])
    v(f"v_cmp_gt_u32 vcc, 2, {rn(t0)}", [], [t0], sw=["vcc"])
    v(f"v_cndmask_b32 {rn(VHH)}, {rn(t5)}, {rn(t3)}, vcc", [VHH], [t5, t3], sr=["vcc"])
    v(f"v_mov_b32 {rn(VMAX)}, 0", [VMAX], [])
    e.salu(f"s_lshl_b32 {S_T1}, {S_W}, 13")
    e.salu(f"s_add_u32 {S_T1}, {S_T1}, {FB}")
    v(f"v_lshlrev_b32 {rn(t3)}, 4, {L}", [t3], [VL])
    v(f"v_add_u32 {rn(VGR)}, {S_T1}, {rn(t3)}", [VGR], [t3])
    e.salu(f"s_lshl_b32 {S_T1}, {S_W}, 12")
    e.salu(f"s_add_u32 {S_T1}, {S_T1}, {J2}")
    v(f"v_add_u32 {rn(VEGW)}, {S_T1}, {rn(t3)}", [VEGW], [t3])


def c_consts_ops(e):
    v = V(e)
    t0, t1, t2, t3, t4, t5, t6, t7 = T
    L = rn(VL)
    ops = []
    a = lambda *args, **kw: ops.append(lambda: v(*args, **kw))
    a(f"v_and_b32 {rn(t0)}, 31, {L}", [t0], [VL])
    a(f"v_lshrrev_b32 {rn(t1)}, 5, {L}", [t1], [VL])
    for tap, r0 in enumerate((66, 1, 67)):
        a(f"v_add_u32 {rn(t4)}, {r0}, {rn(t0)}", [t4], [t0])
        a(f"v_bfe_u32 {rn(t5)}, {rn(t4)}, 1, 3", [t5], [t4], vop3=True)
        a(f"v_xor_b32 {rn(t5)}, {rn(t1)}, {rn(t5)}", [t5], [t1, t5])
        a(f"v_lshlrev_b32 {rn(t4)}, 7, {rn(t4)}", [t4], [t4])
        a(f"v_lshl_add_u32 {rn(VXB[tap][0])}, {rn(t5)}, 4, {rn(t4)}", [VXB[tap][0]], [t5, t4], vop3=True)
        for k in range(1, 4):
            a(f"v_xor_b32 {rn(VXB[tap][k])}, {32 * k}, {rn(VXB[tap][0])}", [VXB[tap][k]], [VXB[tap][0]])
    a(f"v_mul_u32_u24 {rn(t2)}, {HROW}, {rn(t0)}", [t2], [t0])
    a(f"v_lshl_add_u32 {rn(VHR)}, {rn(t1)}, 4, {rn(t2)}", [VHR], [t1, t2], vop3=True)
    a(f"v_add_u32 {rn(VFW)}, {S_W128}, {rn(VHR)}", [VFW], [VHR])
    a(f"v_and_b32 {rn(t2)}, 1, {rn(t0)}", [t2], [t0])
    a(f"v_cmp_eq_u32 vcc, 1, {rn(t2)}", [], [t2], sw=["vcc"])
    a(f"v_mov_b32 {rn(t3)}, 1", [t3], [])
    a(f"v_cndmask_b32 {rn(t3)}, {HEVEN}, {rn(t3)}, vcc", [t3], [t3], sr=["vcc"])
    a(f"v_lshrrev_b32 {rn(t2)}, 1, {rn(t0)}", [t2], [t0])
    a(f"v_add_u32 {rn(t2)}, {rn(t2)}, {rn(t3)}", [t2], [t2, t3])
    a(f"v_mul_u32_u24 {rn(t2)}, {HROW}, {rn(t2)}", [t2], [t2])
    a(f"v_lshl_add_u32 {rn(t2)}, {rn(t1)}, 4, {rn(t2)}", [t2], [t1, t2], vop3=True)
    a(f"v_add_u32 {rn(VHW)}, {S_W128}, {rn(t2)}", [VHW], [t2])
    a(f"v_mul_u32_u24 {rn(t2)}, {EFROW}, {rn(t0)}", [t2], [t0])
    a(f"v_lshl_add_u32 {rn(t2)}, {rn(t1)}, 4, {rn(t2)}", [t2], [t1, t2], vop3=True)
    a(f"v_add_u32 {rn(VEFW)}, {S_W128}, {rn(t2)}", [VEFW], [t2])
    a(f"v_and_b32 {rn(t6)}, 15, {L}", [t6], [VL])
    a(f"v_lshrrev_b32 {rn(t7)}, 4, {L}", [t7], [VL])
    a(f"v_and_b32 {rn(t2)}, 1, {rn(t7)}", [t2], [t7])
    a(f"v_lshrrev_b32 {rn(t3)}, 1, {rn(t7)}", [t3], [t7])
    a(f"v_mov_b32 {rn(VC1)}, 133", [VC1], [])
    a(f"v_cmp_eq_u32 vcc, {rn(t6)}, {rn(t2)}", [], [t6, t2], sw=["vcc"])
    for tap, rh in enumerate((65, 0, 66)):
        a(f"v_mov_b32 {rn(t5)}, {rh}", [t5], [])
        a(f"v_cndmask_b32 {rn(t4)}, {rn(VC1)}, {rn(t5)}, vcc", [t4], [VC1, t5], sr=["vcc"])
        a(f"v_bfe_u32 {rn(t5)}, {rn(t4)}, 1, 3", [t5], [t4], vop3=True)
        a(f"v_xor_b32 {rn(t5)}, {rn(t3)}, {rn(t5)}", [t5], [t3, t5])
        a(f"v_lshlrev_b32 {rn(t4)}, 7, {rn(t4)}", [t4], [t4])
        a(f"v_lshl_add_u32 {rn(VXH[tap][0])}, {rn(t5)}, 4, {rn(t4)}", [VXH[tap][0]], [t5, t4], vop3=True)
        for k in range(1, 4):
            a(f"v_xor_b32 {rn(VXH[tap][k])}, {32 * k}, {rn(VXH[tap][0])}", [VXH[tap][k]], [VXH[tap][0]])
    a(f"v_mov_b32 {rn(VC1)}, {f32(GC1)}", [VC1], [])
    return ops


def gelu_list(e, regs, packs, tmps, vc1=None):
    VC1 = vc1 if vc1 is not None else globals()['VC1']
    v = V(e)
    ops = []
    a = lambda *args, **kw: ops.append(lambda: v(*args, **kw))
    for g0 in range(0, len(regs), 4):
        xs = regs[g0:g0 + 4]
        ts = tmps[:len(xs)]
        for x, t in zip(xs, ts):
            a(f"v_mul_f32 {rn(t)}, {rn(x)}, {rn(x)}", [t], [x])
        for x, t in zip(xs, ts):
            a(f"v_fmaak_f32 {rn(t)}, {rn(t)}, {rn(VC1)}, {f32(GC0)}", [t], [t, VC1], vop3=True)
        for x, t in zip(xs, ts):
            a(f"v_mul_f32 {rn(t)}, {rn(x)}, {rn(t)}", [t], [x, t])
        for x, t in zip(xs, ts):
            a(f"v_exp_f32 {rn(t)}, {rn(t)}", [t], [t], trans=True)
        for x, t in zip(xs, ts):
            a(f"v_add_f32 {rn(t)}, 1.0, {rn(t)}", [t], [t])
        for x, t in zip(xs, ts):
            a(f"v_rcp_f32 {rn(t)}, {rn(t)}", [t], [t], trans=True)
        for x, t in zip(xs, ts):
            a(f"v_mul_f32 {rn(x)}, {rn(x)}, {rn(t)}", [x], [x, t])
        for i in range(0, len(xs), 2):
            p = packs[(g0 + i) // 2]
            a(f"v_cvt_pk_bf16_f32 {rn(p)}, {rn(xs[i])}, {rn(xs[i + 1])}", [p], [xs[i], xs[i + 1]], vop3=True)
    return ops


def run_with_pump(ops, pump, every=30):
    for i, f in enumerate(ops):
        f()
        if i % every == every - 1:
            pump()


def exp_stage(e, src, keep, dst, n, vmax, pump=None):
    v = V(e)
    for i in range(n):
        v(f"v_mul_f32 {rn(keep + i)}, {f32(TSC)}, {rn(src + i)}", [keep + i], [src + i], vop3=True)
    for i in range(n):
        v(f"v_exp_f32 {rn(dst + i)}, {rn(keep + i)}", [dst + i], [keep + i], trans=True)
        if i % 2 == 1:
            v(f"v_max3_f32 {rn(vmax)}, |{rn(keep + i - 1)}|, |{rn(keep + i)}|, {rn(vmax)}",
              [vmax], [keep + i - 1, keep + i, vmax], vop3=True)
        if pump and i % 8 == 7:
            pump()


def publish_flag(e, vmax, slot_extra):
    e.salu(f"s_mov_b32 {S_LIM}, {f32(125.0)}")
    e.valu(f"v_cmp_lt_f32 vcc, {S_LIM}, {rn(vmax)}", [], [vmax], sw=["vcc"])
    e.nop(2)
    e.salu("s_cmp_lg_u64 vcc, 0")
    e.salu(f"s_cselect_b32 {S_FLAG}, 1, 0")
    e.salu(f"s_lshl_b32 {S_T1}, {S_W}, 2")
    e.salu(f"s_add_u32 {S_T1}, {S_T1}, {FLAG + slot_extra}")
    e.valu(f"v_mov_b32 {rn(T[0])}, {S_FLAG}", [T[0]], [])
    e.valu(f"v_mov_b32 {rn(T[1])}, {S_T1}", [T[1]], [])
    e.ds_write(1, T[1], T[0])


def flag_check(e, label):
    v = V(e)
    v(f"v_mov_b32 {rn(T[1])}, {FLAG}", [T[1]], [])
    e.ds_read(4, T[2], T[1])
    v(f"v_or3_b32 {rn(T[0])}, {rn(T[2])}, {rn(T[3])}, {rn(T[4])}", [T[0]], [T[2], T[3], T[4]], vop3=True)
    v(f"v_or_b32 {rn(T[0])}, {rn(T[0])}, {rn(T[5])}", [T[0]], [T[0], T[5]])
    e.ds_read(4, T[2], T[1], 16)
    v(f"v_or3_b32 {rn(T[0])}, {rn(T[2])}, {rn(T[3])}, {rn(T[0])}", [T[0]], [T[2], T[3], T[0]], vop3=True)
    v(f"v_or3_b32 {rn(T[0])}, {rn(T[4])}, {rn(T[5])}, {rn(T[0])}", [T[0]], [T[4], T[5], T[0]], vop3=True)
    e.rfl(S_FLAG, T[0])
    e.salu(f"s_cmp_lg_u32 {S_FLAG}, 0")
    e.salu(f"s_cbranch_scc1 {label}")


def ef_read_ops(e, vefr, EF):
    return [lambda: e.ds_read(4, EF, vefr, 0),
            lambda: e.ds_read(4, EF + 4, vefr, 512),
            lambda: e.valu(f"v_add_u32 {rn(vefr)}, {4 * EFROW}, {rn(vefr)}", [vefr], [vefr])]


def produce_ops(e, slow, vefr, vjw, EGb, EF, WK, PK, nrows):
    v = V(e)
    ops = []
    for uu in range(nrows):
        for h in range(2):
            els = range(4 * h, 4 * h + 4)
            for i in els:
                if slow:
                    ops.append(lambda i=i, uu=uu: v(
                        f"v_add_f32 {rn(WK + i)}, {rn(EF + i)}, {rn(EGb + 8 * uu + i)}",
                        [WK + i], [EF + i, EGb + 8 * uu + i]))
                else:
                    ops.append(lambda i=i, uu=uu: v(
                        f"v_fma_f32 {rn(WK + i)}, {rn(EF + i)}, {rn(EGb + 8 * uu + i)}, -0.5",
                        [WK + i], [EF + i, EGb + 8 * uu + i], vop3=True))
        if uu == nrows - 1:
            ops += ef_read_ops(e, vefr, EF)
        for h in range(2):
            els = range(4 * h, 4 * h + 4)
            if slow:
                for i in els:
                    ops.append(lambda i=i: v(f"v_exp_f32 {rn(WK + i)}, {rn(WK + i)}", [WK + i], [WK + i], trans=True))
                for i in els:
                    ops.append(lambda i=i: v(f"v_add_f32 {rn(WK + i)}, 1.0, {rn(WK + i)}", [WK + i], [WK + i]))
            for i in els:
                ops.append(lambda i=i: v(f"v_rcp_f32 {rn(WK + i)}, {rn(WK + i)}", [WK + i], [WK + i], trans=True))
            for i in (els if not X_FOLD else ()):
                if slow:
                    ops.append(lambda i=i: v(f"v_fma_f32 {rn(WK + i)}, {rn(WK + i)}, -2.0, 1.0",
                                             [WK + i], [WK + i], vop3=True))
                else:
                    ops.append(lambda i=i: v(f"v_add_f32 {rn(WK + i)}, 1.0, {rn(WK + i)}", [WK + i], [WK + i]))
            for i in (4 * h, 4 * h + 2):
                ops.append(lambda i=i: v(
                    f"v_cvt_pk_bf16_f32 {rn(PK + i // 2)}, {rn(WK + i)}, {rn(WK + i + 1)}",
                    [PK + i // 2], [WK + i, WK + i + 1], vop3=True))
        ops.append(lambda uu=uu: e.ds_write(4, vjw, PK, uu * HROW))
    return ops


SJ = ["s49", "s50", "s51"]
STB = ["s45", "s46", "s47"]


def init_steps(e):
    for i in range(3):
        e.salu(f"s_mov_b32 {SJ[i]}, {(JB[(i + 1) % 3] - JB[i]) & 0xffffffff}")


def rot_steps(e):
    def f():
        for r in (SJ,):
            e.salu(f"s_mov_b32 {S_T2}, {r[0]}")
            e.salu(f"s_mov_b32 {r[0]}, {r[1]}")
            e.salu(f"s_mov_b32 {r[1]}, {r[2]}")
            e.salu(f"s_mov_b32 {r[2]}, {S_T2}")
    return [f]


def step(e, reg, sgpr):
    return lambda: e.valu(f"v_add_u32 {rn(reg)}, {sgpr}, {rn(reg)}", [reg], [reg])


def rotate3(e, regs, tmp):
    v = V(e)
    return [lambda: v(f"v_mov_b32 {rn(tmp)}, {rn(regs[0])}", [tmp], [regs[0]]),
            lambda: v(f"v_mov_b32 {rn(regs[0])}, {rn(regs[1])}", [regs[0]], [regs[1]]),
            lambda: v(f"v_mov_b32 {rn(regs[1])}, {rn(regs[2])}", [regs[1]], [regs[2]]),
            lambda: v(f"v_mov_b32 {rn(regs[2])}, {rn(tmp)}", [regs[2]], [tmp])]


def readback_store_ops(e, vor, vos, regs):
    ops = []
    for i in range(4):
        ops.append(lambda i=i: e.ds_read(4, regs + 4 * i, vor, i * 8 * OROW))
    for i in range(4):
        def st(i=i):
            e.bstore(4, regs + 4 * i, vos, SOUT, S_OS, flags=ST_FLAGS)
            e.salu(f"s_add_u32 {S_OS}, {S_OS}, 4096")
        ops.append(st)
    return ops


def loop_fence(e):
    e.pend = {r: p for r, p in e.pend.items() if p[0] == 'v'}
    e.ldone = e.lseq


def gen_compute(e):
    v = V(e)
    stamp = Stamper(e)
    e.label("L_compute")
    e.salu(f"s_cmp_ge_u32 s2, {NWG}")
    e.salu("s_cbranch_scc1 L_end")
    st = Stream(e, RS, VS, FBUF)
    for s in range(4):
        for tap in range(3):
            for k in range(4):
                st.add(SW1, (f"s{44 + s}", tap * 131072 + 16 * k * 512))
    kord = [[4 * w + 2 * half + j for w in range(4) for j in range(2)] for half in range(2)]
    c2 = [(tap, kc) for half in range(2) for tap in range(3) for kc in kord[half]]
    cf = [kc for half in range(2) for kc in kord[half]]
    for tap, kc in c2:
        st.add(SW2, (tap * 16 + kc) * 8192)
    for kc in cf:
        st.add(SWF, kc * 8192)
    U_1, U_2, U_F = 0, 48, 96

    stamp()
    e.salu(f"s_lshl_b32 {S_RING}, {S_W}, 14")
    e.salu(f"s_add_u32 {S_RING}, {S_RING}, {RING}")
    for i in range(4):
        e.salu(f"s_lshl_b32 s{44 + i}, s{44 + i}, 8")
    for _ in range(C_INIT):
        st.do_dma()
    tr_consts(e, False)
    c_consts_ge(e)
    for f in c_consts_ops(e):
        f()
    for _ in range(RS - C_INIT):
        st.do_dma()

    steps = [(s, tap, k) for s in range(4) for tap in range(3) for k in range(4)]

    def b_reads1(i):
        s, tap, k = steps[i]
        base = BFR + 12 * (i % 2)
        return [lambda: e.ds_read(4, base, VXB[tap][k], s * XSL),
                lambda: e.ds_read(4, base + 4, VXB[tap][k], s * XSL + 4096),
                lambda: e.ds_read(4, base + 8, VXH[tap][k], s * XSL)]

    for i, (s, tap, k) in enumerate(steps):
        u = U_1 + i
        if i in (24, 36) and not XJIT:
            stamp()
        if i in ((0, 12, 24, 36) if XJIT else (0, 12)):
            st.ensure(u)
            stamp("bar")
            e.raw("    s_barrier")
            stamp()
            stamp("bar")
            for f in b_reads1(i):
                f()
        st.ensure(u + (1 if "ahead" in X_C1 else 0))
        d = st.dest(u)
        bb = BFR + 12 * (i % 2)
        mains = []
        for nt in range(2):
            for mt in range(2):
                a = ACC + 16 * (2 * mt + nt)
                mains.append(lambda a=a, mt=mt, nt=nt: e.mfma(True, a, d + 4 * mt, bb + 4 * nt, a if i else None))
        for mt in range(2):
            a = HACC + 4 * mt
            mains.append(lambda a=a, mt=mt: e.mfma(False, a, d + 4 * mt, bb + 8, a if i else None))
        br = b_reads1(i + 1) if (i + 1 < 48 and i + 1 not in ((12, 24, 36) if XJIT else (12,))) else []
        mains[0]()
        for f in br:
            f()
        mains[1]()
        st.pump(1)
        mains[2]()
        st.pump(1)
        mains[3]()
        if "nohalo" not in X_C1:
            mains[4]()
            mains[5]()
        st.cu += 1
    stamp()
    e.raw("    s_barrier")
    stamp()
    pump = lambda: st.pump(2)
    gt = rng(TMP + 24, 4)
    late2 = [lambda: prod_consts(e, VEFR, VEGR, PJW, 0), lambda: init_steps(e)]

    def epi1():
        ops = []
        for nt in range(2):
            a = ACC + 16 * nt
            pk = TMP + 8 * nt
            ops += gelu_list(e, rng(a, 16), rng(pk, 8), gt)
            for h in range(2):
                ops.append(lambda pk=pk, h=h, nt=nt: e.ds_write(4, VHW, pk + 4 * h, nt * 16 * HROW + 32 * h))
        ops += gelu_list(e, rng(HACC, 8), rng(TMP + 16, 4), gt)
        for mt in range(2):
            ops.append(lambda mt=mt: e.ds_write(2, VHH, TMP + 16 + 2 * mt, 64 * mt))
        return ops

    def epi2():
        ops = gelu_list(e, rng(ACC, 16), rng(TMP, 8), gt)
        for h in range(2):
            ops.append(lambda h=h: e.ds_write(4, VFW, TMP + 4 * h, FB + 32 * h))
        return ops

    def small_gemm(ubase, lo, hi, boff, acc, side=()):
        def bread(i):
            return lambda: e.ds_read(4, BFR + 4 * (i % 4), VHR, boff(i))
        bread(lo)()
        bread(lo + 1)()
        n = hi - lo
        for i in range(lo, hi):
            u = ubase + i
            st.ensure(min(u + AHEAD, len(st.units) - 1))
            while st.can_dma():
                st.do_dma()
            d = st.dest(u)
            mains = [lambda mt=mt: e.mfma(True, acc + 16 * mt, d + 4 * mt, BFR + 4 * (i % 4),
                                          acc + 16 * mt if i else None) for mt in range(2)]
            fill = []
            if i + 2 < hi:
                fill.append(bread(i + 2))
            fill += [lambda: st.pump(1), lambda: st.pump(1)]
            fill = merge(list(side[len(side) * (i - lo) // n:len(side) * (i - lo + 1) // n]), fill)
            interleave(mains, fill)
            st.cu += 1

    for q in range(8):
        e.ds_write(4, VGR, ACC + 32 + 4 * q, 1024 * q)
    e.barrier()
    extra = [ACC + 32 + 8 * i for i in range(4)]
    st.add_slots(extra + [KEEPB, BFR + 16])
    run_with_pump(epi1(), pump, every=PUMP_EVERY)
    e.barrier()
    stamp()
    tapoff = [0, HEVEN * HROW, HROW]
    boff2 = lambda i: tapoff[c2[i][0]] + 32 * c2[i][1]
    st.retired = set(extra)
    small_gemm(U_2, 0, 48, boff2, ACC, late2)
    assert all(st.slot_of[u] not in extra for u in range(st.cu, st.tu))
    st.free = [d for d in st.free if d not in extra]
    e.raw("    s_barrier")
    stamp()
    for q in range(4):
        e.ds_write(4, VEGW, ACC + 16 + 4 * q, 1024 * q)
    e.barrier()
    run_with_pump(epi2(), pump)
    e.barrier()
    stamp()
    bofff = lambda i: FB + 32 * cf[i]
    small_gemm(U_F, 0, 16, bofff, ACC + 32)
    exp_stage(e, ACC + 32, KEEPA, ACC, 32, VMAX)
    for mt in range(2):
        for h in range(2):
            for pl in range(2):
                e.ds_write(4, VEFW, ACC + 16 * mt + 8 * h + 4 * pl, 64 * mt + 32 * h + 512 * pl)
    publish_flag(e, VMAX, 0)
    e.barrier()
    stamp()
    flag_check(e, "L_c_slow")
    snap = (copy.deepcopy(e.pend), e.lseq, e.vseq, e.ldone, e.vdone)

    def out_stage(slow, tag):
        for uu in range(PROWS):
            for pl in range(2):
                e.ds_read(4, PEG + 8 * uu + 4 * pl, VEGR, uu * 1024 + pl * 512)
        for f in ef_read_ops(e, VEFR, PEF):
            f()
        for c in range(2):
            for f in produce_ops(e, slow, VEFR, PJW[c], PEG, PEF, PWK, PPK, 2):
                f()
        e.salu(f"s_mov_b32 {S_CNT}, 6")
        e.barrier()
        if not slow:
            stamp()
        loop_fence(e)
        if STAMPS:
            e.salu("s_mov_b32 s101, 0")
        e.label(f"L_c_loop{tag}")
        stamp.loop_top()
        ops = produce_ops(e, slow, VEFR, PJW[2], PEG, PEF, PWK, PPK, PROWS)
        for f in ops + [step(e, PJW[2], SJ[2])] + rot_steps(e):
            f()
        stamp.loop_pre_barrier()
        e.salu(f"s_sub_u32 {S_CNT}, {S_CNT}, 1")
        e.salu(f"s_cmp_lg_u32 {S_CNT}, 0")
        e.barrier()
        e.salu(f"s_cbranch_scc1 L_c_loop{tag}")
        if not slow:
            stamp()

    out_stage(False, "")
    if STAMPS:
        e.wait_all_vm()
    stamp()
    stamp.dump(False)
    e.salu("s_endpgm")

    e.label("L_c_slow")
    (e.pend, e.lseq, e.vseq, e.ldone, e.vdone) = snap
    e.wr.clear(); e.stw.clear(); e.sgpr_valu.clear()
    e.nop(8)
    e.barrier()
    for mt in range(2):
        for h in range(2):
            for pl in range(2):
                e.ds_write(4, VEFW, KEEPA + 16 * mt + 8 * h + 4 * pl, 64 * mt + 32 * h + 512 * pl)
    e.barrier()
    out_stage(True, "s")
    e.salu("s_endpgm")


def gen_helper(e):
    v = V(e)
    stamp = Stamper(e)
    t0, t1, t2, t3, t4, t5, t6, t7 = T
    L = rn(VL)
    SDBG, SWS = 40, 52
    HVG, HVEGW, HVST, GMAX = 39, 25, 24, 23
    RAW, NFL = MACC, 4
    GFR = MPO
    GEF = 88
    GACC, GKEEP = 104, 112
    e.label("L_helper")
    e.salu("s_setprio 3")
    stamp()
    e.salu(f"s_lshl_b32 {S_RING}, {S_W}, 12")
    e.salu(f"s_add_u32 {S_RING}, {S_RING}, {J2}")
    e.salu(f"s_cmp_ge_u32 s2, 125")
    e.salu(f"s_cselect_b32 {S_B}, 1, 0")
    e.salu(f"s_cmp_ge_u32 s2, {NWG}")
    e.salu("s_cbranch_scc1 L_h_setup2")
    v(f"v_lshlrev_b32 {rn(HVP)}, 6, {L}", [HVP], [VL])
    e.salu(f"s_lshl_b32 {S_LIM}, s48, 2")
    e.salu(f"s_add_u32 {S_LIM}, {S_LIM}, {S_W}")
    e.salu(f"s_lshl_b32 {S_LIM}, {S_LIM}, 12")
    for rep in range(NTOUCH):
        if rep:
            e.salu(f"s_add_u32 {S_LIM}, {S_LIM}, {43 << 12}")
            e.salu(f"s_and_b32 {S_LIM}, {S_LIM}, {(128 << 12) - 1}")
        e.salu(f"s_and_b32 {S_T2}, {S_LIM}, {(32 << 12) - 1}")
        for srd in (SW1, SW2):
            e.bload(1, 104, HVP, srd, S_LIM)
        if rep == 0:
            for srd in (SWF, SWO):
                e.bload(1, 104, HVP, srd, S_T2 if NTOUCH > 1 else S_LIM)
    e.salu(f"s_mul_i32 {S_T1}, {S_B}, 125")
    e.salu(f"s_sub_u32 {S_T0}, s2, {S_T1}")
    e.salu(f"s_lshl_b32 {S_T0}, {S_T0}, 7")
    e.salu(f"s_lshl_b32 {S_T1}, {S_W}, 3")
    e.salu(f"s_mul_i32 {S_CNT}, {S_B}, 16000")
    e.salu(f"s_lshl_b32 {S_D}, {S_W}, 10")
    v(f"v_mov_b32 {rn(HC)}, 133", [HC], [])
    v(f"v_bfrev_b32 {rn(HVMAX)}, 1", [HVMAX], [])
    v(f"v_lshrrev_b32 {rn(t6)}, 3, {L}", [t6], [VL])
    v(f"v_add_u32 {rn(t0)}, {S_T1}, {rn(t6)}", [t0], [t6])
    v(f"v_and_b32 {rn(t1)}, 7, {L}", [t1], [VL])
    xseq = {}

    def xconst(j):
        if j < 4:
            v(f"v_add_u32 {rn(t2)}, {32 * j}, {rn(t0)}", [t2], [t0])
        else:
            v(f"v_add_u32 {rn(t2)}, 128, {rn(t6)}", [t2], [t6])
        v(f"v_bfe_u32 {rn(t3)}, {rn(t2)}, 1, 3", [t3], [t2], vop3=True)
        v(f"v_xor_b32 {rn(t3)}, {rn(t1)}, {rn(t3)}", [t3], [t1, t3])
        v(f"v_lshlrev_b32 {rn(t4)}, 1, {rn(t2)}", [t4], [t2])
        v(f"v_cmp_lt_u32 vcc, 64, {rn(t2)}", [], [t2], sw=["vcc"])
        v(f"v_cndmask_b32 {rn(t5)}, 2, {rn(HC)}, vcc", [t5], [HC], sr=["vcc"])
        v(f"v_sub_u32 {rn(t4)}, {rn(t4)}, {rn(t5)}", [t4], [t4, t5])
        v(f"v_add_u32 {rn(t4)}, {S_T0}, {rn(t4)}", [t4], [t4])
        v(f"v_add_u32 {rn(t5)}, {S_CNT}, {rn(t4)}", [t5], [t4])
        v(f"v_lshlrev_b32 {rn(t5)}, 9, {rn(t5)}", [t5], [t5])
        v(f"v_lshl_add_u32 {rn(t5)}, {rn(t3)}, 4, {rn(t5)}", [t5], [t3, t5], vop3=True)
        if j < 4:
            v(f"v_cmp_gt_i32 vcc, 0, {rn(t4)}", [], [t4], sw=["vcc"])
        else:
            v(f"v_cmp_lt_u32 vcc, 130, {rn(t2)}", [], [t2], sw=["vcc"])
        v(f"v_cndmask_b32 {rn(HVX[j])}, {rn(t5)}, {rn(HVMAX)}, vcc", [HVX[j]], [t5, HVMAX], sr=["vcc"])

    def xdma(s, j):
        e.salu(f"s_add_u32 m0, {S_D}, {s * XSL + 4096 * j}", m0=True)
        xseq[s] = e.dma(HVX[j], SX, f"s{44 + s}", flags="nt")

    for j in range(4):
        xconst(j)
        xdma(0, j)
    xconst(4)
    e.salu(f"s_mul_i32 {S_T1}, {S_W}, {XSL}")
    e.salu(f"s_add_u32 {S_T2}, s48, {S_W}")
    e.salu(f"s_and_b32 {S_T2}, {S_T2}, 3")
    e.salu(f"s_lshl_b32 {S_T2}, {S_T2}, 7")
    e.salu(f"s_add_u32 m0, {S_T1}, 16384", m0=True)
    xseq[0] = e.dma(HVX[4], SX, S_T2, flags="nt")
    for j in range(4):
        xdma(1, j)
    for srd in ((SW1, SW2, SWF, SWO) if TOUCH_LATE else ()):
        e.bload(1, 104, HVP, srd, S_LIM)
    if XALL:
        for s in range(2, 2 + XALL):
            for j in range(4):
                xdma(s, j)
    e.wait(vseq=xseq[0])
    e.raw("    s_barrier")
    stamp()
    for s in range(2 + XALL, 3 if XJIT else 4):
        for j in range(4):
            xdma(s, j)
    e.label("L_h_setup2")
    e.salu("s_setprio 0")
    e.salu(f"s_sub_u32 {S_T1}, s2, {NWG}")
    e.salu(f"s_cmp_ge_u32 s2, {NWG}")
    e.salu(f"s_cselect_b32 {S_B}, {S_T1}, {S_B}")
    e.salu(f"s_load_dwordx2 s[{SDBG}:{SDBG + 1}], s[0:1], 64")
    e.salu(f"s_load_dwordx2 s[{SWS}:{SWS + 1}], s[0:1], 72")
    e.salu("s_waitcnt lgkmcnt(0)")
    e.salu(f"s_and_b32 s{SDBG + 1}, s{SDBG + 1}, 0xffff")
    e.salu(f"s_mov_b32 s{SDBG + 2}, 256")
    e.salu(f"s_mov_b32 s{SDBG + 3}, 0x20000")
    e.salu(f"s_and_b32 s{SWS + 1}, s{SWS + 1}, 0xffff")
    e.salu(f"s_mov_b32 s{SWS + 2}, {WS_OFF + 16384}")
    e.salu(f"s_mov_b32 s{SWS + 3}, 0x20000")
    tr_consts(e, False)
    v(f"v_and_b32 {rn(t0)}, 15, {L}", [t0], [VL])
    v(f"v_lshrrev_b32 {rn(t1)}, 4, {L}", [t1], [VL])
    v(f"v_xor_b32 {rn(t2)}, {rn(t0)}, {rn(t1)}", [t2], [t0, t1])
    v(f"v_and_b32 {rn(t2)}, 1, {rn(t2)}", [t2], [t2])
    v(f"v_lshrrev_b32 {rn(t3)}, 1, {rn(t0)}", [t3], [t0])
    e.salu(f"s_lshl_b32 {S_T1}, {S_B}, 3")
    v(f"v_add_u32 {rn(t3)}, {S_T1}, {rn(t3)}", [t3], [t3])
    v(f"v_lshlrev_b32 {rn(t3)}, 9, {rn(t3)}", [t3], [t3])
    v(f"v_lshrrev_b32 {rn(t4)}, 1, {rn(t1)}", [t4], [t1])
    v(f"v_lshl_add_u32 {rn(t3)}, {rn(t4)}, 4, {rn(t3)}", [t3], [t4, t3], vop3=True)
    v(f"v_lshl_or_b32 {rn(HVG)}, {rn(t2)}, 31, {rn(t3)}", [HVG], [t2, t3], vop3=True)
    v(f"v_and_b32 {rn(t2)}, 1, {rn(t0)}", [t2], [t0])
    v(f"v_lshl_or_b32 {rn(t2)}, {rn(t2)}, 2, {rn(t1)}", [t2], [t2, t1], vop3=True)
    perm_q(e, t4, t2, t6, t7)
    v(f"v_lshrrev_b32 {rn(t3)}, 1, {rn(t0)}", [t3], [t0])
    v(f"v_lshlrev_b32 {rn(t3)}, 10, {rn(t3)}", [t3], [t3])
    v(f"v_and_b32 {rn(t5)}, 1, {rn(t4)}", [t5], [t4])
    v(f"v_lshl_add_u32 {rn(t3)}, {rn(t5)}, 9, {rn(t3)}", [t3], [t5, t3], vop3=True)
    v(f"v_lshrrev_b32 {rn(t5)}, 1, {rn(t4)}", [t5], [t4])
    v(f"v_lshl_add_u32 {rn(t3)}, {rn(t5)}, 4, {rn(t3)}", [t3], [t5, t3], vop3=True)
    v(f"v_add_u32 {rn(t3)}, {S_W128}, {rn(t3)}", [t3], [t3])
    v(f"v_add_u32 {rn(HVEGW)}, {EG}, {rn(t3)}", [HVEGW], [t3])
    v(f"v_lshlrev_b32 {rn(t3)}, 4, {L}", [t3], [VL])
    v(f"v_add_u32 {rn(HVST)}, {S_RING}, {rn(t3)}", [HVST], [t3])
    v(f"v_mov_b32 {rn(GMAX)}, 0", [GMAX], [])
    e.salu(f"s_lshl_b32 {S_T0}, {S_B}, 2")
    e.salu(f"s_add_u32 {S_T0}, {S_T0}, {S_W}")
    e.salu(f"s_lshl_b32 {S_T0}, {S_T0}, 11")
    e.salu(f"s_add_u32 {S_T0}, {S_T0}, {WS_OFF}")
    e.salu(f"s_lshl_b32 {S_D}, {S_B}, 2")
    v(f"v_lshrrev_b32 {rn(t0)}, 3, {L}", [t0], [VL])
    v(f"v_lshlrev_b32 {rn(t0)}, 9, {rn(t0)}", [t0], [t0])
    v(f"v_add_u32 {rn(t0)}, {S_W128}, {rn(t0)}", [t0], [t0])
    v(f"v_and_b32 {rn(t1)}, 7, {L}", [t1], [VL])
    v(f"v_lshrrev_b32 {rn(t2)}, 3, {L}", [t2], [VL])
    v(f"v_and_b32 {rn(t2)}, 2, {rn(t2)}", [t2], [t2])
    v(f"v_xor_b32 {rn(t2)}, {rn(t1)}, {rn(t2)}", [t2], [t1, t2])
    v(f"v_lshl_add_u32 {rn(VWO0)}, {rn(t2)}, 4, {rn(t0)}", [VWO0], [t2, t0], vop3=True)
    v(f"v_add_u32 {rn(VWO1)}, 3072, {rn(VWO0)}", [VWO1], [VWO0])
    tr_consts(e, True)
    prod_consts(e, MEFR, MEGR, MJW, 2)
    v(f"v_mul_u32_u24 {rn(t2)}, {HROW}, {rn(t0)}", [t2], [t0])
    v(f"v_lshl_add_u32 {rn(t2)}, {rn(t1)}, 4, {rn(t2)}", [t2], [t1, t2], vop3=True)
    for i in range(2):
        v(f"v_add_u32 {rn(MJR[i])}, {JB[i]}, {rn(t2)}", [MJR[i]], [t2])
    e.salu(f"s_lshl_b32 {S_T2}, {S_W}, 14")
    e.salu(f"s_add_u32 {S_T2}, {S_T2}, {RING}")
    v(f"v_mul_u32_u24 {rn(t2)}, {OROW}, {rn(t0)}", [t2], [t0])
    v(f"v_lshl_add_u32 {rn(t2)}, {rn(t1)}, 6, {rn(t2)}", [t2], [t1, t2], vop3=True)
    v(f"v_add3_u32 {rn(MOW)}, {rn(t2)}, {S_T2}, 0", [MOW], [t2], vop3=True)
    store_consts(e, MOR, MOS, S_T2)
    HHW, HFW, HC1, HRAW = 32, 37, 38, 22
    v(f"v_and_b32 {rn(t0)}, 31, {L}", [t0], [VL])
    v(f"v_lshrrev_b32 {rn(t1)}, 5, {L}", [t1], [VL])
    v(f"v_mul_u32_u24 {rn(t2)}, {HROW}, {rn(t0)}", [t2], [t0])
    v(f"v_lshl_add_u32 {rn(t2)}, {rn(t1)}, 4, {rn(t2)}", [t2], [t1, t2], vop3=True)
    v(f"v_add_u32 {rn(HFW)}, {S_W128}, {rn(t2)}", [HFW], [t2])
    v(f"v_and_b32 {rn(t2)}, 1, {rn(t0)}", [t2], [t0])
    v(f"v_cmp_eq_u32 vcc, 1, {rn(t2)}", [], [t2], sw=["vcc"])
    v(f"v_mov_b32 {rn(t3)}, 1", [t3], [])
    v(f"v_cndmask_b32 {rn(t3)}, {HEVEN}, {rn(t3)}, vcc", [t3], [t3], sr=["vcc"])
    v(f"v_lshrrev_b32 {rn(t2)}, 1, {rn(t0)}", [t2], [t0])
    v(f"v_add_u32 {rn(t2)}, {rn(t2)}, {rn(t3)}", [t2], [t2, t3])
    v(f"v_mul_u32_u24 {rn(t2)}, {HROW}, {rn(t2)}", [t2], [t2])
    v(f"v_lshl_add_u32 {rn(t2)}, {rn(t1)}, 4, {rn(t2)}", [t2], [t1, t2], vop3=True)
    v(f"v_add_u32 {rn(HHW)}, {S_W128}, {rn(t2)}", [HHW], [t2])
    v(f"v_mov_b32 {rn(HC1)}, {f32(GC1)}", [HC1], [])
    e.salu(f"s_lshl_b32 {S_T1}, {S_W}, 13")
    e.salu(f"s_add_u32 {S_T1}, {S_T1}, {FB}")
    v(f"v_lshlrev_b32 {rn(t3)}, 4, {L}", [t3], [VL])
    v(f"v_add_u32 {rn(HRAW)}, {S_T1}, {rn(t3)}", [HRAW], [t3])
    e.salu(f"s_cmp_ge_u32 s2, {NWG}")
    e.salu("s_cbranch_scc1 L_ge")
    if XJIT:
        e.salu(f"s_lshl_b32 {S_LIM}, {S_W}, 10")
        e.wait(vseq=xseq[1])
        e.raw("    s_barrier")
        for j in range(4):
            e.salu(f"s_add_u32 m0, {S_LIM}, {3 * XSL + 4096 * j}", m0=True)
            xseq[3] = e.dma(HVX[j], SX, "s47", flags="nt")
        e.wait(vseq=xseq[2])
        e.raw("    s_barrier")
    e.wait(vseq=xseq[3])
    e.raw("    s_barrier")
    stamp()

    def unit_ops(srd, wo, lo=0, hi=16, raw=RAW):
        trseq = {}
        ops = []

        def load(u):
            e.salu(f"s_mov_b32 {S_SOFF}, {u * 8192}")
            r = raw + 8 * (u % NFL)
            e.bload(4, r, VWO0 if wo else VW0, srd, S_SOFF)
            e.bload(4, r + 4, VWO1 if wo else VW1, srd, S_SOFF, off=1024)
            if not wo:
                e.bload(4, GFR + 4 * (u % 4), HVG, SG, 0, off=32 * u)

        def stage(u):
            r = raw + 8 * (u % NFL)
            slot = (u % 2) * 2048
            if u - 2 >= lo:
                e.wait(lseq=trseq[u - 2])
            e.ds_write(4, HVST, r, slot)
            e.ds_write(4, HVST, r + 4, slot + 1024)
            d = WO_DEST[u] if wo else GEF + 8 * (u % 2)
            va = VTRO if wo else VTR
            for mt in range(2):
                for jj in range(2):
                    trseq[u] = e.ds_read(2, d + 4 * mt + 2 * jj, va[mt], slot + jj * 512, tr=True)

        def mm(u):
            dp = GEF + 8 * (u % 2)
            for mt in range(2):
                e.mfma(False, GACC + 4 * mt, dp + 4 * mt, GFR + 4 * (u % 4), GACC + 4 * mt if u else None)

        nfl = NFL if wo else NFL - 1
        for u in range(lo, min(lo + nfl, hi)):
            ops.append(lambda u=u: load(u))
        for u in range(lo, hi + 1):
            if u < hi:
                ops.append(lambda u=u: stage(u))
            if not wo and u >= 1:
                ops.append(lambda u=u: mm(u - 1))
            if u + nfl < hi:
                ops.append(lambda u=u: load(u + nfl))
        return ops

    def dma_unit_ops(lo, hi):
        dseq, tseq = {}, {}
        ops = []

        def dma(u):
            if u - 2 >= lo:
                e.wait(lseq=tseq[u - 2])
            e.salu(f"s_add_u32 m0, {S_RING}, {(u % 2) * 2048}", m0=True)
            e.salu(f"s_mov_b32 {S_SOFF}, {u * 8192}")
            e.dma(VWO0, SWO, S_SOFF)
            dseq[u] = e.dma(VWO1, SWO, S_SOFF, off=1024)

        def tr(u):
            e.wait(vseq=dseq[u])
            for mt in range(2):
                for jj in range(2):
                    tseq[u] = e.ds_read(2, WO_DEST[u] + 4 * mt + 2 * jj, VTRO[mt], (u % 2) * 2048 + jj * 512, tr=True)

        for u in range(lo, min(lo + 2, hi)):
            ops.append(lambda u=u: dma(u))
        for u in range(lo, hi):
            ops.append(lambda u=u: tr(u))
            if u + 2 < hi:
                ops.append(lambda u=u: dma(u + 2))
        return ops

    def run_units(srd, wo, lo=0, hi=16):
        for f in unit_ops(srd, wo, lo, hi):
            f()

    for f in dma_unit_ops(0, WO_EARLY):
        f()
    e.raw("    s_barrier")
    wops = []
    for f in wops[:NFL]:
        f()
    e.raw("    s_barrier")
    GA, GP, GT = 40, 72, rng(88, 4)
    for q in range(8):
        e.ds_read(4, GA + 4 * q, HRAW, 1024 * q)
    gops = []
    for nt in range(2):
        gops += gelu_list(e, rng(GA + 16 * nt, 16), rng(GP + 8 * nt, 8), GT, HC1)
        for h in range(2):
            gops.append(lambda nt=nt, h=h: e.ds_write(4, HHW, GP + 8 * nt + 4 * h, nt * 16 * HROW + 64 + 32 * h))
    for f in merge(gops, wops[NFL:]):
        f()
    e.wait_all_lds()
    e.salu(f"s_buffer_load_dword {S_T1}, s[{SDBG}:{SDBG + 3}], {S_D}")
    e.salu("s_waitcnt lgkmcnt(0)")
    stamp()
    e.raw("    s_barrier")
    e.salu(f"s_cmp_lg_u32 {S_T1}, {4 if not X_NOPUB else 99}")
    e.salu("s_cbranch_scc1 L_ge")
    v(f"v_lshlrev_b32 {rn(t3)}, 4, {L}", [t3], [VL])
    e.bload(4, GACC, t3, SWS, S_T0, flags="sc1")
    e.bload(4, GACC + 4, t3, SWS, S_T0, off=1024, flags="sc1")
    e.salu("s_branch L_ge_done")
    e.label("L_ge")
    e.pend.clear(); e.wr.clear()
    e.ldone, e.vdone = e.lseq, e.vseq
    e.raw("    s_waitcnt vmcnt(0) lgkmcnt(0)")
    run_units(SWG, False)
    e.nop(10)
    e.salu(f"s_cmp_lt_u32 s2, {NWG}")
    e.salu("s_cbranch_scc1 L_ge_done")
    v(f"v_lshlrev_b32 {rn(t3)}, 4, {L}", [t3], [VL])
    e.bstore(4, GACC, t3, SWS, S_T0, flags="sc0 sc1")
    e.bstore(4, GACC + 4, t3, SWS, S_T0, off=1024, flags="sc0 sc1")
    e.wait_all_vm()
    v(f"v_mov_b32 {rn(t0)}, 0", [t0], [])
    v(f"v_mov_b32 {rn(t1)}, 1", [t1], [])
    e.salu("s_mov_b64 exec, 1")
    e.raw(f"    buffer_atomic_add {rn(t1)}, {rn(t0)}, s[{SDBG}:{SDBG + 3}], {S_D} offen sc1")
    e.salu("s_endpgm")
    e.label("L_ge_done")
    e.pend.clear(); e.wr.clear()
    e.raw("    s_waitcnt lgkmcnt(0)")
    e.ldone = e.lseq
    e.vseq += 2
    for r in rng(GACC, 8):
        e.pend[r] = ('v', e.vseq)

    def finish_ge():
        exp_stage(e, GACC, GKEEP, 120, 8, GMAX)
        for i in range(8):
            v(f"v_mul_f32 {rn(120 + i)}, -0.5, {rn(120 + i)}", [120 + i], [120 + i])
        for mt in range(2):
            e.ds_write(4, HVEGW, 120 + 4 * mt, 64 * mt)
        publish_flag(e, GMAX, 16)

    if WO_SPLIT[1] > WO_SPLIT[0]:
        run_units(SWO, True, WO_SPLIT[0], WO_SPLIT[1])
    finish_ge()
    stamp()
    e.barrier()
    wops = unit_ops(SWO, True, WO_SPLIT[1], WO_LATE, raw=56) if WO_SPLIT[1] < WO_LATE else []
    for f in wops[:NFL]:
        f()
    e.raw("    s_barrier")
    for q in range(4):
        e.ds_read(4, GA + 4 * q, HVST, 1024 * q)
    for f in gelu_list(e, rng(GA, 16), rng(92, 8), GT, HC1):
        f()
    for h in range(2):
        e.ds_write(4, HFW, 92 + 4 * h, FB + 64 + 32 * h)
    e.barrier()
    if H_PRIO:
        e.salu(f"s_setprio {H_PRIO}")
    for f in wops[NFL:]:
        f()
    stamp()
    e.barrier()
    stamp()
    flag_check(e, "L_h_slow")
    snap = (copy.deepcopy(e.pend), e.lseq, e.vseq, e.ldone, e.vdone)

    def epi_ops():
        ops = []
        for q in range(4):
            for i in range(4):
                k = 4 * q + i
                ops.append(lambda k=k: v(f"v_cvt_pk_bf16_f32 {rn(MOUT + k)}, {rn(MOUT + 2 * k)}, {rn(MOUT + 2 * k + 1)}",
                                         [MOUT + k], [MOUT + 2 * k, MOUT + 2 * k + 1], vop3=True))
            ops.append(lambda q=q: e.ds_write(4, MOW, MOUT + 4 * q, 16 * q))
        return ops

    def jread(idx):
        reg = MJR[0] if idx < 16 else MJR[1]
        return lambda: e.ds_read(4, MBF[idx % 4], reg, 32 * (idx % 16))

    def chunk_body(slow):
        prod = produce_ops(e, slow, MEFR, MJW[2], MEG, MEF, MWK, MPK, 1) + [step(e, MJW[2], SJ[2])]
        if X_NOMPROD or PROWS == 4:
            prod = []
        epi = epi_ops()
        rbs = readback_store_ops(e, MOR, MOS, MOUT + 16)
        plan = {}
        for i, f in enumerate(epi):
            plan.setdefault(i // 2, []).append(f)
        for i in range(4):
            plan.setdefault(10 + i, []).append(rbs[i])
            plan.setdefault(ST0 + STD * i, []).append(rbs[4 + i])
        for ks in range(16):
            wo = WO_DEST[ks]
            for mt in range(2):
                dst = (MOUT if ks == 15 else MACC) + 16 * mt
                e.mfma(True, dst, wo + 4 * mt, MBF[ks % 4], MACC + 16 * mt if ks else None)
                if mt == 0:
                    jread(ks + JD)()
                for f in plan.get(2 * ks + mt - 1, []):
                    f()
        v(f"v_mov_b32 {rn(MJR[0])}, {rn(MJR[1])}", [MJR[0]], [MJR[1]])
        step(e, MJR[1], SJ[1])()
        for f in rot_steps(e):
            f()

    def out_stage(slow, tag):
        if WO_LATE < 16:
            run_units(SWO, True, WO_LATE, 16)
        init_steps(e)
        QEG, QEF, QWK, QPK = MACC, MACC + 16, MACC + 24, MACC + 32
        for uu in range(2):
            for pl in range(2):
                e.ds_read(4, QEG + 8 * uu + 4 * pl, MEGR, uu * 1024 + pl * 512)
        for f in ef_read_ops(e, MEFR, QEF):
            f()
        for c in range(2):
            for f in produce_ops(e, slow, MEFR, MJW[c], QEG, QEF, QWK, QPK, 2):
                f()
        e.salu(f"s_mov_b32 {S_CNT}, 8")
        e.salu(f"s_mov_b32 {S_OS}, 0x7ff00000")
        e.salu(f"s_setprio {X_PRIO}")
        e.barrier()
        for i in range(JD):
            jread(i)()
        e.wait_all_lds()
        loop_fence(e)
        if STAMPS:
            e.salu("s_mov_b32 s101, 0")
        e.label(f"L_h_loop{tag}")
        stamp.loop_top()
        chunk_body(slow)
        stamp.loop_pre_barrier()
        e.salu(f"s_cmp_eq_u32 {S_CNT}, 8")
        e.salu(f"s_cselect_b32 {S_OS}, {S_OBASE}, {S_OS}")
        e.salu(f"s_sub_u32 {S_CNT}, {S_CNT}, 1")
        e.salu(f"s_cmp_lg_u32 {S_CNT}, 0")
        e.barrier()
        e.salu(f"s_cbranch_scc1 L_h_loop{tag}")
        if not slow:
            stamp()
        for f in epi_ops() + readback_store_ops(e, MOR, MOS, MOUT + 16):
            f()

    out_stage(False, "")
    if STAMPS:
        e.wait_all_vm()
    stamp()
    stamp.dump(True)
    if X_DIAG:
        e.wait_all_vm()
        e.salu("s_memrealtime s[98:99]")
        e.salu("s_waitcnt lgkmcnt(0)")
        e.salu("s_sub_u32 s99, s98, s96")
        e.salu("s_and_b32 s97, s2, 63")
        e.salu(f"s_or_b32 s97, s97, {S_W}")
        e.salu("s_cmp_lg_u32 s97, 0")
        e.salu("s_cbranch_scc1 L_end")
        e.salu("s_lshr_b32 s97, s2, 6")
        e.salu("s_lshl_b32 s97, s97, 3")
        v(f"v_mov_b32 {rn(t0)}, 0", [t0], [])
        v(f"v_mov_b32 {rn(t2)}, s96", [t2], [])
        v(f"v_mov_b32 {rn(t3)}, s99", [t3], [])
        e.salu("s_mov_b64 exec, 1")
        e.raw(f"    buffer_store_dwordx2 {rn(t2, 2)}, {rn(t0)}, s[{SDBG}:{SDBG + 3}], s97 offen offset:32")
    e.salu("s_endpgm")

    e.label("L_h_slow")
    (e.pend, e.lseq, e.vseq, e.ldone, e.vdone) = snap
    e.wr.clear(); e.stw.clear(); e.sgpr_valu.clear()
    e.nop(8)
    e.barrier()
    for mt in range(2):
        e.ds_write(4, HVEGW, GKEEP + 4 * mt, 64 * mt)
    e.barrier()
    out_stage(True, "s")
    e.label("L_end")
    e.salu("s_endpgm")


def split_slow(text, label):
    i = text.index(label + ":")
    return text[:i], text[i:]


def generate():
    e0 = Emitter()
    common_prologue(e0)
    ec = Emitter()
    gen_compute(ec)
    eh = Emitter()
    gen_helper(eh)
    cf, cs = split_slow(ec.text(), "L_c_slow")
    hf, hs = split_slow(eh.text(), "L_h_slow")
    h1, h2 = split_slow(hf, "L_h_setup2")
    return e0.text() + h1 + "    s_branch L_h_setup2\n" + cf + h2 + cs + hs, ec, eh


HEADER = f"""; Fused conv stem (2x stride-2 conv1d + gelu) + RNN-T joint network, one workgroup per 32 output frames.
; @launch grid=({NGRID},1,1) block=(512,1,1) lds={LDS_BYTES}
.amdgcn_target "amdgcn-amd-amdhsa--gfx950"
.text
.globl {NAME}_kernel
.p2align 8
.type {NAME}_kernel,@function
{NAME}_kernel:
"""

FOOTER = f""".section .rodata,"a"
.p2align 6
.amdhsa_kernel {NAME}_kernel
  .amdhsa_next_free_vgpr 256
  .amdhsa_next_free_sgpr 102
  .amdhsa_accum_offset {ACCOFF}
  .amdhsa_group_segment_fixed_size 0
  .amdhsa_kernarg_size 80
  .amdhsa_user_sgpr_count 2
  .amdhsa_user_sgpr_kernarg_segment_ptr 1
  .amdhsa_system_sgpr_workgroup_id_x 1
.end_amdhsa_kernel
"""

if __name__ == "__main__":
    STAMPS = "--stamps" in sys.argv
    if "--out" in sys.argv:
        STAMPMODE = "out"
    if "--h" in sys.argv:
        STAMPMODE = "h"
    if "--bar" in sys.argv:
        STAMPMODE = "bar"
    args = [a for a in sys.argv[1:] if not a.startswith("--")]
    text, ec, eh = generate()
    path = args[0] if args else f"cdna_kernels/{NAME}.s"
    open(path, "w").write(HEADER + text + FOOTER)
    cnt = lambda e: sum(1 for l in e.out if l.startswith("    ") and not l.strip().startswith(";"))
    print("instructions C:", cnt(ec), "H:", cnt(eh))
```

```python
import copy
import struct
import sys

from emit import Emitter, rn, rng

NAME = "standalone__seq2seq_rnn_t_joint__speech"
NWG = 250
NGRID = 252
STAMPS = False
STAMPMODE = "front"
import os
X_NOSTORE = "X_NOSTORE" in os.environ
X_NOMPROD = "X_NOMPROD" in os.environ
X_NOPPROD = "X_NOPPROD" in os.environ
X_PRIO = os.environ.get("X_PRIO", "1")
X_NOH = os.environ.get("X_NOH", "")
X_SLACK = int(os.environ.get("X_SLACK", "2"))
X_NOROT = "X_NOROT" in os.environ
X_LAT = float(os.environ.get("X_LAT", "900"))
X_C1 = os.environ.get("X_C1", "")
X_NOPUB = "X_NOPUB" in os.environ
WS_OFF = 1 << 20
WO_SPLIT = [int(x) for x in os.environ.get("WO_SPLIT", os.environ.get("WO_EARLY", "12") + "," + os.environ.get("WO_EARLY", "12")).split(",")]
WO_NFL = int(os.environ.get("WO_NFL", "4"))
WO_B5 = int(os.environ.get("WO_B5", "7"))
X_NOLOOPST = "X_NOLOOPST" in os.environ
X_NOEPI = "X_NOEPI" in os.environ
JD = int(os.environ.get("JD", "3"))
X_FOLD = "X_FOLD" in os.environ
PROWS = int(os.environ.get("PROWS", "4"))
ST0 = int(os.environ.get("ST0", "14"))
STD = int(os.environ.get("STD", "4"))
AHEAD = int(os.environ.get("AHEAD", "1"))
PUMP_EVERY = int(os.environ.get("PUMP_EVERY", "14"))
WO_LATE = int(os.environ.get("WO_LATE", "16"))
X_RT = "X_RT" in os.environ
X_DIAG = "X_DIAG" in os.environ
ST_FLAGS = os.environ.get("ST_FLAGS", "sc0 sc1 nt")
XALL = int(os.environ.get("XALL", "0"))
XJIT = "XJIT" in os.environ
TOUCH_LATE = "TOUCH_LATE" in os.environ
C_INIT = int(os.environ.get("C_INIT", "2"))
H_PRIO = int(os.environ.get("H_PRIO", "0"))
WO_EARLY = int(os.environ.get("WO_EARLY", "12"))
NTOUCH = int(os.environ.get("NTOUCH", "1"))
TOUCH_MODE = int(os.environ.get("TOUCH_MODE", "2"))
B4_AT = int(os.environ.get("B4_AT", "26"))

XSL = 17408
ZROW = 3 * XSL + 131 * 128
RING = 69632
EG = 135168
FLAG = 143360
J2 = 143392
DUMMY = 160768
LDS_BYTES = 161792
HROW = 528
HEVEN = 37
FB = 36864
EFROW = 1040
JB = [33280, 50176, J2]
OROW = 144
TBSZ = 32 * OROW

SX, SW1, SW2, SG, SWF, SWG, SWO, SOUT = 8, 12, 16, 20, 24, 28, 32, 36
S_W, S_RING, S_SOFF, S_B, S_T0, S_D, S_OS, S_OBASE, S_FLAG, S_T1, S_T2, S_LIM, S_CNT, S_W128 = \
    "s56", "s57", "s58", "s59", "s60", "s61", "s62", "s63", "s64", "s65", "s66", "s67", "s68", "s69"

ACCOFF = 160
A0 = 256

VL = 1
T = list(range(2, 10))
VW0, VW1 = 10, 11
VTR = [14, 15]
VXB = [[18 + 4 * t + k for k in range(4)] for t in range(3)]
VXH = [[30 + 4 * t + k for k in range(4)] for t in range(3)]
VHW, VHH, VHR, VFW, VEFW, VC1, VMAX, VOS, VEFR, VEGR, VEGW, VGR = range(42, 54)
VC1P = 54
ACC = 56
HACC = 120
TMP = 128
KEEPA = TMP
FBUF = A0
VS = 8
BFR = A0 + 64
KEEPB = A0 + 88
RS = 8
PEG = ACC
PEF = ACC + 32
PWK = ACC + 40
PPK = ACC + 48
PRB = ACC + 52
PJW = [18, 19, 20]
POR = [21, 22, 23]
VWO0, VWO1 = 12, 13
VTRO = [16, 17]
HVX = [18, 19, 20, 21, 22]
HVP, HVMAX, HC, MEFR, MEGR, MOR, MOS = range(23, 30)
MJR = [30, 31]
MJW = [33, 34, 35]
MOW = 36
MACC = 40
MPO = 72
MOUT = 72
MEG = 104
MEF = 112
MWK = 10
MPK = 22
MBF = [120, 124, 18, 4]
WO_DEST = [A0 + 8 * i for i in range(12)] + [128 + 8 * i for i in range(4)]
HRS = 2

LOG2E = 1.4426950408889634
GC0 = -2.0 * 0.7978845608028654 * LOG2E
GC1 = GC0 * 0.044715
TSC = 2.0 * LOG2E


def f32(x):
    return "0x%08x" % struct.unpack("<I", struct.pack("<f", x))[0]


class Stream:
    LAT = X_LAT
    RATE = 140.0

    def __init__(self, e, rs, vs, fbuf):
        self.e = e
        self.rs, self.vs, self.fbuf = rs, vs, fbuf
        self.units = []
        self.du = self.tu = self.cu = 0
        self.dseq, self.tseq, self.arr = {}, {}, {}
        self.last_arr = 0.0
        self.tr_limit = 10 ** 9
        self.slot_of = {}
        self.free = [fbuf + 8 * i for i in range(vs)]
        self.released = 0

    def add_slots(self, regs):
        self.free += regs

    def _release(self):
        while self.released < self.cu:
            d = self.slot_of[self.released]
            if d not in self.retired:
                self.free.append(d)
            self.released += 1

    retired = set()

    def add(self, srd, soff, wo_idx=None):
        self.units.append((srd, soff, wo_idx))

    def dest(self, u):
        return self.slot_of[u]

    def can_dma(self):
        u = self.du
        slack = X_SLACK if self.rs > 2 else 1
        return u < len(self.units) and (u < self.rs or u - self.rs <= self.tu - slack)

    def do_dma(self):
        e, u = self.e, self.du
        srd, soff, wo = self.units[u]
        if u >= self.rs:
            e.wait(lseq=self.tseq[u - self.rs])
        e.salu(f"s_add_u32 m0, {S_RING}, {(u % self.rs) * 2048}", m0=True)
        if isinstance(soff, tuple):
            e.salu(f"s_add_u32 {S_SOFF}, {soff[0]}, {soff[1]}")
        else:
            e.salu(f"s_mov_b32 {S_SOFF}, {soff}")
        if "nodma" in X_C1 and 12 <= u < 48:
            self.dseq[u] = 0
        else:
            e.dma(VWO0 if wo is not None else VW0, srd, S_SOFF)
            self.dseq[u] = e.dma(VWO1 if wo is not None else VW1, srd, S_SOFF, off=1024)
        self.last_arr = max(e.t + self.LAT, self.last_arr + self.RATE)
        self.arr[u] = self.last_arr
        self.du += 1

    def _dest_free(self, u):
        self._release()
        return len(self.free) > 0

    def can_tr(self, timed=True):
        u = self.tu
        if u >= self.du or u >= self.tr_limit or not self._dest_free(u):
            return False
        return (not timed) or self.arr[u] <= self.e.t

    def do_tr(self):
        e, u = self.e, self.tu
        wo = self.units[u][2]
        e.wait(vseq=self.dseq[u])
        e.t = max(e.t, self.arr[u])
        self._release()
        d = self.slot_of[u] = self.free.pop(0)
        va = VTRO if wo is not None else VTR
        for mt in range(2):
            for jj in range(2):
                self.tseq[u] = e.ds_read(2, d + 4 * mt + 2 * jj, va[mt], (u % self.rs) * 2048 + jj * 512, tr=True)
        self.tu += 1

    def pump(self, max_ops=2):
        n = 0
        while n < max_ops:
            if self.can_tr():
                self.do_tr()
            elif self.can_dma():
                self.do_dma()
            else:
                break
            n += 1

    def ensure(self, u):
        while self.tu <= u:
            while self.du <= self.tu:
                assert self.can_dma()
                self.do_dma()
            assert self.can_tr(timed=False), (u, self.tu, self.cu)
            self.do_tr()

    def state(self):
        return (self.du, self.tu, self.cu, dict(self.dseq), dict(self.tseq), dict(self.arr), self.last_arr, self.tr_limit)

    def restore(self, s):
        (self.du, self.tu, self.cu, self.dseq, self.tseq, self.arr, self.last_arr, self.tr_limit) = \
            (s[0], s[1], s[2], dict(s[3]), dict(s[4]), dict(s[5]), s[6], s[7])


def interleave(mains, fillers):
    n = len(mains)
    k = 0
    for i, m in enumerate(mains):
        m()
        upto = (len(fillers) * (i + 1) + n - 1) // n
        while k < upto:
            fillers[k]()
            k += 1


def merge(a, b):
    out = []
    ia = ib = 0
    na, nb = len(a), len(b)
    while ia < na or ib < nb:
        if ib >= nb or (ia < na and ia * max(nb, 1) <= ib * max(na, 1)):
            out.append(a[ia]); ia += 1
        else:
            out.append(b[ib]); ib += 1
    return out


class Stamper:
    def __init__(self, e):
        self.e, self.n = e, 0

    def __call__(self, tag="front"):
        if not STAMPS or (tag != STAMPMODE and self.n > 0) or self.n >= 14:
            return
        e = self.e
        e.wait_all_lds()
        e.salu(f"{'s_memrealtime' if X_RT else 's_memtime'} s[{70 + 2 * self.n}:{71 + 2 * self.n}]")
        e.salu("s_waitcnt lgkmcnt(0)")
        self.n += 1

    def loop_top(self):
        if not STAMPS or X_NOLOOPST:
            return
        e = self.e
        e.salu("s_memtime s[98:99]")
        e.salu("s_waitcnt lgkmcnt(0)")
        e.salu("s_mov_b32 s100, s98")

    def loop_pre_barrier(self):
        if not STAMPS or X_NOLOOPST:
            return
        e = self.e
        e.wait_all_lds()
        e.salu("s_memtime s[98:99]")
        e.salu("s_waitcnt lgkmcnt(0)")
        e.salu("s_sub_u32 s98, s98, s100")
        e.salu("s_add_u32 s101, s101, s98")

    def dump(self, helper):
        if not STAMPS:
            return
        e = self.e
        e.salu("s_load_dwordx2 s[40:41], s[0:1], 72")
        e.salu("s_waitcnt lgkmcnt(0)")
        e.salu("s_and_b32 s41, s41, 0xffff")
        e.salu("s_mov_b32 s42, 131072")
        e.salu("s_mov_b32 s43, 0x20000")
        e.salu(f"s_lshl_b32 {S_T1}, s2, 3")
        e.salu(f"s_add_u32 {S_T1}, {S_T1}, {S_W}")
        if helper:
            e.salu(f"s_add_u32 {S_T1}, {S_T1}, 4")
        e.salu(f"s_lshl_b32 {S_T1}, {S_T1}, 6")
        e.valu(f"v_mov_b32 {rn(T[1])}, 0", [T[1]], [])
        for i in range(16):
            if i == 15:
                e.salu("s_add_u32 s101, s101, s70")
                e.valu(f"v_mov_b32 {rn(T[0])}, s101", [T[0]], [])
            else:
                e.valu(f"v_mov_b32 {rn(T[0])}, s{70 + 2 * min(i, self.n - 1)}", [T[0]], [])
            e.bstore(1, T[0], T[1], 40, S_T1, off=4 * i)


def V(e):
    return lambda text, w=(), r=(), **kw: e.valu(text, w, r, **kw)


def common_prologue(e):
    v = V(e)
    if X_DIAG:
        e.salu("s_memrealtime s[96:97]")
    e.salu(f"s_cmp_ge_u32 s2, {NGRID}")
    e.salu("s_cbranch_scc1 L_end")
    e.salu("s_load_dwordx16 s[40:55], s[0:1], 0")
    v(f"v_and_b32 {rn(VL)}, 63, v0", [VL], [0])
    v(f"v_lshrrev_b32 {rn(T[0])}, 6, v0", [T[0]], [0])
    e.rfl(S_CNT, T[0])
    e.salu(f"s_and_b32 {S_W}, {S_CNT}, 3")
    e.salu(f"s_lshl_b32 {S_W128}, {S_W}, 7")
    e.salu(f"s_lshl_b32 {S_OBASE}, s2, 17")
    t0, t1, t2 = T[:3]
    L = rn(VL)
    v(f"v_lshrrev_b32 {rn(t0)}, 3, {L}", [t0], [VL])
    v(f"v_lshlrev_b32 {rn(t0)}, 9, {rn(t0)}", [t0], [t0])
    v(f"v_add_u32 {rn(t0)}, {S_W128}, {rn(t0)}", [t0], [t0])
    v(f"v_and_b32 {rn(t1)}, 7, {L}", [t1], [VL])
    v(f"v_lshrrev_b32 {rn(t2)}, 2, {L}", [t2], [VL])
    v(f"v_and_b32 {rn(t2)}, 4, {rn(t2)}", [t2], [t2])
    v(f"v_xor_b32 {rn(t2)}, {rn(t1)}, {rn(t2)}", [t2], [t1, t2])
    v(f"v_lshl_add_u32 {rn(VW0)}, {rn(t2)}, 4, {rn(t0)}", [VW0], [t2, t0], vop3=True)
    v(f"v_add_u32 {rn(VW1)}, 3072, {rn(VW0)}", [VW1], [VW0])
    sizes = [16384000, 393216, 393216, 8192, 131072, 131072, 131072, 32768000]
    for i, srd in enumerate([SX, SW1, SW2, SG, SWF, SWG, SWO, SOUT]):
        e.salu(f"s_mov_b32 s{srd + 2}, {sizes[i]}")
        e.salu(f"s_mov_b32 s{srd + 3}, 0x20000")
    e.salu("s_waitcnt lgkmcnt(0)")
    for i, srd in enumerate([SX, SW1, SW2, SG, SWF, SWG, SWO, SOUT]):
        e.salu(f"s_mov_b32 s{srd}, s{40 + 2 * i}")
        e.salu(f"s_and_b32 s{srd + 1}, s{41 + 2 * i}, 0xffff")
    e.salu(f"s_mov_b32 s4, {f32(GC0)}")
    e.salu(f"s_mov_b32 s5, {f32(GC0)}")
    e.salu("s_lshr_b32 s48, s2, 3")
    for i in range(4):
        e.salu(f"s_add_u32 s{44 + i}, {0 if X_NOROT else 's48'}, {i}")
        e.salu(f"s_and_b32 s{44 + i}, s{44 + i}, 3")
        e.salu(f"s_lshl_b32 s{44 + i}, s{44 + i}, 7")
    e.salu(f"s_cmp_lt_u32 {S_CNT}, 4")
    e.salu("s_cbranch_scc1 L_compute")


def perm_q(e, dst, q, ta, tb):
    v = V(e)
    v(f"v_and_b32 {rn(ta)}, 1, {rn(q)}", [ta], [q])
    v(f"v_bfe_u32 {rn(tb)}, {rn(q)}, 1, 1", [tb], [q], vop3=True)
    v(f"v_lshl_or_b32 {rn(ta)}, {rn(ta)}, 1, {rn(tb)}", [ta], [ta, tb], vop3=True)
    v(f"v_and_or_b32 {rn(dst)}, {rn(q)}, 4, {rn(ta)}", [dst], [q, ta], vop3=True)


def tr_consts(e, wo):
    v = V(e)
    t0, t1, t2, t3, t4, t5, t6, t7 = T
    L = rn(VL)
    v(f"v_lshrrev_b32 {rn(t0)}, 4, {L}", [t0], [VL])
    v(f"v_bfe_u32 {rn(t1)}, {L}, 2, 2", [t1], [VL], vop3=True)
    v(f"v_and_b32 {rn(t2)}, 3, {L}", [t2], [VL])
    v(f"v_and_b32 {rn(t3)}, 1, {rn(t0)}", [t3], [t0])
    v(f"v_lshl_or_b32 {rn(t2)}, {rn(t3)}, 2, {rn(t2)}", [t2], [t3, t2], vop3=True)
    v(f"v_lshrrev_b32 {rn(t3)}, 1, {rn(t0)}", [t3], [t0])
    v(f"v_lshlrev_b32 {rn(t3)}, 10, {rn(t3)}", [t3], [t3])
    v(f"v_lshl_add_u32 {rn(t3)}, {rn(t1)}, 7, {rn(t3)}", [t3], [t1, t3], vop3=True)
    v(f"v_add_u32 {rn(t3)}, {S_RING}, {rn(t3)}", [t3], [t3])
    v(f"v_lshrrev_b32 {rn(t1)}, 1, {rn(t1)}", [t1], [t1])
    if not wo:
        perm_q(e, t4, t2, t6, t7)
        v(f"v_lshlrev_b32 {rn(t4)}, 3, {rn(t4)}", [t4], [t4])
        v(f"v_lshl_or_b32 {rn(t4)}, {rn(t1)}, 6, {rn(t4)}", [t4], [t1, t4], vop3=True)
        v(f"v_add_u32 {rn(VTR[0])}, {rn(t3)}, {rn(t4)}", [VTR[0]], [t3, t4])
        v(f"v_xor_b32 {rn(t4)}, 64, {rn(t4)}", [t4], [t4])
        v(f"v_add_u32 {rn(VTR[1])}, {rn(t3)}, {rn(t4)}", [VTR[1]], [t3, t4])
    else:
        v(f"v_and_b32 {rn(t4)}, 1, {rn(t2)}", [t4], [t2])
        v(f"v_lshlrev_b32 {rn(t4)}, 6, {rn(t4)}", [t4], [t4])
        v(f"v_lshrrev_b32 {rn(t5)}, 1, {rn(t2)}", [t5], [t2])
        v(f"v_lshl_or_b32 {rn(t4)}, {rn(t5)}, 3, {rn(t4)}", [t4], [t5, t4], vop3=True)
        v(f"v_lshl_or_b32 {rn(t4)}, {rn(t1)}, 5, {rn(t4)}", [t4], [t1, t4], vop3=True)
        v(f"v_add_u32 {rn(VTRO[0])}, {rn(t3)}, {rn(t4)}", [VTRO[0]], [t3, t4])
        v(f"v_xor_b32 {rn(t4)}, 32, {rn(t4)}", [t4], [t4])
        v(f"v_add_u32 {rn(VTRO[1])}, {rn(t3)}, {rn(t4)}", [VTRO[1]], [t3, t4])


def store_consts(e, vor, vos, ring_sgpr):
    v = V(e)
    t2, t3, t4 = T[2:5]
    L = rn(VL)
    v(f"v_lshrrev_b32 {rn(t2)}, 3, {L}", [t2], [VL])
    v(f"v_and_b32 {rn(t3)}, 7, {L}", [t3], [VL])
    v(f"v_lshlrev_b32 {rn(t3)}, 4, {rn(t3)}", [t3], [t3])
    v(f"v_mul_u32_u24 {rn(t4)}, {OROW}, {rn(t2)}", [t4], [t2])
    v(f"v_add3_u32 {rn(vor)}, {rn(t4)}, {rn(t3)}, {ring_sgpr}", [vor], [t4, t3], vop3=True)
    v(f"v_lshl_add_u32 {rn(t4)}, {rn(t2)}, 9, {rn(t3)}", [t4], [t2, t3], vop3=True)
    v(f"v_add_u32 {rn(vos)}, {S_W128}, {rn(t4)}", [vos], [t4])


def prod_consts(e, vefr, vegr, vjw, uu0):
    v = V(e)
    t0, t1, t2, t3 = T[:4]
    L = rn(VL)
    v(f"v_and_b32 {rn(t0)}, 31, {L}", [t0], [VL])
    v(f"v_lshrrev_b32 {rn(t1)}, 5, {L}", [t1], [VL])
    e.salu(f"s_mul_i32 {S_T1}, {S_W}, {EFROW}")
    v(f"v_lshlrev_b32 {rn(t2)}, 4, {rn(t0)}", [t2], [t0])
    v(f"v_add_u32 {rn(vefr)}, {S_T1}, {rn(t2)}", [vefr], [t2])
    v(f"v_lshl_add_u32 {rn(t3)}, {rn(t1)}, 12, {rn(t2)}", [t3], [t1, t2], vop3=True)
    v(f"v_add_u32 {rn(vegr)}, {EG + uu0 * 1024}, {rn(t3)}", [vegr], [t3])
    e.salu(f"s_mul_i32 {S_T1}, {S_W}, {8 * HROW}")
    v(f"v_mul_u32_u24 {rn(t3)}, {4 * HROW}, {rn(t1)}", [t3], [t1])
    v(f"v_add3_u32 {rn(t3)}, {rn(t3)}, {rn(t2)}, {S_T1}", [t3], [t3, t2], vop3=True)
    for i in range(3):
        v(f"v_add_u32 {rn(vjw[i])}, {JB[i] + uu0 * HROW}, {rn(t3)}", [vjw[i]], [t3])


def c_consts_ge(e):
    v = V(e)
    t0, t1, t2, t3, t4, t5, t6, t7 = T
    L = rn(VL)
    v(f"v_and_b32 {rn(t0)}, 15, {L}", [t0], [VL])
    v(f"v_lshrrev_b32 {rn(t1)}, 4, {L}", [t1], [VL])
    v(f"v_and_b32 {rn(t2)}, 1, {rn(t0)}", [t2], [t0])
    v(f"v_lshl_or_b32 {rn(t2)}, {rn(t2)}, 2, {rn(t1)}", [t2], [t2, t1], vop3=True)
    perm_q(e, t4, t2, t6, t7)
    v(f"v_lshlrev_b32 {rn(t3)}, 3, {rn(t4)}", [t3], [t4])
    v(f"v_add_u32 {rn(t3)}, {S_W128}, {rn(t3)}", [t3], [t3])
    v(f"v_mov_b32 {rn(t5)}, {DUMMY}", [t5], [])
    v(f"v_cmp_gt_u32 vcc, 2, {rn(t0)}", [], [t0], sw=["vcc"])
    v(f"v_cndmask_b32 {rn(VHH)}, {rn(t5)}, {rn(t3)}, vcc", [VHH], [t5, t3], sr=["vcc"])
    v(f"v_mov_b32 {rn(VMAX)}, 0", [VMAX], [])
    e.salu(f"s_lshl_b32 {S_T1}, {S_W}, 13")
    e.salu(f"s_add_u32 {S_T1}, {S_T1}, {FB}")
    v(f"v_lshlrev_b32 {rn(t3)}, 4, {L}", [t3], [VL])
    v(f"v_add_u32 {rn(VGR)}, {S_T1}, {rn(t3)}", [VGR], [t3])
    e.salu(f"s_lshl_b32 {S_T1}, {S_W}, 12")
    e.salu(f"s_add_u32 {S_T1}, {S_T1}, {J2}")
    v(f"v_add_u32 {rn(VEGW)}, {S_T1}, {rn(t3)}", [VEGW], [t3])


def c_consts_ops(e):
    v = V(e)
    t0, t1, t2, t3, t4, t5, t6, t7 = T
    L = rn(VL)
    ops = []
    a = lambda *args, **kw: ops.append(lambda: v(*args, **kw))
    a(f"v_and_b32 {rn(t0)}, 31, {L}", [t0], [VL])
    a(f"v_lshrrev_b32 {rn(t1)}, 5, {L}", [t1], [VL])
    for tap, r0 in enumerate((66, 1, 67)):
        a(f"v_add_u32 {rn(t4)}, {r0}, {rn(t0)}", [t4], [t0])
        a(f"v_bfe_u32 {rn(t5)}, {rn(t4)}, 1, 3", [t5], [t4], vop3=True)
        a(f"v_xor_b32 {rn(t5)}, {rn(t1)}, {rn(t5)}", [t5], [t1, t5])
        a(f"v_lshlrev_b32 {rn(t4)}, 7, {rn(t4)}", [t4], [t4])
        a(f"v_lshl_add_u32 {rn(VXB[tap][0])}, {rn(t5)}, 4, {rn(t4)}", [VXB[tap][0]], [t5, t4], vop3=True)
        for k in range(1, 4):
            a(f"v_xor_b32 {rn(VXB[tap][k])}, {32 * k}, {rn(VXB[tap][0])}", [VXB[tap][k]], [VXB[tap][0]])
    a(f"v_mul_u32_u24 {rn(t2)}, {HROW}, {rn(t0)}", [t2], [t0])
    a(f"v_lshl_add_u32 {rn(VHR)}, {rn(t1)}, 4, {rn(t2)}", [VHR], [t1, t2], vop3=True)
    a(f"v_add_u32 {rn(VFW)}, {S_W128}, {rn(VHR)}", [VFW], [VHR])
    a(f"v_and_b32 {rn(t2)}, 1, {rn(t0)}", [t2], [t0])
    a(f"v_cmp_eq_u32 vcc, 1, {rn(t2)}", [], [t2], sw=["vcc"])
    a(f"v_mov_b32 {rn(t3)}, 1", [t3], [])
    a(f"v_cndmask_b32 {rn(t3)}, {HEVEN}, {rn(t3)}, vcc", [t3], [t3], sr=["vcc"])
    a(f"v_lshrrev_b32 {rn(t2)}, 1, {rn(t0)}", [t2], [t0])
    a(f"v_add_u32 {rn(t2)}, {rn(t2)}, {rn(t3)}", [t2], [t2, t3])
    a(f"v_mul_u32_u24 {rn(t2)}, {HROW}, {rn(t2)}", [t2], [t2])
    a(f"v_lshl_add_u32 {rn(t2)}, {rn(t1)}, 4, {rn(t2)}", [t2], [t1, t2], vop3=True)
    a(f"v_add_u32 {rn(VHW)}, {S_W128}, {rn(t2)}", [VHW], [t2])
    a(f"v_mul_u32_u24 {rn(t2)}, {EFROW}, {rn(t0)}", [t2], [t0])
    a(f"v_lshl_add_u32 {rn(t2)}, {rn(t1)}, 4, {rn(t2)}", [t2], [t1, t2], vop3=True)
    a(f"v_add_u32 {rn(VEFW)}, {S_W128}, {rn(t2)}", [VEFW], [t2])
    a(f"v_and_b32 {rn(t6)}, 15, {L}", [t6], [VL])
    a(f"v_lshrrev_b32 {rn(t7)}, 4, {L}", [t7], [VL])
    a(f"v_and_b32 {rn(t2)}, 1, {rn(t7)}", [t2], [t7])
    a(f"v_lshrrev_b32 {rn(t3)}, 1, {rn(t7)}", [t3], [t7])
    a(f"v_mov_b32 {rn(VC1)}, 133", [VC1], [])
    a(f"v_cmp_eq_u32 vcc, {rn(t6)}, {rn(t2)}", [], [t6, t2], sw=["vcc"])
    for tap, rh in enumerate((65, 0, 66)):
        a(f"v_mov_b32 {rn(t5)}, {rh}", [t5], [])
        a(f"v_cndmask_b32 {rn(t4)}, {rn(VC1)}, {rn(t5)}, vcc", [t4], [VC1, t5], sr=["vcc"])
        a(f"v_bfe_u32 {rn(t5)}, {rn(t4)}, 1, 3", [t5], [t4], vop3=True)
        a(f"v_xor_b32 {rn(t5)}, {rn(t3)}, {rn(t5)}", [t5], [t3, t5])
        a(f"v_lshlrev_b32 {rn(t4)}, 7, {rn(t4)}", [t4], [t4])
        a(f"v_lshl_add_u32 {rn(VXH[tap][0])}, {rn(t5)}, 4, {rn(t4)}", [VXH[tap][0]], [t5, t4], vop3=True)
        for k in range(1, 4):
            a(f"v_xor_b32 {rn(VXH[tap][k])}, {32 * k}, {rn(VXH[tap][0])}", [VXH[tap][k]], [VXH[tap][0]])
    a(f"v_mov_b32 {rn(VC1P)}, {f32(GC1)}", [VC1P], [])
    a(f"v_mov_b32 {rn(VC1P + 1)}, {f32(GC1)}", [VC1P + 1], [])
    return ops


def gelu_list(e, regs, packs, tmps, vc1=None):
    v = V(e)
    ops = []
    a = lambda *args, **kw: ops.append(lambda: v(*args, **kw))
    for g0 in range(0, len(regs), 4):
        xs = regs[g0:g0 + 4]
        ts = tmps[:len(xs)]
        prs = [(xs[i], ts[i]) for i in range(0, len(xs), 2)]
        for x, t in prs:
            a(f"v_pk_mul_f32 {rn(t, 2)}, {rn(x, 2)}, {rn(x, 2)}", [t, t + 1], [x, x + 1], vop3=True)
        for x, t in prs:
            a(f"v_pk_fma_f32 {rn(t, 2)}, {rn(t, 2)}, {rn(vc1, 2)}, s[4:5]", [t, t + 1], [t, t + 1, vc1, vc1 + 1], vop3=True)
        for x, t in prs:
            a(f"v_pk_mul_f32 {rn(t, 2)}, {rn(x, 2)}, {rn(t, 2)}", [t, t + 1], [x, x + 1, t, t + 1], vop3=True)
        for t in ts:
            a(f"v_exp_f32 {rn(t)}, {rn(t)}", [t], [t], trans=True)
        for x, t in prs:
            a(f"v_pk_add_f32 {rn(t, 2)}, {rn(t, 2)}, 1.0 op_sel_hi:[1,0]", [t, t + 1], [t, t + 1], vop3=True)
        for t in ts:
            a(f"v_rcp_f32 {rn(t)}, {rn(t)}", [t], [t], trans=True)
        for x, t in prs:
            a(f"v_pk_mul_f32 {rn(x, 2)}, {rn(x, 2)}, {rn(t, 2)}", [x, x + 1], [x, x + 1, t, t + 1], vop3=True)
        for i in range(0, len(xs), 2):
            p = packs[(g0 + i) // 2]
            a(f"v_cvt_pk_bf16_f32 {rn(p)}, {rn(xs[i])}, {rn(xs[i + 1])}", [p], [xs[i], xs[i + 1]], vop3=True)
    return ops


def run_with_pump(ops, pump, every=30):
    for i, f in enumerate(ops):
        f()
        if i % every == every - 1:
            pump()


def exp_stage(e, src, keep, dst, n, vmax, pump=None):
    v = V(e)
    for i in range(n):
        v(f"v_mul_f32 {rn(keep + i)}, {f32(TSC)}, {rn(src + i)}", [keep + i], [src + i], vop3=True)
    for i in range(n):
        v(f"v_exp_f32 {rn(dst + i)}, {rn(keep + i)}", [dst + i], [keep + i], trans=True)
        if i % 2 == 1:
            v(f"v_max3_f32 {rn(vmax)}, |{rn(keep + i - 1)}|, |{rn(keep + i)}|, {rn(vmax)}",
              [vmax], [keep + i - 1, keep + i, vmax], vop3=True)
        if pump and i % 8 == 7:
            pump()


def publish_flag(e, vmax, slot_extra):
    e.salu(f"s_mov_b32 {S_LIM}, {f32(125.0)}")
    e.valu(f"v_cmp_lt_f32 vcc, {S_LIM}, {rn(vmax)}", [], [vmax], sw=["vcc"])
    e.nop(2)
    e.salu("s_cmp_lg_u64 vcc, 0")
    e.salu(f"s_cselect_b32 {S_FLAG}, 1, 0")
    e.salu(f"s_lshl_b32 {S_T1}, {S_W}, 2")
    e.salu(f"s_add_u32 {S_T1}, {S_T1}, {FLAG + slot_extra}")
    e.valu(f"v_mov_b32 {rn(T[0])}, {S_FLAG}", [T[0]], [])
    e.valu(f"v_mov_b32 {rn(T[1])}, {S_T1}", [T[1]], [])
    e.ds_write(1, T[1], T[0])


def flag_check(e, label):
    v = V(e)
    v(f"v_mov_b32 {rn(T[1])}, {FLAG}", [T[1]], [])
    e.ds_read(4, T[2], T[1])
    v(f"v_or3_b32 {rn(T[0])}, {rn(T[2])}, {rn(T[3])}, {rn(T[4])}", [T[0]], [T[2], T[3], T[4]], vop3=True)
    v(f"v_or_b32 {rn(T[0])}, {rn(T[0])}, {rn(T[5])}", [T[0]], [T[0], T[5]])
    e.ds_read(4, T[2], T[1], 16)
    v(f"v_or3_b32 {rn(T[0])}, {rn(T[2])}, {rn(T[3])}, {rn(T[0])}", [T[0]], [T[2], T[3], T[0]], vop3=True)
    v(f"v_or3_b32 {rn(T[0])}, {rn(T[4])}, {rn(T[5])}, {rn(T[0])}", [T[0]], [T[4], T[5], T[0]], vop3=True)
    e.rfl(S_FLAG, T[0])
    e.salu(f"s_cmp_lg_u32 {S_FLAG}, 0")
    e.salu(f"s_cbranch_scc1 {label}")


def ef_read_ops(e, vefr, EF):
    return [lambda: e.ds_read(4, EF, vefr, 0),
            lambda: e.ds_read(4, EF + 4, vefr, 512),
            lambda: e.valu(f"v_add_u32 {rn(vefr)}, {4 * EFROW}, {rn(vefr)}", [vefr], [vefr])]


def produce_ops(e, slow, vefr, vjw, EGb, EF, WK, PK, nrows):
    v = V(e)
    ops = []
    for uu in range(nrows):
        for h in range(2):
            els = range(4 * h, 4 * h + 4)
            for i in els:
                if slow:
                    ops.append(lambda i=i, uu=uu: v(
                        f"v_add_f32 {rn(WK + i)}, {rn(EF + i)}, {rn(EGb + 8 * uu + i)}",
                        [WK + i], [EF + i, EGb + 8 * uu + i]))
                else:
                    ops.append(lambda i=i, uu=uu: v(
                        f"v_fma_f32 {rn(WK + i)}, {rn(EF + i)}, {rn(EGb + 8 * uu + i)}, -0.5",
                        [WK + i], [EF + i, EGb + 8 * uu + i], vop3=True))
        if uu == nrows - 1:
            ops += ef_read_ops(e, vefr, EF)
        for h in range(2):
            els = range(4 * h, 4 * h + 4)
            if slow:
                for i in els:
                    ops.append(lambda i=i: v(f"v_exp_f32 {rn(WK + i)}, {rn(WK + i)}", [WK + i], [WK + i], trans=True))
                for i in els:
                    ops.append(lambda i=i: v(f"v_add_f32 {rn(WK + i)}, 1.0, {rn(WK + i)}", [WK + i], [WK + i]))
            for i in els:
                ops.append(lambda i=i: v(f"v_rcp_f32 {rn(WK + i)}, {rn(WK + i)}", [WK + i], [WK + i], trans=True))
            for i in (els if not X_FOLD else ()):
                if slow:
                    ops.append(lambda i=i: v(f"v_fma_f32 {rn(WK + i)}, {rn(WK + i)}, -2.0, 1.0",
                                             [WK + i], [WK + i], vop3=True))
                else:
                    ops.append(lambda i=i: v(f"v_add_f32 {rn(WK + i)}, 1.0, {rn(WK + i)}", [WK + i], [WK + i]))
            for i in (4 * h, 4 * h + 2):
                ops.append(lambda i=i: v(
                    f"v_cvt_pk_bf16_f32 {rn(PK + i // 2)}, {rn(WK + i)}, {rn(WK + i + 1)}",
                    [PK + i // 2], [WK + i, WK + i + 1], vop3=True))
        ops.append(lambda uu=uu: e.ds_write(4, vjw, PK, uu * HROW))
    return ops


SJ = ["s49", "s50", "s51"]
STB = ["s45", "s46", "s47"]


def init_steps(e):
    for i in range(3):
        e.salu(f"s_mov_b32 {SJ[i]}, {(JB[(i + 1) % 3] - JB[i]) & 0xffffffff}")


def rot_steps(e):
    def f():
        for r in (SJ,):
            e.salu(f"s_mov_b32 {S_T2}, {r[0]}")
            e.salu(f"s_mov_b32 {r[0]}, {r[1]}")
            e.salu(f"s_mov_b32 {r[1]}, {r[2]}")
            e.salu(f"s_mov_b32 {r[2]}, {S_T2}")
    return [f]


def step(e, reg, sgpr):
    return lambda: e.valu(f"v_add_u32 {rn(reg)}, {sgpr}, {rn(reg)}", [reg], [reg])


def rotate3(e, regs, tmp):
    v = V(e)
    return [lambda: v(f"v_mov_b32 {rn(tmp)}, {rn(regs[0])}", [tmp], [regs[0]]),
            lambda: v(f"v_mov_b32 {rn(regs[0])}, {rn(regs[1])}", [regs[0]], [regs[1]]),
            lambda: v(f"v_mov_b32 {rn(regs[1])}, {rn(regs[2])}", [regs[1]], [regs[2]]),
            lambda: v(f"v_mov_b32 {rn(regs[2])}, {rn(tmp)}", [regs[2]], [tmp])]


def readback_store_ops(e, vor, vos, regs):
    ops = []
    for i in range(4):
        ops.append(lambda i=i: e.ds_read(4, regs + 4 * i, vor, i * 8 * OROW))
    for i in range(4):
        def st(i=i):
            e.bstore(4, regs + 4 * i, vos, SOUT, S_OS, flags=ST_FLAGS)
            e.salu(f"s_add_u32 {S_OS}, {S_OS}, 4096")
        ops.append(st)
    return ops


def loop_fence(e):
    e.pend = {r: p for r, p in e.pend.items() if p[0] == 'v'}
    e.ldone = e.lseq


def gen_compute(e):
    v = V(e)
    stamp = Stamper(e)
    e.label("L_compute")
    e.salu(f"s_cmp_ge_u32 s2, {NWG}")
    e.salu("s_cbranch_scc1 L_end")
    st = Stream(e, RS, VS, FBUF)
    for s in range(4):
        for tap in range(3):
            for k in range(4):
                st.add(SW1, (f"s{44 + s}", tap * 131072 + 16 * k * 512))
    kord = [[4 * w + 2 * half + j for w in range(4) for j in range(2)] for half in range(2)]
    c2 = [(tap, kc) for half in range(2) for tap in range(3) for kc in kord[half]]
    cf = [kc for half in range(2) for kc in kord[half]]
    for tap, kc in c2:
        st.add(SW2, (tap * 16 + kc) * 8192)
    for kc in cf:
        st.add(SWF, kc * 8192)
    U_1, U_2, U_F = 0, 48, 96

    stamp()
    e.salu(f"s_lshl_b32 {S_RING}, {S_W}, 14")
    e.salu(f"s_add_u32 {S_RING}, {S_RING}, {RING}")
    for i in range(4):
        e.salu(f"s_lshl_b32 s{44 + i}, s{44 + i}, 8")
    for _ in range(C_INIT):
        st.do_dma()
    tr_consts(e, False)
    c_consts_ge(e)
    for f in c_consts_ops(e):
        f()
    for _ in range(RS - C_INIT):
        st.do_dma()

    steps = [(s, tap, k) for s in range(4) for tap in range(3) for k in range(4)]

    def b_reads1(i):
        s, tap, k = steps[i]
        base = BFR + 12 * (i % 2)
        return [lambda: e.ds_read(4, base, VXB[tap][k], s * XSL),
                lambda: e.ds_read(4, base + 4, VXB[tap][k], s * XSL + 4096),
                lambda: e.ds_read(4, base + 8, VXH[tap][k], s * XSL)]

    for i, (s, tap, k) in enumerate(steps):
        u = U_1 + i
        if i in (24, 36) and not XJIT:
            stamp()
        if i in ((0, 12, 24, 36) if XJIT else (0, 12)):
            st.ensure(u)
            stamp("bar")
            e.raw("    s_barrier")
            stamp()
            stamp("bar")
            for f in b_reads1(i):
                f()
        st.ensure(u + (1 if "ahead" in X_C1 else 0))
        d = st.dest(u)
        bb = BFR + 12 * (i % 2)
        mains = []
        for nt in range(2):
            for mt in range(2):
                a = ACC + 16 * (2 * mt + nt)
                mains.append(lambda a=a, mt=mt, nt=nt: e.mfma(True, a, d + 4 * mt, bb + 4 * nt, a if i else None))
        for mt in range(2):
            a = HACC + 4 * mt
            mains.append(lambda a=a, mt=mt: e.mfma(False, a, d + 4 * mt, bb + 8, a if i else None))
        br = b_reads1(i + 1) if (i + 1 < 48 and i + 1 not in ((12, 24, 36) if XJIT else (12,))) else []
        mains[0]()
        for f in br:
            f()
        mains[1]()
        st.pump(1)
        mains[2]()
        st.pump(1)
        mains[3]()
        if "nohalo" not in X_C1:
            mains[4]()
            mains[5]()
        st.cu += 1
    stamp()
    e.raw("    s_barrier")
    stamp()
    pump = lambda: st.pump(2)
    gt = rng(TMP + 24, 4)
    late2 = [lambda: prod_consts(e, VEFR, VEGR, PJW, 0), lambda: init_steps(e)]

    def epi1():
        ops = []
        for nt in range(2):
            a = ACC + 16 * nt
            pk = TMP + 8 * nt
            ops += gelu_list(e, rng(a, 16), rng(pk, 8), gt, VC1P)
            for h in range(2):
                ops.append(lambda pk=pk, h=h, nt=nt: e.ds_write(4, VHW, pk + 4 * h, nt * 16 * HROW + 32 * h))
        ops += gelu_list(e, rng(HACC, 8), rng(TMP + 16, 4), gt, VC1P)
        for mt in range(2):
            ops.append(lambda mt=mt: e.ds_write(2, VHH, TMP + 16 + 2 * mt, 64 * mt))
        return ops

    def epi2():
        ops = gelu_list(e, rng(ACC, 16), rng(TMP, 8), gt, VC1P)
        for h in range(2):
            ops.append(lambda h=h: e.ds_write(4, VFW, TMP + 4 * h, FB + 32 * h))
        return ops

    def small_gemm(ubase, lo, hi, boff, acc, side=()):
        def bread(i):
            return lambda: e.ds_read(4, BFR + 4 * (i % 4), VHR, boff(i))
        bread(lo)()
        bread(lo + 1)()
        n = hi - lo
        for i in range(lo, hi):
            u = ubase + i
            st.ensure(min(u + AHEAD, len(st.units) - 1))
            while st.can_dma():
                st.do_dma()
            d = st.dest(u)
            mains = [lambda mt=mt: e.mfma(True, acc + 16 * mt, d + 4 * mt, BFR + 4 * (i % 4),
                                          acc + 16 * mt if i else None) for mt in range(2)]
            fill = []
            if i + 2 < hi:
                fill.append(bread(i + 2))
            fill += [lambda: st.pump(1), lambda: st.pump(1)]
            fill = merge(list(side[len(side) * (i - lo) // n:len(side) * (i - lo + 1) // n]), fill)
            interleave(mains, fill)
            st.cu += 1

    for q in range(8):
        e.ds_write(4, VGR, ACC + 32 + 4 * q, 1024 * q)
    e.barrier()
    extra = [ACC + 32 + 8 * i for i in range(4)]
    st.add_slots(extra + [KEEPB, BFR + 16])
    run_with_pump(epi1(), pump, every=PUMP_EVERY)
    e.barrier()
    stamp()
    tapoff = [0, HEVEN * HROW, HROW]
    boff2 = lambda i: tapoff[c2[i][0]] + 32 * c2[i][1]
    st.retired = set(extra)
    small_gemm(U_2, 0, 48, boff2, ACC, late2)
    assert all(st.slot_of[u] not in extra for u in range(st.cu, st.tu))
    st.free = [d for d in st.free if d not in extra]
    e.raw("    s_barrier")
    stamp()
    for q in range(4):
        e.ds_write(4, VEGW, ACC + 16 + 4 * q, 1024 * q)
    e.barrier()
    run_with_pump(epi2(), pump)
    e.barrier()
    stamp()
    bofff = lambda i: FB + 32 * cf[i]
    small_gemm(U_F, 0, 16, bofff, ACC + 32)
    exp_stage(e, ACC + 32, KEEPA, ACC, 32, VMAX)
    for mt in range(2):
        for h in range(2):
            for pl in range(2):
                e.ds_write(4, VEFW, ACC + 16 * mt + 8 * h + 4 * pl, 64 * mt + 32 * h + 512 * pl)
    publish_flag(e, VMAX, 0)
    e.barrier()
    stamp()
    flag_check(e, "L_c_slow")
    snap = (copy.deepcopy(e.pend), e.lseq, e.vseq, e.ldone, e.vdone)

    def out_stage(slow, tag):
        for uu in range(PROWS):
            for pl in range(2):
                e.ds_read(4, PEG + 8 * uu + 4 * pl, VEGR, uu * 1024 + pl * 512)
        for f in ef_read_ops(e, VEFR, PEF):
            f()
        for c in range(2):
            for f in produce_ops(e, slow, VEFR, PJW[c], PEG, PEF, PWK, PPK, 2):
                f()
        e.salu(f"s_mov_b32 {S_CNT}, 6")
        e.barrier()
        if not slow:
            stamp()
        loop_fence(e)
        if STAMPS:
            e.salu("s_mov_b32 s101, 0")
        e.label(f"L_c_loop{tag}")
        stamp.loop_top()
        ops = produce_ops(e, slow, VEFR, PJW[2], PEG, PEF, PWK, PPK, PROWS)
        for f in ops + [step(e, PJW[2], SJ[2])] + rot_steps(e):
            f()
        stamp.loop_pre_barrier()
        e.salu(f"s_sub_u32 {S_CNT}, {S_CNT}, 1")
        e.salu(f"s_cmp_lg_u32 {S_CNT}, 0")
        e.barrier()
        e.salu(f"s_cbranch_scc1 L_c_loop{tag}")
        if not slow:
            stamp()

    out_stage(False, "")
    if STAMPS:
        e.wait_all_vm()
    stamp()
    stamp.dump(False)
    e.salu("s_endpgm")

    e.label("L_c_slow")
    (e.pend, e.lseq, e.vseq, e.ldone, e.vdone) = snap
    e.wr.clear(); e.stw.clear(); e.sgpr_valu.clear()
    e.nop(8)
    e.barrier()
    for mt in range(2):
        for h in range(2):
            for pl in range(2):
                e.ds_write(4, VEFW, KEEPA + 16 * mt + 8 * h + 4 * pl, 64 * mt + 32 * h + 512 * pl)
    e.barrier()
    out_stage(True, "s")
    e.salu("s_endpgm")


def gen_helper(e):
    v = V(e)
    stamp = Stamper(e)
    t0, t1, t2, t3, t4, t5, t6, t7 = T
    L = rn(VL)
    SDBG, SWS = 40, 52
    HVG, HVEGW, HVST, GMAX = 39, 25, 24, 23
    RAW, NFL = MACC, 4
    GFR = MPO
    GEF = 88
    GACC, GKEEP = 104, 112
    e.label("L_helper")
    e.salu("s_setprio 3")
    stamp()
    e.salu(f"s_lshl_b32 {S_RING}, {S_W}, 12")
    e.salu(f"s_add_u32 {S_RING}, {S_RING}, {J2}")
    e.salu(f"s_cmp_ge_u32 s2, 125")
    e.salu(f"s_cselect_b32 {S_B}, 1, 0")
    e.salu(f"s_cmp_ge_u32 s2, {NWG}")
    e.salu("s_cbranch_scc1 L_h_setup2")
    v(f"v_lshlrev_b32 {rn(HVP)}, 6, {L}", [HVP], [VL])
    e.salu(f"s_lshl_b32 {S_LIM}, s48, 2")
    e.salu(f"s_add_u32 {S_LIM}, {S_LIM}, {S_W}")
    e.salu(f"s_lshl_b32 {S_LIM}, {S_LIM}, 12")
    HVT = 38

    def touch(srds, big):
        e.salu(f"s_lshl_b32 {S_T2}, s48, 2")
        e.salu(f"s_add_u32 {S_T2}, {S_T2}, {S_W}")
        e.salu(f"s_lshl_b32 {S_T2}, {S_T2}, 12")
        for rep in range(NTOUCH if big else 1):
            if rep:
                e.salu(f"s_add_u32 {S_T2}, {S_T2}, {43 << 12}")
            e.salu(f"s_and_b32 {S_T2}, {S_T2}, {((128 if big else 32) << 12) - 1}")
            for srd in srds:
                e.bload(1, 104, HVT, srd, S_T2)

    v(f"v_lshlrev_b32 {rn(HVT)}, 6, {L}", [HVT], [VL])
    touch((SW1,), True)
    if TOUCH_MODE == 0:
        touch((SW2,), True)
        touch((SWF, SWO), False)
    e.salu(f"s_mul_i32 {S_T1}, {S_B}, 125")
    e.salu(f"s_sub_u32 {S_T0}, s2, {S_T1}")
    e.salu(f"s_lshl_b32 {S_T0}, {S_T0}, 7")
    e.salu(f"s_lshl_b32 {S_T1}, {S_W}, 3")
    e.salu(f"s_mul_i32 {S_CNT}, {S_B}, 16000")
    e.salu(f"s_lshl_b32 {S_D}, {S_W}, 10")
    v(f"v_mov_b32 {rn(HC)}, 133", [HC], [])
    v(f"v_bfrev_b32 {rn(HVMAX)}, 1", [HVMAX], [])
    v(f"v_lshrrev_b32 {rn(t6)}, 3, {L}", [t6], [VL])
    v(f"v_add_u32 {rn(t0)}, {S_T1}, {rn(t6)}", [t0], [t6])
    v(f"v_and_b32 {rn(t1)}, 7, {L}", [t1], [VL])
    xseq = {}

    def xconst(j):
        if j < 4:
            v(f"v_add_u32 {rn(t2)}, {32 * j}, {rn(t0)}", [t2], [t0])
        else:
            v(f"v_add_u32 {rn(t2)}, 128, {rn(t6)}", [t2], [t6])
        v(f"v_bfe_u32 {rn(t3)}, {rn(t2)}, 1, 3", [t3], [t2], vop3=True)
        v(f"v_xor_b32 {rn(t3)}, {rn(t1)}, {rn(t3)}", [t3], [t1, t3])
        v(f"v_lshlrev_b32 {rn(t4)}, 1, {rn(t2)}", [t4], [t2])
        v(f"v_cmp_lt_u32 vcc, 64, {rn(t2)}", [], [t2], sw=["vcc"])
        v(f"v_cndmask_b32 {rn(t5)}, 2, {rn(HC)}, vcc", [t5], [HC], sr=["vcc"])
        v(f"v_sub_u32 {rn(t4)}, {rn(t4)}, {rn(t5)}", [t4], [t4, t5])
        v(f"v_add_u32 {rn(t4)}, {S_T0}, {rn(t4)}", [t4], [t4])
        v(f"v_add_u32 {rn(t5)}, {S_CNT}, {rn(t4)}", [t5], [t4])
        v(f"v_lshlrev_b32 {rn(t5)}, 9, {rn(t5)}", [t5], [t5])
        v(f"v_lshl_add_u32 {rn(t5)}, {rn(t3)}, 4, {rn(t5)}", [t5], [t3, t5], vop3=True)
        if j < 4:
            v(f"v_cmp_gt_i32 vcc, 0, {rn(t4)}", [], [t4], sw=["vcc"])
        else:
            v(f"v_cmp_lt_u32 vcc, 130, {rn(t2)}", [], [t2], sw=["vcc"])
        v(f"v_cndmask_b32 {rn(HVX[j])}, {rn(t5)}, {rn(HVMAX)}, vcc", [HVX[j]], [t5, HVMAX], sr=["vcc"])

    def xdma(s, j):
        e.salu(f"s_add_u32 m0, {S_D}, {s * XSL + 4096 * j}", m0=True)
        xseq[s] = e.dma(HVX[j], SX, f"s{44 + s}", flags="nt")

    for j in range(4):
        xconst(j)
        xdma(0, j)
    xconst(4)
    e.salu(f"s_mul_i32 {S_T1}, {S_W}, {XSL}")
    e.salu(f"s_add_u32 {S_T2}, s48, {S_W}")
    e.salu(f"s_and_b32 {S_T2}, {S_T2}, 3")
    e.salu(f"s_lshl_b32 {S_T2}, {S_T2}, 7")
    e.salu(f"s_add_u32 m0, {S_T1}, 16384", m0=True)
    xseq[0] = e.dma(HVX[4], SX, S_T2, flags="nt")
    for j in range(4):
        xdma(1, j)
    if XALL:
        for s in range(2, 2 + XALL):
            for j in range(4):
                xdma(s, j)
    e.wait(vseq=xseq[0])
    e.raw("    s_barrier")
    stamp()
    for s in range(2 + XALL, 3 if XJIT else 4):
        for j in range(4):
            xdma(s, j)
    if TOUCH_MODE == 1:
        touch((SWO, SWF), False)
        touch((SW2,), True)
    e.label("L_h_setup2")
    e.salu("s_setprio 0")
    e.salu(f"s_sub_u32 {S_T1}, s2, {NWG}")
    e.salu(f"s_cmp_ge_u32 s2, {NWG}")
    e.salu(f"s_cselect_b32 {S_B}, {S_T1}, {S_B}")
    e.salu(f"s_load_dwordx2 s[{SDBG}:{SDBG + 1}], s[0:1], 64")
    e.salu(f"s_load_dwordx2 s[{SWS}:{SWS + 1}], s[0:1], 72")
    e.salu("s_waitcnt lgkmcnt(0)")
    e.salu(f"s_and_b32 s{SDBG + 1}, s{SDBG + 1}, 0xffff")
    e.salu(f"s_mov_b32 s{SDBG + 2}, 256")
    e.salu(f"s_mov_b32 s{SDBG + 3}, 0x20000")
    e.salu(f"s_and_b32 s{SWS + 1}, s{SWS + 1}, 0xffff")
    e.salu(f"s_mov_b32 s{SWS + 2}, {WS_OFF + 16384}")
    e.salu(f"s_mov_b32 s{SWS + 3}, 0x20000")
    tr_consts(e, False)
    v(f"v_and_b32 {rn(t0)}, 15, {L}", [t0], [VL])
    v(f"v_lshrrev_b32 {rn(t1)}, 4, {L}", [t1], [VL])
    v(f"v_xor_b32 {rn(t2)}, {rn(t0)}, {rn(t1)}", [t2], [t0, t1])
    v(f"v_and_b32 {rn(t2)}, 1, {rn(t2)}", [t2], [t2])
    v(f"v_lshrrev_b32 {rn(t3)}, 1, {rn(t0)}", [t3], [t0])
    e.salu(f"s_lshl_b32 {S_T1}, {S_B}, 3")
    v(f"v_add_u32 {rn(t3)}, {S_T1}, {rn(t3)}", [t3], [t3])
    v(f"v_lshlrev_b32 {rn(t3)}, 9, {rn(t3)}", [t3], [t3])
    v(f"v_lshrrev_b32 {rn(t4)}, 1, {rn(t1)}", [t4], [t1])
    v(f"v_lshl_add_u32 {rn(t3)}, {rn(t4)}, 4, {rn(t3)}", [t3], [t4, t3], vop3=True)
    v(f"v_lshl_or_b32 {rn(HVG)}, {rn(t2)}, 31, {rn(t3)}", [HVG], [t2, t3], vop3=True)
    v(f"v_and_b32 {rn(t2)}, 1, {rn(t0)}", [t2], [t0])
    v(f"v_lshl_or_b32 {rn(t2)}, {rn(t2)}, 2, {rn(t1)}", [t2], [t2, t1], vop3=True)
    perm_q(e, t4, t2, t6, t7)
    v(f"v_lshrrev_b32 {rn(t3)}, 1, {rn(t0)}", [t3], [t0])
    v(f"v_lshlrev_b32 {rn(t3)}, 10, {rn(t3)}", [t3], [t3])
    v(f"v_and_b32 {rn(t5)}, 1, {rn(t4)}", [t5], [t4])
    v(f"v_lshl_add_u32 {rn(t3)}, {rn(t5)}, 9, {rn(t3)}", [t3], [t5, t3], vop3=True)
    v(f"v_lshrrev_b32 {rn(t5)}, 1, {rn(t4)}", [t5], [t4])
    v(f"v_lshl_add_u32 {rn(t3)}, {rn(t5)}, 4, {rn(t3)}", [t3], [t5, t3], vop3=True)
    v(f"v_add_u32 {rn(t3)}, {S_W128}, {rn(t3)}", [t3], [t3])
    v(f"v_add_u32 {rn(HVEGW)}, {EG}, {rn(t3)}", [HVEGW], [t3])
    v(f"v_lshlrev_b32 {rn(t3)}, 4, {L}", [t3], [VL])
    v(f"v_add_u32 {rn(HVST)}, {S_RING}, {rn(t3)}", [HVST], [t3])
    v(f"v_mov_b32 {rn(GMAX)}, 0", [GMAX], [])
    e.salu(f"s_lshl_b32 {S_T0}, {S_B}, 2")
    e.salu(f"s_add_u32 {S_T0}, {S_T0}, {S_W}")
    e.salu(f"s_lshl_b32 {S_T0}, {S_T0}, 11")
    e.salu(f"s_add_u32 {S_T0}, {S_T0}, {WS_OFF}")
    e.salu(f"s_lshl_b32 {S_D}, {S_B}, 2")
    v(f"v_lshrrev_b32 {rn(t0)}, 3, {L}", [t0], [VL])
    v(f"v_lshlrev_b32 {rn(t0)}, 9, {rn(t0)}", [t0], [t0])
    v(f"v_add_u32 {rn(t0)}, {S_W128}, {rn(t0)}", [t0], [t0])
    v(f"v_and_b32 {rn(t1)}, 7, {L}", [t1], [VL])
    v(f"v_lshrrev_b32 {rn(t2)}, 3, {L}", [t2], [VL])
    v(f"v_and_b32 {rn(t2)}, 2, {rn(t2)}", [t2], [t2])
    v(f"v_xor_b32 {rn(t2)}, {rn(t1)}, {rn(t2)}", [t2], [t1, t2])
    v(f"v_lshl_add_u32 {rn(VWO0)}, {rn(t2)}, 4, {rn(t0)}", [VWO0], [t2, t0], vop3=True)
    v(f"v_add_u32 {rn(VWO1)}, 3072, {rn(VWO0)}", [VWO1], [VWO0])
    tr_consts(e, True)
    prod_consts(e, MEFR, MEGR, MJW, 2)
    v(f"v_mul_u32_u24 {rn(t2)}, {HROW}, {rn(t0)}", [t2], [t0])
    v(f"v_lshl_add_u32 {rn(t2)}, {rn(t1)}, 4, {rn(t2)}", [t2], [t1, t2], vop3=True)
    for i in range(2):
        v(f"v_add_u32 {rn(MJR[i])}, {JB[i]}, {rn(t2)}", [MJR[i]], [t2])
    e.salu(f"s_lshl_b32 {S_T2}, {S_W}, 14")
    e.salu(f"s_add_u32 {S_T2}, {S_T2}, {RING}")
    v(f"v_mul_u32_u24 {rn(t2)}, {OROW}, {rn(t0)}", [t2], [t0])
    v(f"v_lshl_add_u32 {rn(t2)}, {rn(t1)}, 6, {rn(t2)}", [t2], [t1, t2], vop3=True)
    v(f"v_add3_u32 {rn(MOW)}, {rn(t2)}, {S_T2}, 0", [MOW], [t2], vop3=True)
    store_consts(e, MOR, MOS, S_T2)
    HHW, HFW, HC1, HRAW = 32, 37, 100, 22
    v(f"v_and_b32 {rn(t0)}, 31, {L}", [t0], [VL])
    v(f"v_lshrrev_b32 {rn(t1)}, 5, {L}", [t1], [VL])
    v(f"v_mul_u32_u24 {rn(t2)}, {HROW}, {rn(t0)}", [t2], [t0])
    v(f"v_lshl_add_u32 {rn(t2)}, {rn(t1)}, 4, {rn(t2)}", [t2], [t1, t2], vop3=True)
    v(f"v_add_u32 {rn(HFW)}, {S_W128}, {rn(t2)}", [HFW], [t2])
    v(f"v_and_b32 {rn(t2)}, 1, {rn(t0)}", [t2], [t0])
    v(f"v_cmp_eq_u32 vcc, 1, {rn(t2)}", [], [t2], sw=["vcc"])
    v(f"v_mov_b32 {rn(t3)}, 1", [t3], [])
    v(f"v_cndmask_b32 {rn(t3)}, {HEVEN}, {rn(t3)}, vcc", [t3], [t3], sr=["vcc"])
    v(f"v_lshrrev_b32 {rn(t2)}, 1, {rn(t0)}", [t2], [t0])
    v(f"v_add_u32 {rn(t2)}, {rn(t2)}, {rn(t3)}", [t2], [t2, t3])
    v(f"v_mul_u32_u24 {rn(t2)}, {HROW}, {rn(t2)}", [t2], [t2])
    v(f"v_lshl_add_u32 {rn(t2)}, {rn(t1)}, 4, {rn(t2)}", [t2], [t1, t2], vop3=True)
    v(f"v_add_u32 {rn(HHW)}, {S_W128}, {rn(t2)}", [HHW], [t2])
    v(f"v_mov_b32 {rn(HC1)}, {f32(GC1)}", [HC1], [])
    v(f"v_mov_b32 {rn(HC1 + 1)}, {f32(GC1)}", [HC1 + 1], [])
    e.salu(f"s_lshl_b32 {S_T1}, {S_W}, 13")
    e.salu(f"s_add_u32 {S_T1}, {S_T1}, {FB}")
    v(f"v_lshlrev_b32 {rn(t3)}, 4, {L}", [t3], [VL])
    v(f"v_add_u32 {rn(HRAW)}, {S_T1}, {rn(t3)}", [HRAW], [t3])
    e.salu(f"s_cmp_ge_u32 s2, {NWG}")
    e.salu("s_cbranch_scc1 L_ge")
    if XJIT:
        e.salu(f"s_lshl_b32 {S_LIM}, {S_W}, 10")
        e.wait(vseq=xseq[1])
        e.raw("    s_barrier")
        for j in range(4):
            e.salu(f"s_add_u32 m0, {S_LIM}, {3 * XSL + 4096 * j}", m0=True)
            xseq[3] = e.dma(HVX[j], SX, "s47", flags="nt")
        e.wait(vseq=xseq[2])
        e.raw("    s_barrier")
    e.wait(vseq=xseq[3])
    e.raw("    s_barrier")
    stamp()
    if TOUCH_MODE == 2:
        v(f"v_lshlrev_b32 {rn(HVT)}, 6, {L}", [HVT], [VL])
        touch((SWO, SWF), False)
        touch((SW2,), True)

    def unit_ops(srd, wo, lo=0, hi=16, raw=RAW):
        trseq = {}
        ops = []

        def load(u):
            e.salu(f"s_mov_b32 {S_SOFF}, {u * 8192}")
            r = raw + 8 * (u % NFL)
            e.bload(4, r, VWO0 if wo else VW0, srd, S_SOFF)
            e.bload(4, r + 4, VWO1 if wo else VW1, srd, S_SOFF, off=1024)
            if not wo:
                e.bload(4, GFR + 4 * (u % 4), HVG, SG, 0, off=32 * u)

        def stage(u):
            r = raw + 8 * (u % NFL)
            slot = (u % 2) * 2048
            if u - 2 >= lo:
                e.wait(lseq=trseq[u - 2])
            e.ds_write(4, HVST, r, slot)
            e.ds_write(4, HVST, r + 4, slot + 1024)
            d = WO_DEST[u] if wo else GEF + 8 * (u % 2)
            va = VTRO if wo else VTR
            for mt in range(2):
                for jj in range(2):
                    trseq[u] = e.ds_read(2, d + 4 * mt + 2 * jj, va[mt], slot + jj * 512, tr=True)

        def mm(u):
            dp = GEF + 8 * (u % 2)
            for mt in range(2):
                e.mfma(False, GACC + 4 * mt, dp + 4 * mt, GFR + 4 * (u % 4), GACC + 4 * mt if u else None)

        nfl = NFL if wo else NFL - 1
        for u in range(lo, min(lo + nfl, hi)):
            ops.append(lambda u=u: load(u))
        for u in range(lo, hi + 1):
            if u < hi:
                ops.append(lambda u=u: stage(u))
            if not wo and u >= 1:
                ops.append(lambda u=u: mm(u - 1))
            if u + nfl < hi:
                ops.append(lambda u=u: load(u + nfl))
        return ops

    def dma_unit_ops(lo, hi):
        dseq, tseq = {}, {}
        ops = []

        def dma(u):
            if u - 2 >= lo:
                e.wait(lseq=tseq[u - 2])
            e.salu(f"s_add_u32 m0, {S_RING}, {(u % 2) * 2048}", m0=True)
            e.salu(f"s_mov_b32 {S_SOFF}, {u * 8192}")
            e.dma(VWO0, SWO, S_SOFF)
            dseq[u] = e.dma(VWO1, SWO, S_SOFF, off=1024)

        def tr(u):
            e.wait(vseq=dseq[u])
            for mt in range(2):
                for jj in range(2):
                    tseq[u] = e.ds_read(2, WO_DEST[u] + 4 * mt + 2 * jj, VTRO[mt], (u % 2) * 2048 + jj * 512, tr=True)

        for u in range(lo, min(lo + 2, hi)):
            ops.append(lambda u=u: dma(u))
        for u in range(lo, hi):
            ops.append(lambda u=u: tr(u))
            if u + 2 < hi:
                ops.append(lambda u=u: dma(u + 2))
        return ops

    def run_units(srd, wo, lo=0, hi=16):
        for f in unit_ops(srd, wo, lo, hi):
            f()

    for f in dma_unit_ops(0, WO_EARLY):
        f()
    e.raw("    s_barrier")
    wops = []
    for f in wops[:NFL]:
        f()
    e.raw("    s_barrier")
    GA, GP, GT = 40, 72, rng(88, 4)
    for q in range(8):
        e.ds_read(4, GA + 4 * q, HRAW, 1024 * q)
    gops = []
    for nt in range(2):
        gops += gelu_list(e, rng(GA + 16 * nt, 16), rng(GP + 8 * nt, 8), GT, HC1)
        for h in range(2):
            gops.append(lambda nt=nt, h=h: e.ds_write(4, HHW, GP + 8 * nt + 4 * h, nt * 16 * HROW + 64 + 32 * h))
    for f in merge(gops, wops[NFL:]):
        f()
    e.wait_all_lds()
    e.salu(f"s_buffer_load_dword {S_T1}, s[{SDBG}:{SDBG + 3}], {S_D}")
    e.salu("s_waitcnt lgkmcnt(0)")
    stamp()
    e.raw("    s_barrier")
    e.salu(f"s_cmp_lg_u32 {S_T1}, {4 if not X_NOPUB else 99}")
    e.salu("s_cbranch_scc1 L_ge")
    v(f"v_lshlrev_b32 {rn(t3)}, 4, {L}", [t3], [VL])
    e.bload(4, GACC, t3, SWS, S_T0, flags="sc1")
    e.bload(4, GACC + 4, t3, SWS, S_T0, off=1024, flags="sc1")
    e.salu("s_branch L_ge_done")
    e.label("L_ge")
    e.pend.clear(); e.wr.clear()
    e.ldone, e.vdone = e.lseq, e.vseq
    e.raw("    s_waitcnt vmcnt(0) lgkmcnt(0)")
    run_units(SWG, False)
    e.nop(10)
    e.salu(f"s_cmp_lt_u32 s2, {NWG}")
    e.salu("s_cbranch_scc1 L_ge_done")
    v(f"v_lshlrev_b32 {rn(t3)}, 4, {L}", [t3], [VL])
    e.bstore(4, GACC, t3, SWS, S_T0, flags="sc0 sc1")
    e.bstore(4, GACC + 4, t3, SWS, S_T0, off=1024, flags="sc0 sc1")
    e.wait_all_vm()
    v(f"v_mov_b32 {rn(t0)}, 0", [t0], [])
    v(f"v_mov_b32 {rn(t1)}, 1", [t1], [])
    e.salu("s_mov_b64 exec, 1")
    e.raw(f"    buffer_atomic_add {rn(t1)}, {rn(t0)}, s[{SDBG}:{SDBG + 3}], {S_D} offen sc1")
    e.salu("s_endpgm")
    e.label("L_ge_done")
    e.pend.clear(); e.wr.clear()
    e.raw("    s_waitcnt lgkmcnt(0)")
    e.ldone = e.lseq
    e.vseq += 2
    for r in rng(GACC, 8):
        e.pend[r] = ('v', e.vseq)

    def finish_ge():
        exp_stage(e, GACC, GKEEP, 120, 8, GMAX)
        for i in range(8):
            v(f"v_mul_f32 {rn(120 + i)}, -0.5, {rn(120 + i)}", [120 + i], [120 + i])
        for mt in range(2):
            e.ds_write(4, HVEGW, 120 + 4 * mt, 64 * mt)
        publish_flag(e, GMAX, 16)

    if WO_SPLIT[1] > WO_SPLIT[0]:
        run_units(SWO, True, WO_SPLIT[0], WO_SPLIT[1])
    finish_ge()
    stamp()
    e.barrier()
    wops = unit_ops(SWO, True, WO_SPLIT[1], WO_LATE, raw=56) if WO_SPLIT[1] < WO_LATE else []
    for f in wops[:NFL]:
        f()
    e.raw("    s_barrier")
    for q in range(4):
        e.ds_read(4, GA + 4 * q, HVST, 1024 * q)
    v(f"v_mov_b32 {rn(HC1)}, {f32(GC1)}", [HC1], [])
    v(f"v_mov_b32 {rn(HC1 + 1)}, {f32(GC1)}", [HC1 + 1], [])
    for f in gelu_list(e, rng(GA, 16), rng(92, 8), GT, HC1):
        f()
    for h in range(2):
        e.ds_write(4, HFW, 92 + 4 * h, FB + 64 + 32 * h)
    e.barrier()
    if H_PRIO:
        e.salu(f"s_setprio {H_PRIO}")
    for f in wops[NFL:]:
        f()
    stamp()
    e.barrier()
    stamp()
    flag_check(e, "L_h_slow")
    snap = (copy.deepcopy(e.pend), e.lseq, e.vseq, e.ldone, e.vdone)

    def epi_ops():
        ops = []
        for q in range(4):
            for i in range(4):
                k = 4 * q + i
                ops.append(lambda k=k: v(f"v_cvt_pk_bf16_f32 {rn(MOUT + k)}, {rn(MOUT + 2 * k)}, {rn(MOUT + 2 * k + 1)}",
                                         [MOUT + k], [MOUT + 2 * k, MOUT + 2 * k + 1], vop3=True))
            ops.append(lambda q=q: e.ds_write(4, MOW, MOUT + 4 * q, 16 * q))
        return ops

    def jread(idx):
        reg = MJR[0] if idx < 16 else MJR[1]
        return lambda: e.ds_read(4, MBF[idx % 4], reg, 32 * (idx % 16))

    def chunk_body(slow):
        prod = produce_ops(e, slow, MEFR, MJW[2], MEG, MEF, MWK, MPK, 1) + [step(e, MJW[2], SJ[2])]
        if X_NOMPROD or PROWS == 4:
            prod = []
        epi = epi_ops()
        rbs = readback_store_ops(e, MOR, MOS, MOUT + 16)
        plan = {}
        for i, f in enumerate(epi):
            plan.setdefault(i // 2, []).append(f)
        for i in range(4):
            plan.setdefault(10 + i, []).append(rbs[i])
            plan.setdefault(ST0 + STD * i, []).append(rbs[4 + i])
        for ks in range(16):
            wo = WO_DEST[ks]
            for mt in range(2):
                dst = (MOUT if ks == 15 else MACC) + 16 * mt
                e.mfma(True, dst, wo + 4 * mt, MBF[ks % 4], MACC + 16 * mt if ks else None)
                if mt == 0:
                    jread(ks + JD)()
                for f in plan.get(2 * ks + mt - 1, []):
                    f()
        v(f"v_mov_b32 {rn(MJR[0])}, {rn(MJR[1])}", [MJR[0]], [MJR[1]])
        step(e, MJR[1], SJ[1])()
        for f in rot_steps(e):
            f()

    def out_stage(slow, tag):
        if WO_LATE < 16:
            run_units(SWO, True, WO_LATE, 16)
        init_steps(e)
        QEG, QEF, QWK, QPK = MACC, MACC + 16, MACC + 24, MACC + 32
        for uu in range(2):
            for pl in range(2):
                e.ds_read(4, QEG + 8 * uu + 4 * pl, MEGR, uu * 1024 + pl * 512)
        for f in ef_read_ops(e, MEFR, QEF):
            f()
        for c in range(2):
            for f in produce_ops(e, slow, MEFR, MJW[c], QEG, QEF, QWK, QPK, 2):
                f()
        e.salu(f"s_mov_b32 {S_CNT}, 8")
        e.salu(f"s_mov_b32 {S_OS}, 0x7ff00000")
        e.salu(f"s_setprio {X_PRIO}")
        e.barrier()
        for i in range(JD):
            jread(i)()
        e.wait_all_lds()
        loop_fence(e)
        if STAMPS:
            e.salu("s_mov_b32 s101, 0")
        e.label(f"L_h_loop{tag}")
        stamp.loop_top()
        chunk_body(slow)
        stamp.loop_pre_barrier()
        e.salu(f"s_cmp_eq_u32 {S_CNT}, 8")
        e.salu(f"s_cselect_b32 {S_OS}, {S_OBASE}, {S_OS}")
        e.salu(f"s_sub_u32 {S_CNT}, {S_CNT}, 1")
        e.salu(f"s_cmp_lg_u32 {S_CNT}, 0")
        e.barrier()
        e.salu(f"s_cbranch_scc1 L_h_loop{tag}")
        if not slow:
            stamp()
        for f in epi_ops() + readback_store_ops(e, MOR, MOS, MOUT + 16):
            f()

    out_stage(False, "")
    if STAMPS:
        e.wait_all_vm()
    stamp()
    stamp.dump(True)
    if X_DIAG:
        e.wait_all_vm()
        e.salu("s_memrealtime s[98:99]")
        e.salu("s_waitcnt lgkmcnt(0)")
        e.salu("s_sub_u32 s99, s98, s96")
        e.salu("s_and_b32 s97, s2, 63")
        e.salu(f"s_or_b32 s97, s97, {S_W}")
        e.salu("s_cmp_lg_u32 s97, 0")
        e.salu("s_cbranch_scc1 L_end")
        e.salu("s_lshr_b32 s97, s2, 6")
        e.salu("s_lshl_b32 s97, s97, 3")
        v(f"v_mov_b32 {rn(t0)}, 0", [t0], [])
        v(f"v_mov_b32 {rn(t2)}, s96", [t2], [])
        v(f"v_mov_b32 {rn(t3)}, s99", [t3], [])
        e.salu("s_mov_b64 exec, 1")
        e.raw(f"    buffer_store_dwordx2 {rn(t2, 2)}, {rn(t0)}, s[{SDBG}:{SDBG + 3}], s97 offen offset:32")
    e.salu("s_endpgm")

    e.label("L_h_slow")
    (e.pend, e.lseq, e.vseq, e.ldone, e.vdone) = snap
    e.wr.clear(); e.stw.clear(); e.sgpr_valu.clear()
    e.nop(8)
    e.barrier()
    for mt in range(2):
        e.ds_write(4, HVEGW, GKEEP + 4 * mt, 64 * mt)
    e.barrier()
    out_stage(True, "s")
    e.label("L_end")
    e.salu("s_endpgm")


def split_slow(text, label):
    i = text.index(label + ":")
    return text[:i], text[i:]


def generate():
    e0 = Emitter()
    common_prologue(e0)
    ec = Emitter()
    gen_compute(ec)
    eh = Emitter()
    gen_helper(eh)
    cf, cs = split_slow(ec.text(), "L_c_slow")
    hf, hs = split_slow(eh.text(), "L_h_slow")
    h1, h2 = split_slow(hf, "L_h_setup2")
    return e0.text() + h1 + "    s_branch L_h_setup2\n" + cf + h2 + cs + hs, ec, eh


HEADER = f"""; Fused conv stem (2x stride-2 conv1d + gelu) + RNN-T joint network, one workgroup per 32 output frames.
; @launch grid=({NGRID},1,1) block=(512,1,1) lds={LDS_BYTES}
.amdgcn_target "amdgcn-amd-amdhsa--gfx950"
.text
.globl {NAME}_kernel
.p2align 8
.type {NAME}_kernel,@function
{NAME}_kernel:
"""

FOOTER = f""".section .rodata,"a"
.p2align 6
.amdhsa_kernel {NAME}_kernel
  .amdhsa_next_free_vgpr 256
  .amdhsa_next_free_sgpr 102
  .amdhsa_accum_offset {ACCOFF}
  .amdhsa_group_segment_fixed_size 0
  .amdhsa_kernarg_size 80
  .amdhsa_user_sgpr_count 2
  .amdhsa_user_sgpr_kernarg_segment_ptr 1
  .amdhsa_system_sgpr_workgroup_id_x 1
.end_amdhsa_kernel
"""

if __name__ == "__main__":
    STAMPS = "--stamps" in sys.argv
    if "--out" in sys.argv:
        STAMPMODE = "out"
    if "--h" in sys.argv:
        STAMPMODE = "h"
    if "--bar" in sys.argv:
        STAMPMODE = "bar"
    args = [a for a in sys.argv[1:] if not a.startswith("--")]
    text, ec, eh = generate()
    path = args[0] if args else f"cdna_kernels/{NAME}.s"
    open(path, "w").write(HEADER + text + FOOTER)
    cnt = lambda e: sum(1 for l in e.out if l.startswith("    ") and not l.strip().startswith(";"))
    print("instructions C:", cnt(ec), "H:", cnt(eh))
```

```python
import copy
import struct
import sys

from emit import Emitter, rn, rng

NAME = "standalone__seq2seq_rnn_t_joint__speech"
NWG = 250
NGRID = 252
STAMPS = False
STAMPMODE = "front"
import os
X_NOSTORE = "X_NOSTORE" in os.environ
X_NOMPROD = "X_NOMPROD" in os.environ
X_NOPPROD = "X_NOPPROD" in os.environ
X_PRIO = os.environ.get("X_PRIO", "1")
X_NOH = os.environ.get("X_NOH", "")
X_SLACK = int(os.environ.get("X_SLACK", "2"))
X_NOROT = "X_NOROT" in os.environ
X_LAT = float(os.environ.get("X_LAT", "900"))
X_C1 = os.environ.get("X_C1", "")
X_NOPUB = "X_NOPUB" in os.environ
WS_OFF = 1 << 20
WO_SPLIT = [int(x) for x in os.environ.get("WO_SPLIT", os.environ.get("WO_EARLY", "12") + "," + os.environ.get("WO_EARLY", "12")).split(",")]
WO_NFL = int(os.environ.get("WO_NFL", "4"))
WO_B5 = int(os.environ.get("WO_B5", "7"))
X_NOLOOPST = "X_NOLOOPST" in os.environ
X_NOEPI = "X_NOEPI" in os.environ
JD = int(os.environ.get("JD", "3"))
X_FOLD = "X_FOLD" in os.environ
PROWS = int(os.environ.get("PROWS", "4"))
ST0 = int(os.environ.get("ST0", "14"))
STD = int(os.environ.get("STD", "4"))
AHEAD = int(os.environ.get("AHEAD", "1"))
PUMP_EVERY = int(os.environ.get("PUMP_EVERY", "14"))
WO_LATE = int(os.environ.get("WO_LATE", "16"))
X_RT = "X_RT" in os.environ
X_DIAG = "X_DIAG" in os.environ
ST_FLAGS = os.environ.get("ST_FLAGS", "sc0 sc1 nt")
XALL = int(os.environ.get("XALL", "0"))
XJIT = "XJIT" in os.environ
TOUCH_LATE = "TOUCH_LATE" in os.environ
C_INIT = int(os.environ.get("C_INIT", "2"))
H_PRIO = int(os.environ.get("H_PRIO", "0"))
WO_EARLY = int(os.environ.get("WO_EARLY", "12"))
NTOUCH = int(os.environ.get("NTOUCH", "1"))
TOUCH_MODE = int(os.environ.get("TOUCH_MODE", "2"))
B4_AT = int(os.environ.get("B4_AT", "26"))

XSL = 17408
ZROW = 3 * XSL + 131 * 128
RING = 69632
EG = 135168
FLAG = 143360
J2 = 143392
DUMMY = 160768
LDS_BYTES = 161792
HROW = 528
HEVEN = 37
FB = 36864
EFROW = 1040
JB = [33280, 50176, J2]
OROW = 144
TBSZ = 32 * OROW

SX, SW1, SW2, SG, SWF, SWG, SWO, SOUT = 8, 12, 16, 20, 24, 28, 32, 36
S_W, S_RING, S_SOFF, S_B, S_T0, S_D, S_OS, S_OBASE, S_FLAG, S_T1, S_T2, S_LIM, S_CNT, S_W128 = \
    "s56", "s57", "s58", "s59", "s60", "s61", "s62", "s63", "s64", "s65", "s66", "s67", "s68", "s69"

ACCOFF = 160
A0 = 256

VL = 1
T = list(range(2, 10))
VW0, VW1 = 10, 11
VTR = [14, 15]
VXB = [[18 + 4 * t + k for k in range(4)] for t in range(3)]
VXH = [[30 + 4 * t + k for k in range(4)] for t in range(3)]
VHW, VHH, VHR, VFW, VEFW, VC1, VMAX, VOS, VEFR, VEGR, VEGW, VGR = range(42, 54)
VC1P = 54
ACC = 56
HACC = 120
TMP = 128
KEEPA = TMP
FBUF = A0
VS = 8
BFR = A0 + 64
KEEPB = A0 + 88
RS = 8
PEG = ACC
PEF = ACC + 32
PWK = ACC + 40
PPK = ACC + 48
PRB = ACC + 52
PJW = [18, 19, 20]
POR = [21, 22, 23]
VWO0, VWO1 = 12, 13
VTRO = [16, 17]
HVX = [18, 19, 20, 21, 22]
HVP, HVMAX, HC, MEFR, MEGR, MOR, MOS = range(23, 30)
MJR = [30, 31]
MJW = [33, 34, 35]
MOW = 36
MACC = 40
MPO = 72
MOUT = 72
MEG = 104
MEF = 112
MWK = 10
MPK = 22
MBF = [120, 124, 18, 4]
WO_DEST = [A0 + 8 * i for i in range(12)] + [128 + 8 * i for i in range(4)]
HRS = 2

LOG2E = 1.4426950408889634
GC0 = -2.0 * 0.7978845608028654 * LOG2E
GC1 = GC0 * 0.044715
TSC = 2.0 * LOG2E


def f32(x):
    return "0x%08x" % struct.unpack("<I", struct.pack("<f", x))[0]


class Stream:
    LAT = X_LAT
    RATE = 140.0

    def __init__(self, e, rs, vs, fbuf):
        self.e = e
        self.rs, self.vs, self.fbuf = rs, vs, fbuf
        self.units = []
        self.du = self.tu = self.cu = 0
        self.dseq, self.tseq, self.arr = {}, {}, {}
        self.last_arr = 0.0
        self.tr_limit = 10 ** 9
        self.slot_of = {}
        self.free = [fbuf + 8 * i for i in range(vs)]
        self.released = 0

    def add_slots(self, regs):
        self.free += regs

    def _release(self):
        while self.released < self.cu:
            d = self.slot_of[self.released]
            if d not in self.retired:
                self.free.append(d)
            self.released += 1

    retired = set()

    def add(self, srd, soff, wo_idx=None):
        self.units.append((srd, soff, wo_idx))

    def dest(self, u):
        return self.slot_of[u]

    def can_dma(self):
        u = self.du
        slack = X_SLACK if self.rs > 2 else 1
        return u < len(self.units) and (u < self.rs or u - self.rs <= self.tu - slack)

    def do_dma(self):
        e, u = self.e, self.du
        srd, soff, wo = self.units[u]
        if u >= self.rs:
            e.wait(lseq=self.tseq[u - self.rs])
        e.salu(f"s_add_u32 m0, {S_RING}, {(u % self.rs) * 2048}", m0=True)
        if isinstance(soff, tuple):
            e.salu(f"s_add_u32 {S_SOFF}, {soff[0]}, {soff[1]}")
        else:
            e.salu(f"s_mov_b32 {S_SOFF}, {soff}")
        if "nodma" in X_C1 and 12 <= u < 48:
            self.dseq[u] = 0
        else:
            e.dma(VWO0 if wo is not None else VW0, srd, S_SOFF)
            self.dseq[u] = e.dma(VWO1 if wo is not None else VW1, srd, S_SOFF, off=1024)
        self.last_arr = max(e.t + self.LAT, self.last_arr + self.RATE)
        self.arr[u] = self.last_arr
        self.du += 1

    def _dest_free(self, u):
        self._release()
        return len(self.free) > 0

    def can_tr(self, timed=True):
        u = self.tu
        if u >= self.du or u >= self.tr_limit or not self._dest_free(u):
            return False
        return (not timed) or self.arr[u] <= self.e.t

    def do_tr(self):
        e, u = self.e, self.tu
        wo = self.units[u][2]
        e.wait(vseq=self.dseq[u])
        e.t = max(e.t, self.arr[u])
        self._release()
        d = self.slot_of[u] = self.free.pop(0)
        va = VTRO if wo is not None else VTR
        for mt in range(2):
            for jj in range(2):
                self.tseq[u] = e.ds_read(2, d + 4 * mt + 2 * jj, va[mt], (u % self.rs) * 2048 + jj * 512, tr=True)
        self.tu += 1

    def pump(self, max_ops=2):
        n = 0
        while n < max_ops:
            if self.can_tr():
                self.do_tr()
            elif self.can_dma():
                self.do_dma()
            else:
                break
            n += 1

    def ensure(self, u):
        while self.tu <= u:
            while self.du <= self.tu:
                assert self.can_dma()
                self.do_dma()
            assert self.can_tr(timed=False), (u, self.tu, self.cu)
            self.do_tr()

    def state(self):
        return (self.du, self.tu, self.cu, dict(self.dseq), dict(self.tseq), dict(self.arr), self.last_arr, self.tr_limit)

    def restore(self, s):
        (self.du, self.tu, self.cu, self.dseq, self.tseq, self.arr, self.last_arr, self.tr_limit) = \
            (s[0], s[1], s[2], dict(s[3]), dict(s[4]), dict(s[5]), s[6], s[7])


def interleave(mains, fillers):
    n = len(mains)
    k = 0
    for i, m in enumerate(mains):
        m()
        upto = (len(fillers) * (i + 1) + n - 1) // n
        while k < upto:
            fillers[k]()
            k += 1


def merge(a, b):
    out = []
    ia = ib = 0
    na, nb = len(a), len(b)
    while ia < na or ib < nb:
        if ib >= nb or (ia < na and ia * max(nb, 1) <= ib * max(na, 1)):
            out.append(a[ia]); ia += 1
        else:
            out.append(b[ib]); ib += 1
    return out


class Stamper:
    def __init__(self, e):
        self.e, self.n = e, 0

    def __call__(self, tag="front"):
        if not STAMPS or (tag != STAMPMODE and self.n > 0) or self.n >= 14:
            return
        e = self.e
        e.wait_all_lds()
        e.salu(f"{'s_memrealtime' if X_RT else 's_memtime'} s[{70 + 2 * self.n}:{71 + 2 * self.n}]")
        e.salu("s_waitcnt lgkmcnt(0)")
        self.n += 1

    def loop_top(self):
        if not STAMPS or X_NOLOOPST:
            return
        e = self.e
        e.salu("s_memtime s[98:99]")
        e.salu("s_waitcnt lgkmcnt(0)")
        e.salu("s_mov_b32 s100, s98")

    def loop_pre_barrier(self):
        if not STAMPS or X_NOLOOPST:
            return
        e = self.e
        e.wait_all_lds()
        e.salu("s_memtime s[98:99]")
        e.salu("s_waitcnt lgkmcnt(0)")
        e.salu("s_sub_u32 s98, s98, s100")
        e.salu("s_add_u32 s101, s101, s98")

    def dump(self, helper):
        if not STAMPS:
            return
        e = self.e
        e.salu("s_load_dwordx2 s[40:41], s[0:1], 72")
        e.salu("s_waitcnt lgkmcnt(0)")
        e.salu("s_and_b32 s41, s41, 0xffff")
        e.salu("s_mov_b32 s42, 131072")
        e.salu("s_mov_b32 s43, 0x20000")
        e.salu(f"s_lshl_b32 {S_T1}, s2, 3")
        e.salu(f"s_add_u32 {S_T1}, {S_T1}, {S_W}")
        if helper:
            e.salu(f"s_add_u32 {S_T1}, {S_T1}, 4")
        e.salu(f"s_lshl_b32 {S_T1}, {S_T1}, 6")
        e.valu(f"v_mov_b32 {rn(T[1])}, 0", [T[1]], [])
        for i in range(16):
            if i == 15:
                e.salu("s_add_u32 s101, s101, s70")
                e.valu(f"v_mov_b32 {rn(T[0])}, s101", [T[0]], [])
            else:
                e.valu(f"v_mov_b32 {rn(T[0])}, s{70 + 2 * min(i, self.n - 1)}", [T[0]], [])
            e.bstore(1, T[0], T[1], 40, S_T1, off=4 * i)


def V(e):
    return lambda text, w=(), r=(), **kw: e.valu(text, w, r, **kw)


def common_prologue(e):
    v = V(e)
    if X_DIAG:
        e.salu("s_memrealtime s[96:97]")
    e.salu(f"s_cmp_ge_u32 s2, {NGRID}")
    e.salu("s_cbranch_scc1 L_end")
    e.salu("s_load_dwordx16 s[40:55], s[0:1], 0")
    v(f"v_and_b32 {rn(VL)}, 63, v0", [VL], [0])
    v(f"v_lshrrev_b32 {rn(T[0])}, 6, v0", [T[0]], [0])
    e.rfl(S_CNT, T[0])
    e.salu(f"s_and_b32 {S_W}, {S_CNT}, 3")
    e.salu(f"s_lshl_b32 {S_W128}, {S_W}, 7")
    e.salu(f"s_lshl_b32 {S_OBASE}, s2, 17")
    t0, t1, t2 = T[:3]
    L = rn(VL)
    v(f"v_lshrrev_b32 {rn(t0)}, 3, {L}", [t0], [VL])
    v(f"v_lshlrev_b32 {rn(t0)}, 9, {rn(t0)}", [t0], [t0])
    v(f"v_add_u32 {rn(t0)}, {S_W128}, {rn(t0)}", [t0], [t0])
    v(f"v_and_b32 {rn(t1)}, 7, {L}", [t1], [VL])
    v(f"v_lshrrev_b32 {rn(t2)}, 2, {L}", [t2], [VL])
    v(f"v_and_b32 {rn(t2)}, 4, {rn(t2)}", [t2], [t2])
    v(f"v_xor_b32 {rn(t2)}, {rn(t1)}, {rn(t2)}", [t2], [t1, t2])
    v(f"v_lshl_add_u32 {rn(VW0)}, {rn(t2)}, 4, {rn(t0)}", [VW0], [t2, t0], vop3=True)
    v(f"v_add_u32 {rn(VW1)}, 3072, {rn(VW0)}", [VW1], [VW0])
    sizes = [16384000, 393216, 393216, 8192, 131072, 131072, 131072, 32768000]
    for i, srd in enumerate([SX, SW1, SW2, SG, SWF, SWG, SWO, SOUT]):
        e.salu(f"s_mov_b32 s{srd + 2}, {sizes[i]}")
        e.salu(f"s_mov_b32 s{srd + 3}, 0x20000")
    e.salu("s_waitcnt lgkmcnt(0)")
    for i, srd in enumerate([SX, SW1, SW2, SG, SWF, SWG, SWO, SOUT]):
        e.salu(f"s_mov_b32 s{srd}, s{40 + 2 * i}")
        e.salu(f"s_and_b32 s{srd + 1}, s{41 + 2 * i}, 0xffff")
    e.salu(f"s_mov_b32 s6, {f32(TSC)}")
    e.salu(f"s_mov_b32 s7, {f32(TSC)}")
    e.salu(f"s_mov_b32 s4, {f32(GC0)}")
    e.salu(f"s_mov_b32 s5, {f32(GC0)}")
    e.salu("s_lshr_b32 s48, s2, 3")
    for i in range(4):
        e.salu(f"s_add_u32 s{44 + i}, {0 if X_NOROT else 's48'}, {i}")
        e.salu(f"s_and_b32 s{44 + i}, s{44 + i}, 3")
        e.salu(f"s_lshl_b32 s{44 + i}, s{44 + i}, 7")
    e.salu(f"s_cmp_lt_u32 {S_CNT}, 4")
    e.salu("s_cbranch_scc1 L_compute")


def perm_q(e, dst, q, ta, tb):
    v = V(e)
    v(f"v_and_b32 {rn(ta)}, 1, {rn(q)}", [ta], [q])
    v(f"v_bfe_u32 {rn(tb)}, {rn(q)}, 1, 1", [tb], [q], vop3=True)
    v(f"v_lshl_or_b32 {rn(ta)}, {rn(ta)}, 1, {rn(tb)}", [ta], [ta, tb], vop3=True)
    v(f"v_and_or_b32 {rn(dst)}, {rn(q)}, 4, {rn(ta)}", [dst], [q, ta], vop3=True)


def tr_consts(e, wo):
    v = V(e)
    t0, t1, t2, t3, t4, t5, t6, t7 = T
    L = rn(VL)
    v(f"v_lshrrev_b32 {rn(t0)}, 4, {L}", [t0], [VL])
    v(f"v_bfe_u32 {rn(t1)}, {L}, 2, 2", [t1], [VL], vop3=True)
    v(f"v_and_b32 {rn(t2)}, 3, {L}", [t2], [VL])
    v(f"v_and_b32 {rn(t3)}, 1, {rn(t0)}", [t3], [t0])
    v(f"v_lshl_or_b32 {rn(t2)}, {rn(t3)}, 2, {rn(t2)}", [t2], [t3, t2], vop3=True)
    v(f"v_lshrrev_b32 {rn(t3)}, 1, {rn(t0)}", [t3], [t0])
    v(f"v_lshlrev_b32 {rn(t3)}, 10, {rn(t3)}", [t3], [t3])
    v(f"v_lshl_add_u32 {rn(t3)}, {rn(t1)}, 7, {rn(t3)}", [t3], [t1, t3], vop3=True)
    v(f"v_add_u32 {rn(t3)}, {S_RING}, {rn(t3)}", [t3], [t3])
    v(f"v_lshrrev_b32 {rn(t1)}, 1, {rn(t1)}", [t1], [t1])
    if not wo:
        perm_q(e, t4, t2, t6, t7)
        v(f"v_lshlrev_b32 {rn(t4)}, 3, {rn(t4)}", [t4], [t4])
        v(f"v_lshl_or_b32 {rn(t4)}, {rn(t1)}, 6, {rn(t4)}", [t4], [t1, t4], vop3=True)
        v(f"v_add_u32 {rn(VTR[0])}, {rn(t3)}, {rn(t4)}", [VTR[0]], [t3, t4])
        v(f"v_xor_b32 {rn(t4)}, 64, {rn(t4)}", [t4], [t4])
        v(f"v_add_u32 {rn(VTR[1])}, {rn(t3)}, {rn(t4)}", [VTR[1]], [t3, t4])
    else:
        v(f"v_and_b32 {rn(t4)}, 1, {rn(t2)}", [t4], [t2])
        v(f"v_lshlrev_b32 {rn(t4)}, 6, {rn(t4)}", [t4], [t4])
        v(f"v_lshrrev_b32 {rn(t5)}, 1, {rn(t2)}", [t5], [t2])
        v(f"v_lshl_or_b32 {rn(t4)}, {rn(t5)}, 3, {rn(t4)}", [t4], [t5, t4], vop3=True)
        v(f"v_lshl_or_b32 {rn(t4)}, {rn(t1)}, 5, {rn(t4)}", [t4], [t1, t4], vop3=True)
        v(f"v_add_u32 {rn(VTRO[0])}, {rn(t3)}, {rn(t4)}", [VTRO[0]], [t3, t4])
        v(f"v_xor_b32 {rn(t4)}, 32, {rn(t4)}", [t4], [t4])
        v(f"v_add_u32 {rn(VTRO[1])}, {rn(t3)}, {rn(t4)}", [VTRO[1]], [t3, t4])


def store_consts(e, vor, vos, ring_sgpr):
    v = V(e)
    t2, t3, t4 = T[2:5]
    L = rn(VL)
    v(f"v_lshrrev_b32 {rn(t2)}, 3, {L}", [t2], [VL])
    v(f"v_and_b32 {rn(t3)}, 7, {L}", [t3], [VL])
    v(f"v_lshlrev_b32 {rn(t3)}, 4, {rn(t3)}", [t3], [t3])
    v(f"v_mul_u32_u24 {rn(t4)}, {OROW}, {rn(t2)}", [t4], [t2])
    v(f"v_add3_u32 {rn(vor)}, {rn(t4)}, {rn(t3)}, {ring_sgpr}", [vor], [t4, t3], vop3=True)
    v(f"v_lshl_add_u32 {rn(t4)}, {rn(t2)}, 9, {rn(t3)}", [t4], [t2, t3], vop3=True)
    v(f"v_add_u32 {rn(vos)}, {S_W128}, {rn(t4)}", [vos], [t4])


def prod_consts(e, vefr, vegr, vjw, uu0):
    v = V(e)
    t0, t1, t2, t3 = T[:4]
    L = rn(VL)
    v(f"v_and_b32 {rn(t0)}, 31, {L}", [t0], [VL])
    v(f"v_lshrrev_b32 {rn(t1)}, 5, {L}", [t1], [VL])
    e.salu(f"s_mul_i32 {S_T1}, {S_W}, {EFROW}")
    v(f"v_lshlrev_b32 {rn(t2)}, 4, {rn(t0)}", [t2], [t0])
    v(f"v_add_u32 {rn(vefr)}, {S_T1}, {rn(t2)}", [vefr], [t2])
    v(f"v_lshl_add_u32 {rn(t3)}, {rn(t1)}, 12, {rn(t2)}", [t3], [t1, t2], vop3=True)
    v(f"v_add_u32 {rn(vegr)}, {EG + uu0 * 1024}, {rn(t3)}", [vegr], [t3])
    e.salu(f"s_mul_i32 {S_T1}, {S_W}, {8 * HROW}")
    v(f"v_mul_u32_u24 {rn(t3)}, {4 * HROW}, {rn(t1)}", [t3], [t1])
    v(f"v_add3_u32 {rn(t3)}, {rn(t3)}, {rn(t2)}, {S_T1}", [t3], [t3, t2], vop3=True)
    for i in range(3):
        v(f"v_add_u32 {rn(vjw[i])}, {JB[i] + uu0 * HROW}, {rn(t3)}", [vjw[i]], [t3])


def c_consts_ge(e):
    v = V(e)
    t0, t1, t2, t3, t4, t5, t6, t7 = T
    L = rn(VL)
    v(f"v_and_b32 {rn(t0)}, 15, {L}", [t0], [VL])
    v(f"v_lshrrev_b32 {rn(t1)}, 4, {L}", [t1], [VL])
    v(f"v_and_b32 {rn(t2)}, 1, {rn(t0)}", [t2], [t0])
    v(f"v_lshl_or_b32 {rn(t2)}, {rn(t2)}, 2, {rn(t1)}", [t2], [t2, t1], vop3=True)
    perm_q(e, t4, t2, t6, t7)
    v(f"v_lshlrev_b32 {rn(t3)}, 3, {rn(t4)}", [t3], [t4])
    v(f"v_add_u32 {rn(t3)}, {S_W128}, {rn(t3)}", [t3], [t3])
    v(f"v_mov_b32 {rn(t5)}, {DUMMY}", [t5], [])
    v(f"v_cmp_gt_u32 vcc, 2, {rn(t0)}", [], [t0], sw=["vcc"])
    v(f"v_cndmask_b32 {rn(VHH)}, {rn(t5)}, {rn(t3)}, vcc", [VHH], [t5, t3], sr=["vcc"])
    v(f"v_mov_b32 {rn(VMAX)}, 0", [VMAX], [])
    e.salu(f"s_lshl_b32 {S_T1}, {S_W}, 13")
    e.salu(f"s_add_u32 {S_T1}, {S_T1}, {FB}")
    v(f"v_lshlrev_b32 {rn(t3)}, 4, {L}", [t3], [VL])
    v(f"v_add_u32 {rn(VGR)}, {S_T1}, {rn(t3)}", [VGR], [t3])
    e.salu(f"s_lshl_b32 {S_T1}, {S_W}, 12")
    e.salu(f"s_add_u32 {S_T1}, {S_T1}, {J2}")
    v(f"v_add_u32 {rn(VEGW)}, {S_T1}, {rn(t3)}", [VEGW], [t3])


def c_consts_ops(e):
    v = V(e)
    t0, t1, t2, t3, t4, t5, t6, t7 = T
    L = rn(VL)
    ops = []
    a = lambda *args, **kw: ops.append(lambda: v(*args, **kw))
    a(f"v_and_b32 {rn(t0)}, 31, {L}", [t0], [VL])
    a(f"v_lshrrev_b32 {rn(t1)}, 5, {L}", [t1], [VL])
    for tap, r0 in enumerate((66, 1, 67)):
        a(f"v_add_u32 {rn(t4)}, {r0}, {rn(t0)}", [t4], [t0])
        a(f"v_bfe_u32 {rn(t5)}, {rn(t4)}, 1, 3", [t5], [t4], vop3=True)
        a(f"v_xor_b32 {rn(t5)}, {rn(t1)}, {rn(t5)}", [t5], [t1, t5])
        a(f"v_lshlrev_b32 {rn(t4)}, 7, {rn(t4)}", [t4], [t4])
        a(f"v_lshl_add_u32 {rn(VXB[tap][0])}, {rn(t5)}, 4, {rn(t4)}", [VXB[tap][0]], [t5, t4], vop3=True)
        for k in range(1, 4):
            a(f"v_xor_b32 {rn(VXB[tap][k])}, {32 * k}, {rn(VXB[tap][0])}", [VXB[tap][k]], [VXB[tap][0]])
    a(f"v_mul_u32_u24 {rn(t2)}, {HROW}, {rn(t0)}", [t2], [t0])
    a(f"v_lshl_add_u32 {rn(VHR)}, {rn(t1)}, 4, {rn(t2)}", [VHR], [t1, t2], vop3=True)
    a(f"v_add_u32 {rn(VFW)}, {S_W128}, {rn(VHR)}", [VFW], [VHR])
    a(f"v_and_b32 {rn(t2)}, 1, {rn(t0)}", [t2], [t0])
    a(f"v_cmp_eq_u32 vcc, 1, {rn(t2)}", [], [t2], sw=["vcc"])
    a(f"v_mov_b32 {rn(t3)}, 1", [t3], [])
    a(f"v_cndmask_b32 {rn(t3)}, {HEVEN}, {rn(t3)}, vcc", [t3], [t3], sr=["vcc"])
    a(f"v_lshrrev_b32 {rn(t2)}, 1, {rn(t0)}", [t2], [t0])
    a(f"v_add_u32 {rn(t2)}, {rn(t2)}, {rn(t3)}", [t2], [t2, t3])
    a(f"v_mul_u32_u24 {rn(t2)}, {HROW}, {rn(t2)}", [t2], [t2])
    a(f"v_lshl_add_u32 {rn(t2)}, {rn(t1)}, 4, {rn(t2)}", [t2], [t1, t2], vop3=True)
    a(f"v_add_u32 {rn(VHW)}, {S_W128}, {rn(t2)}", [VHW], [t2])
    a(f"v_mul_u32_u24 {rn(t2)}, {EFROW}, {rn(t0)}", [t2], [t0])
    a(f"v_lshl_add_u32 {rn(t2)}, {rn(t1)}, 4, {rn(t2)}", [t2], [t1, t2], vop3=True)
    a(f"v_add_u32 {rn(VEFW)}, {S_W128}, {rn(t2)}", [VEFW], [t2])
    a(f"v_and_b32 {rn(t6)}, 15, {L}", [t6], [VL])
    a(f"v_lshrrev_b32 {rn(t7)}, 4, {L}", [t7], [VL])
    a(f"v_and_b32 {rn(t2)}, 1, {rn(t7)}", [t2], [t7])
    a(f"v_lshrrev_b32 {rn(t3)}, 1, {rn(t7)}", [t3], [t7])
    a(f"v_mov_b32 {rn(VC1)}, 133", [VC1], [])
    a(f"v_cmp_eq_u32 vcc, {rn(t6)}, {rn(t2)}", [], [t6, t2], sw=["vcc"])
    for tap, rh in enumerate((65, 0, 66)):
        a(f"v_mov_b32 {rn(t5)}, {rh}", [t5], [])
        a(f"v_cndmask_b32 {rn(t4)}, {rn(VC1)}, {rn(t5)}, vcc", [t4], [VC1, t5], sr=["vcc"])
        a(f"v_bfe_u32 {rn(t5)}, {rn(t4)}, 1, 3", [t5], [t4], vop3=True)
        a(f"v_xor_b32 {rn(t5)}, {rn(t3)}, {rn(t5)}", [t5], [t3, t5])
        a(f"v_lshlrev_b32 {rn(t4)}, 7, {rn(t4)}", [t4], [t4])
        a(f"v_lshl_add_u32 {rn(VXH[tap][0])}, {rn(t5)}, 4, {rn(t4)}", [VXH[tap][0]], [t5, t4], vop3=True)
        for k in range(1, 4):
            a(f"v_xor_b32 {rn(VXH[tap][k])}, {32 * k}, {rn(VXH[tap][0])}", [VXH[tap][k]], [VXH[tap][0]])
    a(f"v_mov_b32 {rn(VC1P)}, {f32(GC1)}", [VC1P], [])
    a(f"v_mov_b32 {rn(VC1P + 1)}, {f32(GC1)}", [VC1P + 1], [])
    return ops


def gelu_list(e, regs, packs, tmps, vc1=None):
    v = V(e)
    ops = []
    a = lambda *args, **kw: ops.append(lambda: v(*args, **kw))
    for g0 in range(0, len(regs), 4):
        xs = regs[g0:g0 + 4]
        ts = tmps[:len(xs)]
        prs = [(xs[i], ts[i]) for i in range(0, len(xs), 2)]
        for x, t in prs:
            a(f"v_pk_mul_f32 {rn(t, 2)}, {rn(x, 2)}, {rn(x, 2)}", [t, t + 1], [x, x + 1], vop3=True)
        for x, t in prs:
            a(f"v_pk_fma_f32 {rn(t, 2)}, {rn(t, 2)}, {rn(vc1, 2)}, s[4:5]", [t, t + 1], [t, t + 1, vc1, vc1 + 1], vop3=True)
        for x, t in prs:
            a(f"v_pk_mul_f32 {rn(t, 2)}, {rn(x, 2)}, {rn(t, 2)}", [t, t + 1], [x, x + 1, t, t + 1], vop3=True)
        for t in ts:
            a(f"v_exp_f32 {rn(t)}, {rn(t)}", [t], [t], trans=True)
        for x, t in prs:
            a(f"v_pk_add_f32 {rn(t, 2)}, {rn(t, 2)}, 1.0 op_sel_hi:[1,0]", [t, t + 1], [t, t + 1], vop3=True)
        for t in ts:
            a(f"v_rcp_f32 {rn(t)}, {rn(t)}", [t], [t], trans=True)
        for x, t in prs:
            a(f"v_pk_mul_f32 {rn(x, 2)}, {rn(x, 2)}, {rn(t, 2)}", [x, x + 1], [x, x + 1, t, t + 1], vop3=True)
        for i in range(0, len(xs), 2):
            p = packs[(g0 + i) // 2]
            a(f"v_cvt_pk_bf16_f32 {rn(p)}, {rn(xs[i])}, {rn(xs[i + 1])}", [p], [xs[i], xs[i + 1]], vop3=True)
    return ops


def run_with_pump(ops, pump, every=30):
    for i, f in enumerate(ops):
        f()
        if i % every == every - 1:
            pump()


def exp_stage(e, src, keep, dst, n, vmax, pump=None):
    v = V(e)
    for i in range(0, n, 2):
        v(f"v_pk_mul_f32 {rn(keep + i, 2)}, {rn(src + i, 2)}, s[6:7]", [keep + i, keep + i + 1], [src + i, src + i + 1], vop3=True)
    for i in range(n):
        v(f"v_exp_f32 {rn(dst + i)}, {rn(keep + i)}", [dst + i], [keep + i], trans=True)
        if i % 2 == 1:
            v(f"v_max3_f32 {rn(vmax)}, |{rn(keep + i - 1)}|, |{rn(keep + i)}|, {rn(vmax)}",
              [vmax], [keep + i - 1, keep + i, vmax], vop3=True)
        if pump and i % 8 == 7:
            pump()


def publish_flag(e, vmax, slot_extra):
    e.salu(f"s_mov_b32 {S_LIM}, {f32(125.0)}")
    e.valu(f"v_cmp_lt_f32 vcc, {S_LIM}, {rn(vmax)}", [], [vmax], sw=["vcc"])
    e.nop(2)
    e.salu("s_cmp_lg_u64 vcc, 0")
    e.salu(f"s_cselect_b32 {S_FLAG}, 1, 0")
    e.salu(f"s_lshl_b32 {S_T1}, {S_W}, 2")
    e.salu(f"s_add_u32 {S_T1}, {S_T1}, {FLAG + slot_extra}")
    e.valu(f"v_mov_b32 {rn(T[0])}, {S_FLAG}", [T[0]], [])
    e.valu(f"v_mov_b32 {rn(T[1])}, {S_T1}", [T[1]], [])
    e.ds_write(1, T[1], T[0])


def flag_check(e, label):
    v = V(e)
    v(f"v_mov_b32 {rn(T[1])}, {FLAG}", [T[1]], [])
    e.ds_read(4, T[2], T[1])
    v(f"v_or3_b32 {rn(T[0])}, {rn(T[2])}, {rn(T[3])}, {rn(T[4])}", [T[0]], [T[2], T[3], T[4]], vop3=True)
    v(f"v_or_b32 {rn(T[0])}, {rn(T[0])}, {rn(T[5])}", [T[0]], [T[0], T[5]])
    e.ds_read(4, T[2], T[1], 16)
    v(f"v_or3_b32 {rn(T[0])}, {rn(T[2])}, {rn(T[3])}, {rn(T[0])}", [T[0]], [T[2], T[3], T[0]], vop3=True)
    v(f"v_or3_b32 {rn(T[0])}, {rn(T[4])}, {rn(T[5])}, {rn(T[0])}", [T[0]], [T[4], T[5], T[0]], vop3=True)
    e.rfl(S_FLAG, T[0])
    e.salu(f"s_cmp_lg_u32 {S_FLAG}, 0")
    e.salu(f"s_cbranch_scc1 {label}")


def ef_read_ops(e, vefr, EF):
    return [lambda: e.ds_read(4, EF, vefr, 0),
            lambda: e.ds_read(4, EF + 4, vefr, 512),
            lambda: e.valu(f"v_add_u32 {rn(vefr)}, {4 * EFROW}, {rn(vefr)}", [vefr], [vefr])]


def produce_ops(e, slow, vefr, vjw, EGb, EF, WK, PK, nrows, pk=False):
    v = V(e)
    ops = []
    for uu in range(nrows):
        for h in range(2):
            els = range(4 * h, 4 * h + 4)
            for i in els:
                if pk and not slow:
                    if i % 2 == 0:
                        g = EGb + 8 * uu + i
                        ops.append(lambda i=i, g=g: v(
                            f"v_pk_fma_f32 {rn(WK + i, 2)}, {rn(EF + i, 2)}, {rn(g, 2)}, -0.5 op_sel_hi:[1,1,0]",
                            [WK + i, WK + i + 1], [EF + i, EF + i + 1, g, g + 1], vop3=True))
                elif slow:
                    ops.append(lambda i=i, uu=uu: v(
                        f"v_add_f32 {rn(WK + i)}, {rn(EF + i)}, {rn(EGb + 8 * uu + i)}",
                        [WK + i], [EF + i, EGb + 8 * uu + i]))
                else:
                    ops.append(lambda i=i, uu=uu: v(
                        f"v_fma_f32 {rn(WK + i)}, {rn(EF + i)}, {rn(EGb + 8 * uu + i)}, -0.5",
                        [WK + i], [EF + i, EGb + 8 * uu + i], vop3=True))
        if uu == nrows - 1:
            ops += ef_read_ops(e, vefr, EF)
        for h in range(2):
            els = range(4 * h, 4 * h + 4)
            if slow:
                for i in els:
                    ops.append(lambda i=i: v(f"v_exp_f32 {rn(WK + i)}, {rn(WK + i)}", [WK + i], [WK + i], trans=True))
                for i in els:
                    ops.append(lambda i=i: v(f"v_add_f32 {rn(WK + i)}, 1.0, {rn(WK + i)}", [WK + i], [WK + i]))
            for i in els:
                ops.append(lambda i=i: v(f"v_rcp_f32 {rn(WK + i)}, {rn(WK + i)}", [WK + i], [WK + i], trans=True))
            for i in (els if not X_FOLD else ()):
                if slow:
                    ops.append(lambda i=i: v(f"v_fma_f32 {rn(WK + i)}, {rn(WK + i)}, -2.0, 1.0",
                                             [WK + i], [WK + i], vop3=True))
                elif pk:
                    if i % 2 == 0:
                        ops.append(lambda i=i: v(f"v_pk_add_f32 {rn(WK + i, 2)}, {rn(WK + i, 2)}, 1.0 op_sel_hi:[1,0]",
                                                 [WK + i, WK + i + 1], [WK + i, WK + i + 1], vop3=True))
                else:
                    ops.append(lambda i=i: v(f"v_add_f32 {rn(WK + i)}, 1.0, {rn(WK + i)}", [WK + i], [WK + i]))
            for i in (4 * h, 4 * h + 2):
                ops.append(lambda i=i: v(
                    f"v_cvt_pk_bf16_f32 {rn(PK + i // 2)}, {rn(WK + i)}, {rn(WK + i + 1)}",
                    [PK + i // 2], [WK + i, WK + i + 1], vop3=True))
        ops.append(lambda uu=uu: e.ds_write(4, vjw, PK, uu * HROW))
    return ops


SJ = ["s49", "s50", "s51"]
STB = ["s45", "s46", "s47"]


def init_steps(e):
    for i in range(3):
        e.salu(f"s_mov_b32 {SJ[i]}, {(JB[(i + 1) % 3] - JB[i]) & 0xffffffff}")


def rot_steps(e):
    def f():
        for r in (SJ,):
            e.salu(f"s_mov_b32 {S_T2}, {r[0]}")
            e.salu(f"s_mov_b32 {r[0]}, {r[1]}")
            e.salu(f"s_mov_b32 {r[1]}, {r[2]}")
            e.salu(f"s_mov_b32 {r[2]}, {S_T2}")
    return [f]


def step(e, reg, sgpr):
    return lambda: e.valu(f"v_add_u32 {rn(reg)}, {sgpr}, {rn(reg)}", [reg], [reg])


def rotate3(e, regs, tmp):
    v = V(e)
    return [lambda: v(f"v_mov_b32 {rn(tmp)}, {rn(regs[0])}", [tmp], [regs[0]]),
            lambda: v(f"v_mov_b32 {rn(regs[0])}, {rn(regs[1])}", [regs[0]], [regs[1]]),
            lambda: v(f"v_mov_b32 {rn(regs[1])}, {rn(regs[2])}", [regs[1]], [regs[2]]),
            lambda: v(f"v_mov_b32 {rn(regs[2])}, {rn(tmp)}", [regs[2]], [tmp])]


def readback_store_ops(e, vor, vos, regs):
    ops = []
    for i in range(4):
        ops.append(lambda i=i: e.ds_read(4, regs + 4 * i, vor, i * 8 * OROW))
    for i in range(4):
        def st(i=i):
            e.bstore(4, regs + 4 * i, vos, SOUT, S_OS, flags=ST_FLAGS)
            e.salu(f"s_add_u32 {S_OS}, {S_OS}, 4096")
        ops.append(st)
    return ops


def loop_fence(e):
    e.pend = {r: p for r, p in e.pend.items() if p[0] == 'v'}
    e.ldone = e.lseq


def gen_compute(e):
    v = V(e)
    stamp = Stamper(e)
    e.label("L_compute")
    e.salu(f"s_cmp_ge_u32 s2, {NWG}")
    e.salu("s_cbranch_scc1 L_end")
    st = Stream(e, RS, VS, FBUF)
    for s in range(4):
        for tap in range(3):
            for k in range(4):
                st.add(SW1, (f"s{44 + s}", tap * 131072 + 16 * k * 512))
    kord = [[4 * w + 2 * half + j for w in range(4) for j in range(2)] for half in range(2)]
    c2 = [(tap, kc) for half in range(2) for tap in range(3) for kc in kord[half]]
    cf = [kc for half in range(2) for kc in kord[half]]
    for tap, kc in c2:
        st.add(SW2, (tap * 16 + kc) * 8192)
    for kc in cf:
        st.add(SWF, kc * 8192)
    U_1, U_2, U_F = 0, 48, 96

    stamp()
    e.salu(f"s_lshl_b32 {S_RING}, {S_W}, 14")
    e.salu(f"s_add_u32 {S_RING}, {S_RING}, {RING}")
    for i in range(4):
        e.salu(f"s_lshl_b32 s{44 + i}, s{44 + i}, 8")
    for _ in range(C_INIT):
        st.do_dma()
    tr_consts(e, False)
    c_consts_ge(e)
    for f in c_consts_ops(e):
        f()
    for _ in range(RS - C_INIT):
        st.do_dma()

    steps = [(s, tap, k) for s in range(4) for tap in range(3) for k in range(4)]

    def b_reads1(i):
        s, tap, k = steps[i]
        base = BFR + 12 * (i % 2)
        return [lambda: e.ds_read(4, base, VXB[tap][k], s * XSL),
                lambda: e.ds_read(4, base + 4, VXB[tap][k], s * XSL + 4096),
                lambda: e.ds_read(4, base + 8, VXH[tap][k], s * XSL)]

    for i, (s, tap, k) in enumerate(steps):
        u = U_1 + i
        if i in (24, 36) and not XJIT:
            stamp()
        if i in ((0, 12, 24, 36) if XJIT else (0, 12)):
            st.ensure(u)
            stamp("bar")
            e.raw("    s_barrier")
            stamp()
            stamp("bar")
            for f in b_reads1(i):
                f()
        st.ensure(u + (1 if "ahead" in X_C1 else 0))
        d = st.dest(u)
        bb = BFR + 12 * (i % 2)
        mains = []
        for nt in range(2):
            for mt in range(2):
                a = ACC + 16 * (2 * mt + nt)
                mains.append(lambda a=a, mt=mt, nt=nt: e.mfma(True, a, d + 4 * mt, bb + 4 * nt, a if i else None))
        for mt in range(2):
            a = HACC + 4 * mt
            mains.append(lambda a=a, mt=mt: e.mfma(False, a, d + 4 * mt, bb + 8, a if i else None))
        br = b_reads1(i + 1) if (i + 1 < 48 and i + 1 not in ((12, 24, 36) if XJIT else (12,))) else []
        mains[0]()
        for f in br:
            f()
        mains[1]()
        st.pump(1)
        mains[2]()
        st.pump(1)
        mains[3]()
        if "nohalo" not in X_C1:
            mains[4]()
            mains[5]()
        st.cu += 1
    stamp()
    e.raw("    s_barrier")
    stamp()
    pump = lambda: st.pump(2)
    gt = rng(TMP + 24, 4)
    late2 = [lambda: prod_consts(e, VEFR, VEGR, PJW, 0), lambda: init_steps(e)]

    def epi1():
        ops = []
        for nt in range(2):
            a = ACC + 16 * nt
            pk = TMP + 8 * nt
            ops += gelu_list(e, rng(a, 16), rng(pk, 8), gt, VC1P)
            for h in range(2):
                ops.append(lambda pk=pk, h=h, nt=nt: e.ds_write(4, VHW, pk + 4 * h, nt * 16 * HROW + 32 * h))
        ops += gelu_list(e, rng(HACC, 8), rng(TMP + 16, 4), gt, VC1P)
        for mt in range(2):
            ops.append(lambda mt=mt: e.ds_write(2, VHH, TMP + 16 + 2 * mt, 64 * mt))
        return ops

    def epi2():
        ops = gelu_list(e, rng(ACC, 16), rng(TMP, 8), gt, VC1P)
        for h in range(2):
            ops.append(lambda h=h: e.ds_write(4, VFW, TMP + 4 * h, FB + 32 * h))
        return ops

    def small_gemm(ubase, lo, hi, boff, acc, side=()):
        def bread(i):
            return lambda: e.ds_read(4, BFR + 4 * (i % 4), VHR, boff(i))
        bread(lo)()
        bread(lo + 1)()
        n = hi - lo
        for i in range(lo, hi):
            u = ubase + i
            st.ensure(min(u + AHEAD, len(st.units) - 1))
            while st.can_dma():
                st.do_dma()
            d = st.dest(u)
            mains = [lambda mt=mt: e.mfma(True, acc + 16 * mt, d + 4 * mt, BFR + 4 * (i % 4),
                                          acc + 16 * mt if i else None) for mt in range(2)]
            fill = []
            if i + 2 < hi:
                fill.append(bread(i + 2))
            fill += [lambda: st.pump(1), lambda: st.pump(1)]
            fill = merge(list(side[len(side) * (i - lo) // n:len(side) * (i - lo + 1) // n]), fill)
            interleave(mains, fill)
            st.cu += 1

    for q in range(8):
        e.ds_write(4, VGR, ACC + 32 + 4 * q, 1024 * q)
    e.barrier()
    extra = [ACC + 32 + 8 * i for i in range(4)]
    st.add_slots(extra + [KEEPB, BFR + 16])
    run_with_pump(epi1(), pump, every=PUMP_EVERY)
    e.barrier()
    stamp()
    tapoff = [0, HEVEN * HROW, HROW]
    boff2 = lambda i: tapoff[c2[i][0]] + 32 * c2[i][1]
    st.retired = set(extra)
    small_gemm(U_2, 0, 48, boff2, ACC, late2)
    assert all(st.slot_of[u] not in extra for u in range(st.cu, st.tu))
    st.free = [d for d in st.free if d not in extra]
    e.raw("    s_barrier")
    stamp()
    for q in range(4):
        e.ds_write(4, VEGW, ACC + 16 + 4 * q, 1024 * q)
    e.barrier()
    run_with_pump(epi2(), pump)
    e.barrier()
    stamp()
    bofff = lambda i: FB + 32 * cf[i]
    small_gemm(U_F, 0, 16, bofff, ACC + 32)
    exp_stage(e, ACC + 32, KEEPA, ACC, 32, VMAX)
    for mt in range(2):
        for h in range(2):
            for pl in range(2):
                e.ds_write(4, VEFW, ACC + 16 * mt + 8 * h + 4 * pl, 64 * mt + 32 * h + 512 * pl)
    publish_flag(e, VMAX, 0)
    e.barrier()
    stamp()
    flag_check(e, "L_c_slow")
    snap = (copy.deepcopy(e.pend), e.lseq, e.vseq, e.ldone, e.vdone)

    def out_stage(slow, tag):
        for uu in range(PROWS):
            for pl in range(2):
                e.ds_read(4, PEG + 8 * uu + 4 * pl, VEGR, uu * 1024 + pl * 512)
        for f in ef_read_ops(e, VEFR, PEF):
            f()
        for c in range(2):
            for f in produce_ops(e, slow, VEFR, PJW[c], PEG, PEF, PWK, PPK, 2, pk=True):
                f()
        e.salu(f"s_mov_b32 {S_CNT}, 6")
        e.barrier()
        if not slow:
            stamp()
        loop_fence(e)
        if STAMPS:
            e.salu("s_mov_b32 s101, 0")
        e.label(f"L_c_loop{tag}")
        stamp.loop_top()
        ops = produce_ops(e, slow, VEFR, PJW[2], PEG, PEF, PWK, PPK, PROWS)
        for f in ops + [step(e, PJW[2], SJ[2])] + rot_steps(e):
            f()
        stamp.loop_pre_barrier()
        e.salu(f"s_sub_u32 {S_CNT}, {S_CNT}, 1")
        e.salu(f"s_cmp_lg_u32 {S_CNT}, 0")
        e.barrier()
        e.salu(f"s_cbranch_scc1 L_c_loop{tag}")
        if not slow:
            stamp()

    out_stage(False, "")
    if STAMPS:
        e.wait_all_vm()
    stamp()
    stamp.dump(False)
    e.salu("s_endpgm")

    e.label("L_c_slow")
    (e.pend, e.lseq, e.vseq, e.ldone, e.vdone) = snap
    e.wr.clear(); e.stw.clear(); e.sgpr_valu.clear()
    e.nop(8)
    e.barrier()
    for mt in range(2):
        for h in range(2):
            for pl in range(2):
                e.ds_write(4, VEFW, KEEPA + 16 * mt + 8 * h + 4 * pl, 64 * mt + 32 * h + 512 * pl)
    e.barrier()
    out_stage(True, "s")
    e.salu("s_endpgm")


def gen_helper(e):
    v = V(e)
    stamp = Stamper(e)
    t0, t1, t2, t3, t4, t5, t6, t7 = T
    L = rn(VL)
    SDBG, SWS = 40, 52
    HVG, HVEGW, HVST, GMAX = 39, 25, 24, 23
    RAW, NFL = MACC, 4
    GFR = MPO
    GEF = 88
    GACC, GKEEP = 104, 112
    e.label("L_helper")
    e.salu("s_setprio 3")
    stamp()
    e.salu(f"s_lshl_b32 {S_RING}, {S_W}, 12")
    e.salu(f"s_add_u32 {S_RING}, {S_RING}, {J2}")
    e.salu(f"s_cmp_ge_u32 s2, 125")
    e.salu(f"s_cselect_b32 {S_B}, 1, 0")
    e.salu(f"s_cmp_ge_u32 s2, {NWG}")
    e.salu("s_cbranch_scc1 L_h_setup2")
    v(f"v_lshlrev_b32 {rn(HVP)}, 6, {L}", [HVP], [VL])
    e.salu(f"s_lshl_b32 {S_LIM}, s48, 2")
    e.salu(f"s_add_u32 {S_LIM}, {S_LIM}, {S_W}")
    e.salu(f"s_lshl_b32 {S_LIM}, {S_LIM}, 12")
    HVT = 38

    def touch(srds, big):
        e.salu(f"s_lshl_b32 {S_T2}, s48, 2")
        e.salu(f"s_add_u32 {S_T2}, {S_T2}, {S_W}")
        e.salu(f"s_lshl_b32 {S_T2}, {S_T2}, 12")
        for rep in range(NTOUCH if big else 1):
            if rep:
                e.salu(f"s_add_u32 {S_T2}, {S_T2}, {43 << 12}")
            e.salu(f"s_and_b32 {S_T2}, {S_T2}, {((128 if big else 32) << 12) - 1}")
            for srd in srds:
                e.bload(1, 104, HVT, srd, S_T2)

    v(f"v_lshlrev_b32 {rn(HVT)}, 6, {L}", [HVT], [VL])
    touch((SW1,), True)
    if TOUCH_MODE == 0:
        touch((SW2,), True)
        touch((SWF, SWO), False)
    e.salu(f"s_mul_i32 {S_T1}, {S_B}, 125")
    e.salu(f"s_sub_u32 {S_T0}, s2, {S_T1}")
    e.salu(f"s_lshl_b32 {S_T0}, {S_T0}, 7")
    e.salu(f"s_lshl_b32 {S_T1}, {S_W}, 3")
    e.salu(f"s_mul_i32 {S_CNT}, {S_B}, 16000")
    e.salu(f"s_lshl_b32 {S_D}, {S_W}, 10")
    v(f"v_mov_b32 {rn(HC)}, 133", [HC], [])
    v(f"v_bfrev_b32 {rn(HVMAX)}, 1", [HVMAX], [])
    v(f"v_lshrrev_b32 {rn(t6)}, 3, {L}", [t6], [VL])
    v(f"v_add_u32 {rn(t0)}, {S_T1}, {rn(t6)}", [t0], [t6])
    v(f"v_and_b32 {rn(t1)}, 7, {L}", [t1], [VL])
    xseq = {}

    def xconst(j):
        if j < 4:
            v(f"v_add_u32 {rn(t2)}, {32 * j}, {rn(t0)}", [t2], [t0])
        else:
            v(f"v_add_u32 {rn(t2)}, 128, {rn(t6)}", [t2], [t6])
        v(f"v_bfe_u32 {rn(t3)}, {rn(t2)}, 1, 3", [t3], [t2], vop3=True)
        v(f"v_xor_b32 {rn(t3)}, {rn(t1)}, {rn(t3)}", [t3], [t1, t3])
        v(f"v_lshlrev_b32 {rn(t4)}, 1, {rn(t2)}", [t4], [t2])
        v(f"v_cmp_lt_u32 vcc, 64, {rn(t2)}", [], [t2], sw=["vcc"])
        v(f"v_cndmask_b32 {rn(t5)}, 2, {rn(HC)}, vcc", [t5], [HC], sr=["vcc"])
        v(f"v_sub_u32 {rn(t4)}, {rn(t4)}, {rn(t5)}", [t4], [t4, t5])
        v(f"v_add_u32 {rn(t4)}, {S_T0}, {rn(t4)}", [t4], [t4])
        v(f"v_add_u32 {rn(t5)}, {S_CNT}, {rn(t4)}", [t5], [t4])
        v(f"v_lshlrev_b32 {rn(t5)}, 9, {rn(t5)}", [t5], [t5])
        v(f"v_lshl_add_u32 {rn(t5)}, {rn(t3)}, 4, {rn(t5)}", [t5], [t3, t5], vop3=True)
        if j < 4:
            v(f"v_cmp_gt_i32 vcc, 0, {rn(t4)}", [], [t4], sw=["vcc"])
        else:
            v(f"v_cmp_lt_u32 vcc, 130, {rn(t2)}", [], [t2], sw=["vcc"])
        v(f"v_cndmask_b32 {rn(HVX[j])}, {rn(t5)}, {rn(HVMAX)}, vcc", [HVX[j]], [t5, HVMAX], sr=["vcc"])

    def xdma(s, j):
        e.salu(f"s_add_u32 m0, {S_D}, {s * XSL + 4096 * j}", m0=True)
        xseq[s] = e.dma(HVX[j], SX, f"s{44 + s}", flags="nt")

    for j in range(4):
        xconst(j)
        xdma(0, j)
    xconst(4)
    e.salu(f"s_mul_i32 {S_T1}, {S_W}, {XSL}")
    e.salu(f"s_add_u32 {S_T2}, s48, {S_W}")
    e.salu(f"s_and_b32 {S_T2}, {S_T2}, 3")
    e.salu(f"s_lshl_b32 {S_T2}, {S_T2}, 7")
    e.salu(f"s_add_u32 m0, {S_T1}, 16384", m0=True)
    xseq[0] = e.dma(HVX[4], SX, S_T2, flags="nt")
    for j in range(4):
        xdma(1, j)
    if XALL:
        for s in range(2, 2 + XALL):
            for j in range(4):
                xdma(s, j)
    e.wait(vseq=xseq[0])
    e.raw("    s_barrier")
    stamp()
    for s in range(2 + XALL, 3 if XJIT else 4):
        for j in range(4):
            xdma(s, j)
    if TOUCH_MODE == 1:
        touch((SWO, SWF), False)
        touch((SW2,), True)
    e.label("L_h_setup2")
    e.salu("s_setprio 0")
    e.salu(f"s_sub_u32 {S_T1}, s2, {NWG}")
    e.salu(f"s_cmp_ge_u32 s2, {NWG}")
    e.salu(f"s_cselect_b32 {S_B}, {S_T1}, {S_B}")
    e.salu(f"s_load_dwordx2 s[{SDBG}:{SDBG + 1}], s[0:1], 64")
    e.salu(f"s_load_dwordx2 s[{SWS}:{SWS + 1}], s[0:1], 72")
    e.salu("s_waitcnt lgkmcnt(0)")
    e.salu(f"s_and_b32 s{SDBG + 1}, s{SDBG + 1}, 0xffff")
    e.salu(f"s_mov_b32 s{SDBG + 2}, 256")
    e.salu(f"s_mov_b32 s{SDBG + 3}, 0x20000")
    e.salu(f"s_and_b32 s{SWS + 1}, s{SWS + 1}, 0xffff")
    e.salu(f"s_mov_b32 s{SWS + 2}, {WS_OFF + 16384}")
    e.salu(f"s_mov_b32 s{SWS + 3}, 0x20000")
    tr_consts(e, False)
    v(f"v_and_b32 {rn(t0)}, 15, {L}", [t0], [VL])
    v(f"v_lshrrev_b32 {rn(t1)}, 4, {L}", [t1], [VL])
    v(f"v_xor_b32 {rn(t2)}, {rn(t0)}, {rn(t1)}", [t2], [t0, t1])
    v(f"v_and_b32 {rn(t2)}, 1, {rn(t2)}", [t2], [t2])
    v(f"v_lshrrev_b32 {rn(t3)}, 1, {rn(t0)}", [t3], [t0])
    e.salu(f"s_lshl_b32 {S_T1}, {S_B}, 3")
    v(f"v_add_u32 {rn(t3)}, {S_T1}, {rn(t3)}", [t3], [t3])
    v(f"v_lshlrev_b32 {rn(t3)}, 9, {rn(t3)}", [t3], [t3])
    v(f"v_lshrrev_b32 {rn(t4)}, 1, {rn(t1)}", [t4], [t1])
    v(f"v_lshl_add_u32 {rn(t3)}, {rn(t4)}, 4, {rn(t3)}", [t3], [t4, t3], vop3=True)
    v(f"v_lshl_or_b32 {rn(HVG)}, {rn(t2)}, 31, {rn(t3)}", [HVG], [t2, t3], vop3=True)
    v(f"v_and_b32 {rn(t2)}, 1, {rn(t0)}", [t2], [t0])
    v(f"v_lshl_or_b32 {rn(t2)}, {rn(t2)}, 2, {rn(t1)}", [t2], [t2, t1], vop3=True)
    perm_q(e, t4, t2, t6, t7)
    v(f"v_lshrrev_b32 {rn(t3)}, 1, {rn(t0)}", [t3], [t0])
    v(f"v_lshlrev_b32 {rn(t3)}, 10, {rn(t3)}", [t3], [t3])
    v(f"v_and_b32 {rn(t5)}, 1, {rn(t4)}", [t5], [t4])
    v(f"v_lshl_add_u32 {rn(t3)}, {rn(t5)}, 9, {rn(t3)}", [t3], [t5, t3], vop3=True)
    v(f"v_lshrrev_b32 {rn(t5)}, 1, {rn(t4)}", [t5], [t4])
    v(f"v_lshl_add_u32 {rn(t3)}, {rn(t5)}, 4, {rn(t3)}", [t3], [t5, t3], vop3=True)
    v(f"v_add_u32 {rn(t3)}, {S_W128}, {rn(t3)}", [t3], [t3])
    v(f"v_add_u32 {rn(HVEGW)}, {EG}, {rn(t3)}", [HVEGW], [t3])
    v(f"v_lshlrev_b32 {rn(t3)}, 4, {L}", [t3], [VL])
    v(f"v_add_u32 {rn(HVST)}, {S_RING}, {rn(t3)}", [HVST], [t3])
    v(f"v_mov_b32 {rn(GMAX)}, 0", [GMAX], [])
    e.salu(f"s_lshl_b32 {S_T0}, {S_B}, 2")
    e.salu(f"s_add_u32 {S_T0}, {S_T0}, {S_W}")
    e.salu(f"s_lshl_b32 {S_T0}, {S_T0}, 11")
    e.salu(f"s_add_u32 {S_T0}, {S_T0}, {WS_OFF}")
    e.salu(f"s_lshl_b32 {S_D}, {S_B}, 2")
    v(f"v_lshrrev_b32 {rn(t0)}, 3, {L}", [t0], [VL])
    v(f"v_lshlrev_b32 {rn(t0)}, 9, {rn(t0)}", [t0], [t0])
    v(f"v_add_u32 {rn(t0)}, {S_W128}, {rn(t0)}", [t0], [t0])
    v(f"v_and_b32 {rn(t1)}, 7, {L}", [t1], [VL])
    v(f"v_lshrrev_b32 {rn(t2)}, 3, {L}", [t2], [VL])
    v(f"v_and_b32 {rn(t2)}, 2, {rn(t2)}", [t2], [t2])
    v(f"v_xor_b32 {rn(t2)}, {rn(t1)}, {rn(t2)}", [t2], [t1, t2])
    v(f"v_lshl_add_u32 {rn(VWO0)}, {rn(t2)}, 4, {rn(t0)}", [VWO0], [t2, t0], vop3=True)
    v(f"v_add_u32 {rn(VWO1)}, 3072, {rn(VWO0)}", [VWO1], [VWO0])
    tr_consts(e, True)
    prod_consts(e, MEFR, MEGR, MJW, 2)
    v(f"v_mul_u32_u24 {rn(t2)}, {HROW}, {rn(t0)}", [t2], [t0])
    v(f"v_lshl_add_u32 {rn(t2)}, {rn(t1)}, 4, {rn(t2)}", [t2], [t1, t2], vop3=True)
    for i in range(2):
        v(f"v_add_u32 {rn(MJR[i])}, {JB[i]}, {rn(t2)}", [MJR[i]], [t2])
    e.salu(f"s_lshl_b32 {S_T2}, {S_W}, 14")
    e.salu(f"s_add_u32 {S_T2}, {S_T2}, {RING}")
    v(f"v_mul_u32_u24 {rn(t2)}, {OROW}, {rn(t0)}", [t2], [t0])
    v(f"v_lshl_add_u32 {rn(t2)}, {rn(t1)}, 6, {rn(t2)}", [t2], [t1, t2], vop3=True)
    v(f"v_add3_u32 {rn(MOW)}, {rn(t2)}, {S_T2}, 0", [MOW], [t2], vop3=True)
    store_consts(e, MOR, MOS, S_T2)
    HHW, HFW, HC1, HRAW = 32, 37, 100, 22
    v(f"v_and_b32 {rn(t0)}, 31, {L}", [t0], [VL])
    v(f"v_lshrrev_b32 {rn(t1)}, 5, {L}", [t1], [VL])
    v(f"v_mul_u32_u24 {rn(t2)}, {HROW}, {rn(t0)}", [t2], [t0])
    v(f"v_lshl_add_u32 {rn(t2)}, {rn(t1)}, 4, {rn(t2)}", [t2], [t1, t2], vop3=True)
    v(f"v_add_u32 {rn(HFW)}, {S_W128}, {rn(t2)}", [HFW], [t2])
    v(f"v_and_b32 {rn(t2)}, 1, {rn(t0)}", [t2], [t0])
    v(f"v_cmp_eq_u32 vcc, 1, {rn(t2)}", [], [t2], sw=["vcc"])
    v(f"v_mov_b32 {rn(t3)}, 1", [t3], [])
    v(f"v_cndmask_b32 {rn(t3)}, {HEVEN}, {rn(t3)}, vcc", [t3], [t3], sr=["vcc"])
    v(f"v_lshrrev_b32 {rn(t2)}, 1, {rn(t0)}", [t2], [t0])
    v(f"v_add_u32 {rn(t2)}, {rn(t2)}, {rn(t3)}", [t2], [t2, t3])
    v(f"v_mul_u32_u24 {rn(t2)}, {HROW}, {rn(t2)}", [t2], [t2])
    v(f"v_lshl_add_u32 {rn(t2)}, {rn(t1)}, 4, {rn(t2)}", [t2], [t1, t2], vop3=True)
    v(f"v_add_u32 {rn(HHW)}, {S_W128}, {rn(t2)}", [HHW], [t2])
    v(f"v_mov_b32 {rn(HC1)}, {f32(GC1)}", [HC1], [])
    v(f"v_mov_b32 {rn(HC1 + 1)}, {f32(GC1)}", [HC1 + 1], [])
    e.salu(f"s_lshl_b32 {S_T1}, {S_W}, 13")
    e.salu(f"s_add_u32 {S_T1}, {S_T1}, {FB}")
    v(f"v_lshlrev_b32 {rn(t3)}, 4, {L}", [t3], [VL])
    v(f"v_add_u32 {rn(HRAW)}, {S_T1}, {rn(t3)}", [HRAW], [t3])
    e.salu(f"s_cmp_ge_u32 s2, {NWG}")
    e.salu("s_cbranch_scc1 L_ge")
    if XJIT:
        e.salu(f"s_lshl_b32 {S_LIM}, {S_W}, 10")
        e.wait(vseq=xseq[1])
        e.raw("    s_barrier")
        for j in range(4):
            e.salu(f"s_add_u32 m0, {S_LIM}, {3 * XSL + 4096 * j}", m0=True)
            xseq[3] = e.dma(HVX[j], SX, "s47", flags="nt")
        e.wait(vseq=xseq[2])
        e.raw("    s_barrier")
    e.wait(vseq=xseq[3])
    e.raw("    s_barrier")
    stamp()
    if TOUCH_MODE == 2:
        v(f"v_lshlrev_b32 {rn(HVT)}, 6, {L}", [HVT], [VL])
        touch((SWO, SWF), False)
        touch((SW2,), True)

    def unit_ops(srd, wo, lo=0, hi=16, raw=RAW):
        trseq = {}
        ops = []

        def load(u):
            e.salu(f"s_mov_b32 {S_SOFF}, {u * 8192}")
            r = raw + 8 * (u % NFL)
            e.bload(4, r, VWO0 if wo else VW0, srd, S_SOFF)
            e.bload(4, r + 4, VWO1 if wo else VW1, srd, S_SOFF, off=1024)
            if not wo:
                e.bload(4, GFR + 4 * (u % 4), HVG, SG, 0, off=32 * u)

        def stage(u):
            r = raw + 8 * (u % NFL)
            slot = (u % 2) * 2048
            if u - 2 >= lo:
                e.wait(lseq=trseq[u - 2])
            e.ds_write(4, HVST, r, slot)
            e.ds_write(4, HVST, r + 4, slot + 1024)
            d = WO_DEST[u] if wo else GEF + 8 * (u % 2)
            va = VTRO if wo else VTR
            for mt in range(2):
                for jj in range(2):
                    trseq[u] = e.ds_read(2, d + 4 * mt + 2 * jj, va[mt], slot + jj * 512, tr=True)

        def mm(u):
            dp = GEF + 8 * (u % 2)
            for mt in range(2):
                e.mfma(False, GACC + 4 * mt, dp + 4 * mt, GFR + 4 * (u % 4), GACC + 4 * mt if u else None)

        nfl = NFL if wo else NFL - 1
        for u in range(lo, min(lo + nfl, hi)):
            ops.append(lambda u=u: load(u))
        for u in range(lo, hi + 1):
            if u < hi:
                ops.append(lambda u=u: stage(u))
            if not wo and u >= 1:
                ops.append(lambda u=u: mm(u - 1))
            if u + nfl < hi:
                ops.append(lambda u=u: load(u + nfl))
        return ops

    def dma_unit_ops(lo, hi):
        dseq, tseq = {}, {}
        ops = []

        def dma(u):
            if u - 2 >= lo:
                e.wait(lseq=tseq[u - 2])
            e.salu(f"s_add_u32 m0, {S_RING}, {(u % 2) * 2048}", m0=True)
            e.salu(f"s_mov_b32 {S_SOFF}, {u * 8192}")
            e.dma(VWO0, SWO, S_SOFF)
            dseq[u] = e.dma(VWO1, SWO, S_SOFF, off=1024)

        def tr(u):
            e.wait(vseq=dseq[u])
            for mt in range(2):
                for jj in range(2):
                    tseq[u] = e.ds_read(2, WO_DEST[u] + 4 * mt + 2 * jj, VTRO[mt], (u % 2) * 2048 + jj * 512, tr=True)

        for u in range(lo, min(lo + 2, hi)):
            ops.append(lambda u=u: dma(u))
        for u in range(lo, hi):
            ops.append(lambda u=u: tr(u))
            if u + 2 < hi:
                ops.append(lambda u=u: dma(u + 2))
        return ops

    def run_units(srd, wo, lo=0, hi=16):
        for f in unit_ops(srd, wo, lo, hi):
            f()

    for f in dma_unit_ops(0, WO_EARLY):
        f()
    e.raw("    s_barrier")
    wops = []
    for f in wops[:NFL]:
        f()
    e.raw("    s_barrier")
    GA, GP, GT = 40, 72, rng(88, 4)
    for q in range(8):
        e.ds_read(4, GA + 4 * q, HRAW, 1024 * q)
    gops = []
    for nt in range(2):
        gops += gelu_list(e, rng(GA + 16 * nt, 16), rng(GP + 8 * nt, 8), GT, HC1)
        for h in range(2):
            gops.append(lambda nt=nt, h=h: e.ds_write(4, HHW, GP + 8 * nt + 4 * h, nt * 16 * HROW + 64 + 32 * h))
    for f in merge(gops, wops[NFL:]):
        f()
    e.wait_all_lds()
    e.salu(f"s_buffer_load_dword {S_T1}, s[{SDBG}:{SDBG + 3}], {S_D}")
    e.salu("s_waitcnt lgkmcnt(0)")
    stamp()
    e.raw("    s_barrier")
    e.salu(f"s_cmp_lg_u32 {S_T1}, {4 if not X_NOPUB else 99}")
    e.salu("s_cbranch_scc1 L_ge")
    v(f"v_lshlrev_b32 {rn(t3)}, 4, {L}", [t3], [VL])
    e.bload(4, GACC, t3, SWS, S_T0, flags="sc1")
    e.bload(4, GACC + 4, t3, SWS, S_T0, off=1024, flags="sc1")
    e.salu("s_branch L_ge_done")
    e.label("L_ge")
    e.pend.clear(); e.wr.clear()
    e.ldone, e.vdone = e.lseq, e.vseq
    e.raw("    s_waitcnt vmcnt(0) lgkmcnt(0)")
    run_units(SWG, False)
    e.nop(10)
    e.salu(f"s_cmp_lt_u32 s2, {NWG}")
    e.salu("s_cbranch_scc1 L_ge_done")
    v(f"v_lshlrev_b32 {rn(t3)}, 4, {L}", [t3], [VL])
    e.bstore(4, GACC, t3, SWS, S_T0, flags="sc0 sc1")
    e.bstore(4, GACC + 4, t3, SWS, S_T0, off=1024, flags="sc0 sc1")
    e.wait_all_vm()
    v(f"v_mov_b32 {rn(t0)}, 0", [t0], [])
    v(f"v_mov_b32 {rn(t1)}, 1", [t1], [])
    e.salu("s_mov_b64 exec, 1")
    e.raw(f"    buffer_atomic_add {rn(t1)}, {rn(t0)}, s[{SDBG}:{SDBG + 3}], {S_D} offen sc1")
    e.salu("s_endpgm")
    e.label("L_ge_done")
    e.pend.clear(); e.wr.clear()
    e.raw("    s_waitcnt lgkmcnt(0)")
    e.ldone = e.lseq
    e.vseq += 2
    for r in rng(GACC, 8):
        e.pend[r] = ('v', e.vseq)

    def finish_ge():
        exp_stage(e, GACC, GKEEP, 120, 8, GMAX)
        for i in range(8):
            v(f"v_mul_f32 {rn(120 + i)}, -0.5, {rn(120 + i)}", [120 + i], [120 + i])
        for mt in range(2):
            e.ds_write(4, HVEGW, 120 + 4 * mt, 64 * mt)
        publish_flag(e, GMAX, 16)

    if WO_SPLIT[1] > WO_SPLIT[0]:
        run_units(SWO, True, WO_SPLIT[0], WO_SPLIT[1])
    finish_ge()
    stamp()
    e.barrier()
    wops = unit_ops(SWO, True, WO_SPLIT[1], WO_LATE, raw=56) if WO_SPLIT[1] < WO_LATE else []
    for f in wops[:NFL]:
        f()
    e.raw("    s_barrier")
    for q in range(4):
        e.ds_read(4, GA + 4 * q, HVST, 1024 * q)
    v(f"v_mov_b32 {rn(HC1)}, {f32(GC1)}", [HC1], [])
    v(f"v_mov_b32 {rn(HC1 + 1)}, {f32(GC1)}", [HC1 + 1], [])
    for f in gelu_list(e, rng(GA, 16), rng(92, 8), GT, HC1):
        f()
    for h in range(2):
        e.ds_write(4, HFW, 92 + 4 * h, FB + 64 + 32 * h)
    e.barrier()
    if H_PRIO:
        e.salu(f"s_setprio {H_PRIO}")
    for f in wops[NFL:]:
        f()
    stamp()
    e.barrier()
    stamp()
    flag_check(e, "L_h_slow")
    snap = (copy.deepcopy(e.pend), e.lseq, e.vseq, e.ldone, e.vdone)

    def epi_ops():
        ops = []
        for q in range(4):
            for i in range(4):
                k = 4 * q + i
                ops.append(lambda k=k: v(f"v_cvt_pk_bf16_f32 {rn(MOUT + k)}, {rn(MOUT + 2 * k)}, {rn(MOUT + 2 * k + 1)}",
                                         [MOUT + k], [MOUT + 2 * k, MOUT + 2 * k + 1], vop3=True))
            ops.append(lambda q=q: e.ds_write(4, MOW, MOUT + 4 * q, 16 * q))
        return ops

    def jread(idx):
        reg = MJR[0] if idx < 16 else MJR[1]
        return lambda: e.ds_read(4, MBF[idx % 4], reg, 32 * (idx % 16))

    def chunk_body(slow):
        prod = produce_ops(e, slow, MEFR, MJW[2], MEG, MEF, MWK, MPK, 1) + [step(e, MJW[2], SJ[2])]
        if X_NOMPROD or PROWS == 4:
            prod = []
        epi = epi_ops()
        rbs = readback_store_ops(e, MOR, MOS, MOUT + 16)
        plan = {}
        for i, f in enumerate(epi):
            plan.setdefault(i // 2, []).append(f)
        for i in range(4):
            plan.setdefault(10 + i, []).append(rbs[i])
            plan.setdefault(ST0 + STD * i, []).append(rbs[4 + i])
        for ks in range(16):
            wo = WO_DEST[ks]
            for mt in range(2):
                dst = (MOUT if ks == 15 else MACC) + 16 * mt
                e.mfma(True, dst, wo + 4 * mt, MBF[ks % 4], MACC + 16 * mt if ks else None)
                if mt == 0:
                    jread(ks + JD)()
                for f in plan.get(2 * ks + mt - 1, []):
                    f()
        v(f"v_mov_b32 {rn(MJR[0])}, {rn(MJR[1])}", [MJR[0]], [MJR[1]])
        step(e, MJR[1], SJ[1])()
        for f in rot_steps(e):
            f()

    def out_stage(slow, tag):
        if WO_LATE < 16:
            run_units(SWO, True, WO_LATE, 16)
        init_steps(e)
        QEG, QEF, QWK, QPK = MACC, MACC + 16, MACC + 24, MACC + 32
        for uu in range(2):
            for pl in range(2):
                e.ds_read(4, QEG + 8 * uu + 4 * pl, MEGR, uu * 1024 + pl * 512)
        for f in ef_read_ops(e, MEFR, QEF):
            f()
        for c in range(2):
            for f in produce_ops(e, slow, MEFR, MJW[c], QEG, QEF, QWK, QPK, 2, pk=True):
                f()
        e.salu(f"s_mov_b32 {S_CNT}, 8")
        e.salu(f"s_mov_b32 {S_OS}, 0x7ff00000")
        e.salu(f"s_setprio {X_PRIO}")
        e.barrier()
        for i in range(JD):
            jread(i)()
        e.wait_all_lds()
        loop_fence(e)
        if STAMPS:
            e.salu("s_mov_b32 s101, 0")
        e.label(f"L_h_loop{tag}")
        stamp.loop_top()
        chunk_body(slow)
        stamp.loop_pre_barrier()
        e.salu(f"s_cmp_eq_u32 {S_CNT}, 8")
        e.salu(f"s_cselect_b32 {S_OS}, {S_OBASE}, {S_OS}")
        e.salu(f"s_sub_u32 {S_CNT}, {S_CNT}, 1")
        e.salu(f"s_cmp_lg_u32 {S_CNT}, 0")
        e.barrier()
        e.salu(f"s_cbranch_scc1 L_h_loop{tag}")
        if not slow:
            stamp()
        for f in epi_ops() + readback_store_ops(e, MOR, MOS, MOUT + 16):
            f()

    out_stage(False, "")
    if STAMPS:
        e.wait_all_vm()
    stamp()
    stamp.dump(True)
    if X_DIAG:
        e.wait_all_vm()
        e.salu("s_memrealtime s[98:99]")
        e.salu("s_waitcnt lgkmcnt(0)")
        e.salu("s_sub_u32 s99, s98, s96")
        e.salu("s_and_b32 s97, s2, 63")
        e.salu(f"s_or_b32 s97, s97, {S_W}")
        e.salu("s_cmp_lg_u32 s97, 0")
        e.salu("s_cbranch_scc1 L_end")
        e.salu("s_lshr_b32 s97, s2, 6")
        e.salu("s_lshl_b32 s97, s97, 3")
        v(f"v_mov_b32 {rn(t0)}, 0", [t0], [])
        v(f"v_mov_b32 {rn(t2)}, s96", [t2], [])
        v(f"v_mov_b32 {rn(t3)}, s99", [t3], [])
        e.salu("s_mov_b64 exec, 1")
        e.raw(f"    buffer_store_dwordx2 {rn(t2, 2)}, {rn(t0)}, s[{SDBG}:{SDBG + 3}], s97 offen offset:32")
    e.salu("s_endpgm")

    e.label("L_h_slow")
    (e.pend, e.lseq, e.vseq, e.ldone, e.vdone) = snap
    e.wr.clear(); e.stw.clear(); e.sgpr_valu.clear()
    e.nop(8)
    e.barrier()
    for mt in range(2):
        e.ds_write(4, HVEGW, GKEEP + 4 * mt, 64 * mt)
    e.barrier()
    out_stage(True, "s")
    e.label("L_end")
    e.salu("s_endpgm")


def split_slow(text, label):
    i = text.index(label + ":")
    return text[:i], text[i:]


def generate():
    e0 = Emitter()
    common_prologue(e0)
    ec = Emitter()
    gen_compute(ec)
    eh = Emitter()
    gen_helper(eh)
    cf, cs = split_slow(ec.text(), "L_c_slow")
    hf, hs = split_slow(eh.text(), "L_h_slow")
    h1, h2 = split_slow(hf, "L_h_setup2")
    return e0.text() + h1 + "    s_branch L_h_setup2\n" + cf + h2 + cs + hs, ec, eh


HEADER = f"""; Fused conv stem (2x stride-2 conv1d + gelu) + RNN-T joint network, one workgroup per 32 output frames.
; @launch grid=({NGRID},1,1) block=(512,1,1) lds={LDS_BYTES}
.amdgcn_target "amdgcn-amd-amdhsa--gfx950"
.text
.globl {NAME}_kernel
.p2align 8
.type {NAME}_kernel,@function
{NAME}_kernel:
"""

FOOTER = f""".section .rodata,"a"
.p2align 6
.amdhsa_kernel {NAME}_kernel
  .amdhsa_next_free_vgpr 256
  .amdhsa_next_free_sgpr 102
  .amdhsa_accum_offset {ACCOFF}
  .amdhsa_group_segment_fixed_size 0
  .amdhsa_kernarg_size 80
  .amdhsa_user_sgpr_count 2
  .amdhsa_user_sgpr_kernarg_segment_ptr 1
  .amdhsa_system_sgpr_workgroup_id_x 1
.end_amdhsa_kernel
"""

if __name__ == "__main__":
    STAMPS = "--stamps" in sys.argv
    if "--out" in sys.argv:
        STAMPMODE = "out"
    if "--h" in sys.argv:
        STAMPMODE = "h"
    if "--bar" in sys.argv:
        STAMPMODE = "bar"
    args = [a for a in sys.argv[1:] if not a.startswith("--")]
    text, ec, eh = generate()
    path = args[0] if args else f"cdna_kernels/{NAME}.s"
    open(path, "w").write(HEADER + text + FOOTER)
    cnt = lambda e: sum(1 for l in e.out if l.startswith("    ") and not l.strip().startswith(";"))
    print("instructions C:", cnt(ec), "H:", cnt(eh))
```
